```python
import torch

def _softmax(x, axis=-1):
    return torch.softmax(x, dim=axis)
def _gelu(x):
    return torch.nn.functional.gelu(x, approximate="tanh")
def _silu(x):
    return torch.nn.functional.silu(x)
def _sigmoid(x):
    return torch.sigmoid(x)
def _layernorm(x, axis=-1, eps=1e-5):
    m = x.mean(dim=axis, keepdim=True)
    v = x.var(dim=axis, keepdim=True, unbiased=False)
    return (x - m) / torch.sqrt(v + eps)
def _scatter_add(tgt, idx, src, axis=0):
    return tgt.clone().index_add_(axis, idx, src)
def _segment_sum(src, seg, n):
    out = torch.zeros((n,) + src.shape[1:], dtype=src.dtype)
    return out.index_add_(0, seg, src)
def _pad(x, pw):
    flat = tuple(v for pair in reversed(pw) for v in pair)
    return torch.nn.functional.pad(x, flat)

kernel_name = 'sequential_preLN__mha_block__swiglu_ffn__prompt'

def setup_inputs():

    _w = (lambda a: (lambda t: t.to(torch.bfloat16) if t.is_floating_point() else t)(torch.as_tensor(a)))
    def _A_setup():
        B, S, D, H = 1, 2048, 640, 32
        return {
            "x": _w((lambda *s: torch.randn(*s, dtype=torch.bfloat16) * 0.05)(B, S, D)),
            "wqkv": _w((lambda *s: torch.randn(*s, dtype=torch.bfloat16) * 0.05)(D, 3 * D)),
            "wo": _w((lambda *s: torch.randn(*s, dtype=torch.bfloat16) * 0.05)(D, D)),
        }
    _A_in = _A_setup()

    def _B_setup():
        B, S, D, F = 1, 2048, 640, 1728
        return {
            "x": _w((lambda *s: torch.randn(*s, dtype=torch.bfloat16) * 0.05)(B, S, D)),
            "w_gate": _w((lambda *s: torch.randn(*s, dtype=torch.bfloat16) * 0.05)(D, F)),
            "w_up": _w((lambda *s: torch.randn(*s, dtype=torch.bfloat16) * 0.05)(D, F)),
            "w_down": _w((lambda *s: torch.randn(*s, dtype=torch.bfloat16) * 0.05)(F, D)),
        }
    _B_in = _B_setup()

    return {
        "A_x": _A_in["x"],
        "A_wqkv": _A_in["wqkv"],
        "A_wo": _A_in["wo"],
        "B_x": _B_in["x"],
        "B_w_gate": _B_in["w_gate"],
        "B_w_up": _B_in["w_up"],
        "B_w_down": _B_in["w_down"],
    }

def reference(A_x, A_wqkv, A_wo, B_x, B_w_gate, B_w_up, B_w_down):
    def _A_ref(x, wqkv, wo):
        B, S, D = x.shape
        H = 32
        Dh = D // H
        qkv = (lambda x, *d: x.permute(*d))((x @ wqkv).reshape(B, S, 3, H, Dh), 2, 0, 3, 1, 4)
        q, k, v = qkv[0], qkv[1], qkv[2]
        scores = torch.einsum("bhqd,bhkd->bhqk", q, k) * (Dh ** -0.5)
        p = _softmax(scores, axis=-1)
        o = torch.einsum("bhqk,bhkd->bhqd", p, v)
        return (lambda x, *d: x.permute(*d))(o, 0, 2, 1, 3).reshape(B, S, D) @ wo

    def _B_ref(x, w_gate, w_up, w_down):
        g = _silu(x @ w_gate)
        u = x @ w_up
        return (g * u) @ w_down

    x = A_x
    h = x + _A_ref(_layernorm(x, axis=-1), A_wqkv, A_wo)
    h2 = h + _B_ref(_layernorm(h, axis=-1), B_w_gate, B_w_up, B_w_down)
    return h2
```

```python
class Asm:
    def __init__(self):
        self.lines = []
        self.nlab = 0
    def __call__(self, s):
        for l in s.strip("\n").split("\n"):
            self.lines.append("    " + l.strip())
    def label(self, name):
        self.lines.append(name + ":")
    def newlabel(self, p="L"):
        self.nlab += 1
        return f"{p}_{self.nlab}"
    def comment(self, s):
        self.lines.append("    ; " + s)
    def text(self):
        return "\n".join(self.lines) + "\n"

def kernel_header(name):
    return f""".globl {name}
.p2align 8
.type {name},@function
{name}:
"""

def kernel_desc(name, vgpr, sgpr=102, accum=None, kernarg=80, extra=""):
    if accum is None:
        accum = (vgpr + 3) // 4 * 4
        if accum > 256: accum = 256
    return f""".amdhsa_kernel {name}
  .amdhsa_next_free_vgpr {vgpr}
  .amdhsa_next_free_sgpr {sgpr}
  .amdhsa_accum_offset {accum}
  .amdhsa_group_segment_fixed_size 0
  .amdhsa_kernarg_size {kernarg}
  .amdhsa_user_sgpr_count 2
  .amdhsa_user_sgpr_kernarg_segment_ptr 1
  .amdhsa_system_sgpr_workgroup_id_x 1
{extra}.end_amdhsa_kernel
"""
```

```python
from ab import *
import math, struct

S_TOK = 2048; DM = 640; NH = 32; DH = 20; FF = 1728
REG = 2621440
QF_OFF = 0; KF_OFF = REG; VT_OFF = 2*REG; O_OFF = 3*REG; H_OFF = 4*REG; ACT_OFF = 5*REG
ACT_BYTES = S_TOK*FF*2
CS_OFF = ACT_OFF + ACT_BYTES
CS_BYTES = 2*FF*4
KA = dict(x=0, wqkv=8, wo=16, bx=24, wg=32, wu=40, wd=48, out=56, dbg=64, ws=72)

def f32bits(x):
    return struct.unpack("<I", struct.pack("<f", x))[0]

def srd(a, d, lo, hi, nbytes, off=0):
    if off:
        a(f"s_add_u32 s{d}, s{lo}, {off}")
        a(f"s_addc_u32 s{d+1}, s{hi}, 0")
    else:
        a(f"s_mov_b32 s{d}, s{lo}")
        a(f"s_mov_b32 s{d+1}, s{hi}")
    a(f"s_mov_b32 s{d+2}, {nbytes}")
    a(f"s_mov_b32 s{d+3}, 0x00020000")

class VAlloc:
    def __init__(self, start=1, limit=256):
        self.n = start; self.limit = limit
    def get(self, cnt=1, align=1):
        self.n = (self.n + align - 1)//align*align
        r = self.n
        self.n += cnt
        assert self.n <= self.limit, "out of vgprs"
        return r

def vr(b, n):
    return f"v[{b}:{b+n-1}]" if n > 1 else f"v{b}"
def sr(b, n):
    return f"s[{b}:{b+n-1}]" if n > 1 else f"s{b}"
```

```python
from common import *

def k_attn(name="attn_kernel"):
    a = Asm()
    CH = 20480
    NCH = 8
    NB = 3
    FLAG = NB*CH
    CSTR = 327680
    a(f"""
    s_cmp_ge_u32 s2, 256
    s_cbranch_scc1 {name}_end
    s_load_dwordx2 s[40:41], s[0:1], {KA['ws']}
    v_lshrrev_b32 v1, 6, v0
    v_and_b32 v2, 63, v0
    v_readfirstlane_b32 s18, v1          ; wave
    s_waitcnt lgkmcnt(0)
    """)
    srd(a, 4, 40, 41, 2*REG, KF_OFF)
    srd(a, 8, 40, 41, REG, QF_OFF)
    srd(a, 12, 40, 41, REG, O_OFF)
    a(f"""
    s_and_b32 s30, s2, 7                 ; xcd
    s_lshr_b32 s31, s2, 3                ; idx 0..31
    s_lshr_b32 s32, s31, 3
    s_lshl_b32 s16, s30, 2
    s_add_u32 s16, s16, s32              ; head
    s_and_b32 s17, s31, 7                ; qblock
    """)
    V = VAlloc(3)
    t0 = V.get(); t1 = V.get(); t2 = V.get(); t3 = V.get(); t4 = V.get()
    vd = [V.get() for _ in range(3)]
    for i in range(3):
        a(f"""
        s_add_u32 s30, s18, {8*i}
        s_cmp_ge_u32 s30, 10
        s_cselect_b32 s31, 10, 0
        s_sub_u32 s30, s30, s31              ; jm
        s_lshl_b32 s30, s30, 10
        v_lshlrev_b32 v{t0}, 4, v2
        v_add_u32 v{t0}, s30, v{t0}          ; b
        v_lshrrev_b32 v{t1}, 8, v{t0}        ; b/256
        v_mul_u32_u24 v{t1}, 52429, v{t1}
        v_lshrrev_b32 v{t1}, 18, v{t1}       ; t = (b/256)/5
        v_mul_u32_u24 v{t2}, 1280, v{t1}
        v_sub_u32 v{t2}, v{t0}, v{t2}        ; o
        v_mul_u32_u24 v{t3}, 40960, v{t1}
        v_add_u32 v{t3}, v{t3}, v{t2}
        s_mul_i32 s32, s16, 1280
        v_add_u32 v{t3}, s32, v{t3}          ; K variant
        v_lshrrev_b32 v{t4}, 6, v{t2}        ; o/64
        v_mul_u32_u24 v{t4}, 52429, v{t4}
        v_lshrrev_b32 v{t4}, 18, v{t4}       ; gq = (o/64)/5
        v_mul_u32_u24 v{t0}, 320, v{t4}
        v_sub_u32 v{t0}, v{t2}, v{t0}        ; oo
        v_lshl_add_u32 v{t4}, v{t1}, 2, v{t4}  ; t*4+gq
        v_mul_u32_u24 v{t4}, 10240, v{t4}
        v_add_u32 v{t4}, v{t4}, v{t0}
        s_mul_i32 s32, s16, 320
        s_add_u32 s32, s32, {REG}
        v_add_u32 v{t4}, s32, v{t4}          ; V variant
        s_cmp_eq_u32 s31, 0
        s_cselect_b64 vcc, -1, 0
        s_nop 1
        v_cndmask_b32 v{vd[i]}, v{t4}, v{t3}, vcc
        """)
    a("s_lshl_b32 s19, s18, 10")
    def issue_chunk(sbuf, soff):
        for i in range(3):
            if i == 2:
                a(f"s_cmp_ge_u32 s18, 4")
                lab = a.newlabel(name + "_sk")
                a(f"s_cbranch_scc1 {lab}")
            a(f"s_add_u32 s30, s19, {i*8192}")
            a(f"s_add_u32 m0, s30, s{sbuf}")
            a("s_nop 0")
            a(f"buffer_load_dwordx4 v{vd[i]}, s[4:7], s{soff} offen lds")
            if i == 2:
                a.label(lab)
    Q1 = V.get(4, 4); Q2 = V.get(4, 4)
    SS = [V.get(16, 4), V.get(16, 4)]
    PP = [V.get(4, 4), V.get(4, 4)]
    OO = V.get(16, 4)
    K1 = [V.get(4, 4), V.get(4, 4)]; K2 = [V.get(4, 4), V.get(4, 4)]
    V1 = [V.get(4, 4), V.get(4, 4)]; V2 = [V.get(4, 4), V.get(4, 4)]
    lk = V.get(); lk2 = V.get(); lv = V.get()
    ck = V.get(); ck2 = V.get(); cv = V.get()
    nk = V.get(); nk2 = V.get(); nv = V.get()
    vm = V.get(); vq = V.get(); vhh = V.get()
    def start_stream():
        a("s_mov_b32 s20, 0\ns_mov_b32 s21, 0")
        issue_chunk(20, 21)
        a(f"s_mov_b32 s20, {CH}\ns_mov_b32 s21, {CSTR}")
        issue_chunk(20, 21)
    start_stream()
    a(f"""
    s_lshl_b32 s30, s17, 3
    s_add_u32 s30, s30, s18              ; q tile
    s_mul_i32 s30, s30, 40960
    s_mul_i32 s31, s16, 1280
    s_add_u32 s24, s30, s31
    v_and_b32 v{vq}, 31, v2              ; q
    v_lshrrev_b32 v{vhh}, 5, v2          ; hh
    v_lshlrev_b32 v{lk2}, 3, v{vq}       ; q*8
    v_lshl_add_u32 v{lk}, v{vhh}, 9, v{lk2}  ; + hh*512
    buffer_load_dwordx2 {vr(Q1,2)}, v{lk}, s[8:11], s24 offen
    buffer_load_dwordx2 {vr(Q1+2,2)}, v{lk}, s[8:11], s24 offen offset:256
    buffer_load_dwordx2 {vr(Q2,2)}, v{lk2}, s[8:11], s24 offen offset:1024
    v_add_u32 v{lk2}, 1024, v{lk2}
    v_mul_u32_u24 v{t4}, 320, v{vhh}
    v_lshl_add_u32 v{lv}, v{vq}, 4, v{t4}     ; hh*320 + d*16
    v_add_u32 v{lv}, 10240, v{lv}
    v_mov_b32 v{t0}, {FLAG}
    v_mov_b32 v{t1}, 0
    ds_write_b32 v{t0}, v{t1}
    """)
    for b in range(2):
        a(f"v_mov_b32 v{K2[b]+2}, 0x3f803f80")
        a(f"v_mov_b32 v{K2[b]+3}, 0x00003f80")
        for r in range(4):
            a(f"v_mov_b32 v{V1[b]+r}, 0x3f803f80")
            a(f"v_mov_b32 v{V2[b]+r}, 0x3f803f80")
    a(f"""
    s_mov_b32 s26, 0x000fffff
    s_mov_b32 s27, 0x000fffff
    v_cmp_gt_u32 s[28:29], 32, v2        ; lanes < 32
    s_waitcnt vmcnt(0) lgkmcnt(0)
    v_mov_b32 v{Q2+2}, 0
    v_mov_b32 v{Q2+3}, 0
    v_cndmask_b32 v{Q2}, 0, v{Q2}, s[28:29]
    v_cndmask_b32 v{Q2+1}, 0, v{Q2+1}, s[28:29]
    s_barrier
    """)
    def readK(buf, t, nxt):
        ak, ak2 = (nk, nk2) if nxt else (ck, ck2)
        a(f"ds_read_b64 {vr(K1[buf],2)}, v{ak} offset:{t*1280}")
        a(f"ds_read_b64 {vr(K1[buf]+2,2)}, v{ak} offset:{t*1280 + 256}")
        a(f"ds_read_b64 {vr(K2[buf],2)}, v{ak2} offset:{t*1280}")
    def readV(buf, t, nxt):
        av = nv if nxt else cv
        a("s_mov_b64 exec, s[26:27]")
        a(f"ds_read_b128 {vr(V1[buf],4)}, v{av} offset:{t*1280}")
        a(f"ds_read_b128 {vr(V2[buf],4)}, v{av} offset:{t*1280 + 640}")
        a("s_mov_b64 exec, -1")
    def smfma(sb, kb):
        a(f"v_mfma_f32_32x32x16_bf16 {vr(SS[sb],16)}, {vr(K1[kb],4)}, {vr(Q1,4)}, 0")
        a(f"v_mfma_f32_32x32x16_bf16 {vr(SS[sb],16)}, {vr(K2[kb],4)}, {vr(Q2,4)}, {vr(SS[sb],16)}")
    def set_m():
        a(f"""
        v_sub_f32 v{t0}, 0, v{vm}                 ; -m
        v_and_b32 v{t1}, 0xffff0000, v{t0}        ; hi
        v_sub_f32 v{t0}, v{t0}, v{t1}
        v_and_b32 v{t3}, 0xffff0000, v{t0}        ; mid
        v_sub_f32 v{t0}, v{t0}, v{t3}             ; lo
        v_lshrrev_b32 v{t1}, 16, v{t1}
        v_or_b32 v{t1}, v{t1}, v{t3}
        v_lshrrev_b32 v{t0}, 16, v{t0}
        v_cndmask_b32 v{Q2+2}, 0, v{t1}, s[28:29]
        v_cndmask_b32 v{Q2+3}, 0, v{t0}, s[28:29]
        s_nop 1
        """)
    def max16(sb, first):
        s = SS[sb]
        if first:
            a(f"v_max_f32 v{vm}, v{s}, v{s+1}")
        else:
            a(f"v_max3_f32 v{vm}, v{s}, v{s+1}, v{vm}")
        for r in range(2, 16, 2):
            a(f"v_max3_f32 v{vm}, v{s+r}, v{s+r+1}, v{vm}")
    def xhalf_max():
        a(f"""
        v_mov_b32 v{t0}, v{vm}
        s_nop 1
        v_permlane32_swap_b32 v{t0}, v{vm}
        s_nop 1
        v_max_f32 v{vm}, v{vm}, v{t0}
        """)
    def set_addrs(cur, nxt):
        a(f"""
        v_add_u32 v{ck}, s{cur}, v{lk}
        v_add_u32 v{ck2}, s{cur}, v{lk2}
        v_add_u32 v{cv}, s{cur}, v{lv}
        v_add_u32 v{nk}, s{nxt}, v{lk}
        v_add_u32 v{nk2}, s{nxt}, v{lk2}
        v_add_u32 v{nv}, s{nxt}, v{lv}
        """)
    a(f"s_mov_b32 s33, 0\ns_mov_b32 s34, {CH}")
    set_addrs(33, 34)
    readK(0, 0, False)
    a("s_waitcnt lgkmcnt(0)")
    smfma(0, 0)
    a("s_nop 15\ns_nop 3")
    max16(0, True)
    xhalf_max()
    set_m()
    a("s_mov_b32 s23, 0")
    a.label(f"{name}_main")
    for r in range(16):
        a(f"v_mov_b32 v{OO+r}, 0")
    a(f"""
    s_mov_b32 s22, 0
    s_mov_b32 s21, {2*CSTR}
    s_mov_b32 s33, 0
    s_mov_b32 s34, {CH}
    s_mov_b32 s20, {2*CH}
    """)
    set_addrs(33, 34)
    readK(0, 0, False)
    a("s_waitcnt lgkmcnt(0)")
    smfma(0, 0)
    readK(1, 1, False)
    readV(0, 0, False)
    a.label(f"{name}_loop")
    for t in range(8):
        sb = t & 1
        if t == 6:
            a("s_waitcnt vmcnt(0)")
            a("s_barrier")
            a(f"s_cmp_ge_u32 s22, {NCH-2}")
            a(f"s_cbranch_scc1 {name}_nodma")
            issue_chunk(20, 21)
            a.label(f"{name}_nodma")
        a("s_waitcnt lgkmcnt(2)")
        smfma(sb ^ 1, sb ^ 1)
        readK(sb, (t + 2) % 8, t + 2 >= 8)
        s = SS[sb]
        for half in range(2):
            for r in range(8):
                a(f"v_exp_f32 v{s+8*half+r}, v{s+8*half+r}")
            for r in range(4):
                a(f"v_cvt_pk_bf16_f32 v{PP[half]+r}, v{s+8*half+2*r}, v{s+8*half+2*r+1}")
            if half == 0:
                a("s_waitcnt lgkmcnt(3)")
                a("s_nop 0")
                a(f"v_mfma_f32_32x32x16_bf16 {vr(OO,16)}, {vr(V1[sb],4)}, {vr(PP[0],4)}, {vr(OO,16)}")
            else:
                a("s_nop 1")
                a(f"v_mfma_f32_32x32x16_bf16 {vr(OO,16)}, {vr(V2[sb],4)}, {vr(PP[1],4)}, {vr(OO,16)}")
        readV(sb ^ 1, (t + 1) % 8, t + 1 >= 8)
    a(f"""
    s_add_u32 s22, s22, 1
    s_add_u32 s21, s21, {CSTR}
    s_mov_b32 s30, s33
    s_mov_b32 s33, s34
    s_mov_b32 s34, s20
    s_mov_b32 s20, s30
    """)
    set_addrs(33, 34)
    a(f"""
    s_cmp_lt_u32 s22, {NCH}
    s_cbranch_scc1 {name}_loop
    s_waitcnt lgkmcnt(0)
    s_nop 15
    """)
    vl = V.get(); vz = V.get()
    a(f"""
    v_mov_b32 v{t0}, v{OO+8}
    v_mov_b32 v{vl}, v{OO+8}
    s_nop 1
    v_permlane32_swap_b32 v{t0}, v{vl}
    v_mov_b32 v{vz}, 0
    """)
    for r in range(12):
        a(f"v_fma_f32 v{vz}, v{OO+r}, 0, v{vz}")
    a(f"""
    s_cmp_lg_u32 s23, 0
    s_cbranch_scc1 {name}_fin
    s_mov_b32 s30, {f32bits(2.0**60)}
    v_add_f32 v{t1}, v{vz}, v{vl}
    v_cmp_nlt_f32 vcc, v{t1}, s30             ; !(t < 2^60)
    s_cmp_eq_u64 vcc, 0
    s_cbranch_scc1 {name}_noflag
    v_mov_b32 v{t0}, {FLAG}
    v_mov_b32 v{t1}, 1
    ds_write_b32 v{t0}, v{t1}
    s_waitcnt lgkmcnt(0)
    """)
    a.label(f"{name}_noflag")
    a(f"""
    s_barrier
    v_mov_b32 v{t0}, {FLAG}
    ds_read_b32 v{t1}, v{t0}
    s_waitcnt lgkmcnt(0)
    v_readfirstlane_b32 s30, v{t1}
    s_nop 3
    s_cmp_eq_u32 s30, 0
    s_cbranch_scc1 {name}_fin
    """)
    a(f"""
    v_mov_b32 v{Q2+2}, 0
    v_mov_b32 v{Q2+3}, 0
    v_mov_b32 v{vm}, 0xff7fffff
    s_mov_b32 s22, 0
    s_mov_b32 s21, 0
    s_mov_b32 s20, 0
    s_mov_b32 s33, 0
    """)
    set_addrs(33, 33)
    a.label(f"{name}_maxloop")
    a("s_barrier")
    issue_chunk(20, 21)
    a("s_waitcnt vmcnt(0)")
    a("s_barrier")
    for t in range(8):
        readK(0, t, False)
        a("s_waitcnt lgkmcnt(0)")
        smfma(0, 0)
        a("s_nop 15\ns_nop 3")
        max16(0, False)
    a(f"""
    s_add_u32 s22, s22, 1
    s_add_u32 s21, s21, {CSTR}
    s_cmp_lt_u32 s22, {NCH}
    s_cbranch_scc1 {name}_maxloop
    """)
    xhalf_max()
    set_m()
    a("s_mov_b32 s23, 1")
    a("s_barrier")
    start_stream()
    a("s_waitcnt vmcnt(0)")
    a("s_barrier")
    a(f"s_branch {name}_main")
    a.label(f"{name}_fin")
    pk = V.get(2, 2); vo = V.get()
    a(f"""
    v_rcp_f32 v{vl}, v{vl}
    s_lshl_b32 s30, s17, 8
    s_lshl_b32 s31, s18, 5
    s_add_u32 s30, s30, s31
    v_add_lshl_u32 v{vo}, v{vq}, s30, 4       ; token*16
    s_mul_i32 s31, s16, 5                     ; G0
    """)
    for grp in range(3):
        a(f"""
        v_add_u32 v{t0}, s31, v{vhh}
        v_add_u32 v{t0}, {2*grp}, v{t0}           ; G
        v_lshrrev_b32 v{t1}, 1, v{t0}
        v_lshlrev_b32 v{t1}, 15, v{t1}
        v_and_b32 v{t0}, 1, v{t0}
        v_lshl_add_u32 v{t1}, v{t0}, 3, v{t1}
        v_add_u32 v{t1}, v{t1}, v{vo}
        v_mul_f32 v{t0}, v{OO+4*grp}, v{vl}
        v_mul_f32 v{t2}, v{OO+4*grp+1}, v{vl}
        v_mul_f32 v{t3}, v{OO+4*grp+2}, v{vl}
        v_mul_f32 v{t4}, v{OO+4*grp+3}, v{vl}
        v_cvt_pk_bf16_f32 v{pk}, v{t0}, v{t2}
        v_cvt_pk_bf16_f32 v{pk+1}, v{t3}, v{t4}
        """)
        if grp == 2:
            a("s_mov_b64 exec, s[28:29]")
        a(f"buffer_store_dwordx2 {vr(pk,2)}, v{t1}, s[12:15], 0 offen")
        a("s_nop 1")
    a.label(f"{name}_end")
    a("s_endpgm")
    return a.text(), V.n, NB*CH + 64
```

```python
from common import *

class LdsQ:
    def __init__(self, a):
        self.a = a; self.q = []
    def issue(self, tag, text):
        self.a(text); self.q.append(tag)
    def need(self, tags):
        idx = max([i for i, t in enumerate(self.q) if t in tags], default=-1)
        if idx < 0: return
        n = len(self.q) - 1 - idx
        assert n <= 15
        self.a(f"s_waitcnt lgkmcnt({n})")
        self.q = self.q[idx+1:]
    def drain(self):
        self.q = []

def k_gemm(name, kind):
    a = Asm()
    if kind == 'wo':
        BM, NC, NREG, K, NW_, D = 64, 80, 1, 640, 640, 8
        xoff, xbytes = O_OFF, REG
    elif kind == 'down':
        BM, NC, NREG, K, NW_, D = 64, 80, 1, 1728, 640, 8
        xoff, xbytes = ACT_OFF, ACT_BYTES
    else:
        BM, NC, NREG, K, NW_, D = 128, 112, 2, 640, 1728, 3
        xoff, xbytes = H_OFF, REG
    MT = BM // 64; NT = NC // 16; NTT = NT * NREG
    CPR = NC // 8; RS = NC * 2
    XB = 8 * BM * 16; WB = 64 * RS
    STG = XB + NREG * WB
    NST = K // 64
    NXI = BM // 8 // 4
    NWI_TOT = NREG * CPR
    WIN = 4 if kind == 'gu' else 5
    a(f"""
    s_cmp_ge_u32 s2, 256
    s_cbranch_scc1 {name}_end
    s_load_dwordx2 s[40:41], s[0:1], {KA['ws']}
    """)
    if kind == 'wo':
        a(f"s_load_dwordx2 s[42:43], s[0:1], {KA['wo']}\ns_load_dwordx2 s[44:45], s[0:1], {KA['x']}")
    elif kind == 'down':
        a(f"s_load_dwordx2 s[42:43], s[0:1], {KA['wd']}\ns_load_dwordx2 s[44:45], s[0:1], {KA['out']}")
    else:
        a(f"s_load_dwordx2 s[42:43], s[0:1], {KA['wg']}\ns_load_dwordx2 s[44:45], s[0:1], {KA['wu']}")
    a(f"""
    v_lshrrev_b32 v1, 6, v0
    v_and_b32 v2, 63, v0
    v_readfirstlane_b32 s18, v1          ; wave
    s_waitcnt lgkmcnt(0)
    """)
    srd(a, 4, 40, 41, xbytes, xoff)
    if kind == 'gu':
        a(f"""
        s_cmp_lt_u32 s18, 2
        s_cselect_b32 s8, s42, s44
        s_cselect_b32 s9, s43, s45
        s_mov_b32 s10, {K*NW_*2}
        s_mov_b32 s11, 0x00020000
        """)
        srd(a, 12, 40, 41, ACT_BYTES, ACT_OFF)
        srd(a, 36, 40, 41, CS_BYTES, CS_OFF)
    else:
        srd(a, 8, 42, 43, K*NW_*2)
        if kind == 'wo':
            srd(a, 12, 40, 41, REG, H_OFF)
            srd(a, 36, 44, 45, REG)
        else:
            srd(a, 12, 44, 45, REG)
            srd(a, 36, 40, 41, REG, H_OFF)
    a(f"""
    s_and_b32 s30, s2, 7                 ; xcd
    s_lshr_b32 s31, s2, 3                ; idx
    s_and_b32 s32, s31, 7
    s_lshr_b32 s33, s31, 3
    """)
    if kind == 'gu':
        a("""
        s_lshr_b32 s34, s30, 2
        s_lshl_b32 s34, s34, 3
        s_add_u32 s16, s34, s32              ; rb
        s_and_b32 s34, s30, 3
        s_lshl_b32 s34, s34, 2
        s_add_u32 s17, s34, s33              ; cb
        """)
    else:
        a("""
        s_lshr_b32 s34, s30, 1
        s_lshl_b32 s34, s34, 3
        s_add_u32 s16, s34, s32              ; rb
        s_and_b32 s34, s30, 1
        s_lshl_b32 s34, s34, 2
        s_add_u32 s17, s34, s33              ; cb
        """)
    V = VAlloc(3)
    t0 = V.get(); t1 = V.get(); t2 = V.get(); t3 = V.get()
    vXd = V.get()
    a(f"v_lshlrev_b32 v{vXd}, 4, v2")
    sX = []
    for i in range(NXI):
        s = 50 + i
        sX.append(s)
        if BM == 64:
            a(f"s_mul_i32 s30, s18, {NXI}\ns_add_u32 s30, s30, {i}\ns_lshl_b32 s{s}, s30, 15")
        else:
            a(f"s_lshl_b32 s30, s18, 1\ns_add_u32 s30, s30, {i>>1}\ns_lshl_b32 s{s}, s30, 15\ns_add_u32 s{s}, s{s}, {(i&1)*1024}")
        a(f"s_mul_i32 s30, s16, {BM*16}\ns_add_u32 s{s}, s{s}, s30")
    a(f"s_mul_i32 s25, s18, {NXI*1024}")
    if kind == 'gu':
        NWI = 7
        a(f"""
        s_and_b32 s30, s18, 1
        s_mul_i32 s26, s30, 7
        s_lshr_b32 s31, s18, 1
        s_mul_i32 s31, s31, {WB}
        s_lshl_b32 s27, s26, 10
        s_add_u32 s27, s27, s31
        s_add_u32 s27, s27, {XB}
        """)
        wstep = 1
    else:
        NWI = 3
        a(f"""
        s_mov_b32 s26, s18
        s_lshl_b32 s27, s26, 10
        s_add_u32 s27, s27, {XB}
        """)
        wstep = 4
    vWd = [V.get() for _ in range(NWI)]
    magic = (1 << 20) // CPR + 1
    for i in range(NWI):
        a(f"""
        s_add_u32 s30, s26, {i*wstep}
        s_lshl_b32 s30, s30, 6
        v_add_u32 v{t0}, s30, v2             ; q
        v_mul_u32_u24 v{t1}, {magic}, v{t0}
        v_lshrrev_b32 v{t1}, 20, v{t1}       ; rho
        v_mul_u32_u24 v{t2}, {CPR}, v{t1}
        v_sub_u32 v{t2}, v{t0}, v{t2}        ; c
        v_and_b32 v{t3}, 0x33, v{t1}
        v_bfe_u32 v{t0}, v{t1}, 2, 1
        v_lshl_or_b32 v{t3}, v{t0}, 3, v{t3}
        v_bfe_u32 v{t0}, v{t1}, 3, 1
        v_lshl_or_b32 v{t3}, v{t0}, 2, v{t3}
        v_mul_u32_u24 v{t3}, {NW_*2}, v{t3}
        v_lshl_add_u32 v{vWd[i]}, v{t2}, 4, v{t3}
        """)
    a(f"s_mul_i32 s28, s17, {NC*2}")
    def issue_stage():
        for i in range(NXI):
            a(f"s_add_u32 s30, s25, s46")
            a(f"s_add_u32 m0, s30, {i*1024}")
            a(f"s_add_u32 s31, s{sX[i]}, s47")
            a(f"buffer_load_dwordx4 v{vXd}, s[4:7], s31 offen lds")
        for i in range(NWI):
            lab = None
            if kind != 'gu' and i == 2:
                lab = a.newlabel(name + "_sk")
                a(f"s_cmp_ge_u32 s18, 2\ns_cbranch_scc1 {lab}")
            a(f"s_add_u32 s30, s27, s46")
            a(f"s_add_u32 m0, s30, {i*wstep*1024}")
            a("s_nop 0")
            a(f"buffer_load_dwordx4 v{vWd[i]}, s[8:11], s48 offen lds")
            if lab: a.label(lab)
        a(f"""
        s_add_u32 s47, s47, {8*32768}
        s_add_u32 s48, s48, {64*NW_*2}
        s_add_u32 s46, s46, {STG}
        s_cmp_ge_u32 s46, {D*STG}
        s_cselect_b32 s30, {D*STG}, 0
        s_sub_u32 s46, s46, s30
        """)
    a("s_mov_b32 s46, 0\ns_mov_b32 s47, 0\ns_mov_b32 s48, s28")
    npro = min(D, NST)
    if npro <= 3:
        for st in range(npro): issue_stage()
    else:
        a("s_mov_b32 s49, 0")
        a.label(f"{name}_pro")
        issue_stage()
        a(f"s_add_u32 s49, s49, 1\ns_cmp_lt_u32 s49, {npro}\ns_cbranch_scc1 {name}_pro")
    vXl = V.get(); vWl = V.get(); vXa = V.get(); vWa = V.get()
    a(f"""
    v_and_b32 v{t0}, 15, v2              ; tok
    v_lshrrev_b32 v{t1}, 4, v2           ; g
    v_mul_u32_u24 v{vXl}, {BM*16}, v{t1}
    v_lshl_add_u32 v{vXl}, v{t0}, 4, v{vXl}
    s_mul_i32 s30, s18, {16*MT*16}
    v_add_u32 v{vXl}, s30, v{vXl}
    v_lshrrev_b32 v{t0}, 5, v2           ; g1
    v_lshlrev_b32 v{t0}, 4, v{t0}
    v_bfe_u32 v{t1}, v2, 4, 1            ; g0
    v_lshl_add_u32 v{t0}, v{t1}, 2, v{t0}
    v_bfe_u32 v{t1}, v2, 2, 2            ; rr
    v_add_u32 v{t0}, v{t0}, v{t1}
    v_mul_u32_u24 v{vWl}, {RS}, v{t0}
    v_and_b32 v{t1}, 3, v2
    v_lshl_add_u32 v{vWl}, v{t1}, 3, v{vWl}
    """)
    XF = [[V.get(4, 4) for mt in range(MT)] for b in range(2)]
    WF = [V.get(4, 4) for _ in range(WIN)]
    ACC = [[V.get(4, 4) for mt in range(MT)] for nt in range(NTT)]
    for nt in range(NTT):
        for mt in range(MT):
            for r in range(4):
                a(f"v_mov_b32 v{ACC[nt][mt]+r}, 0")
    if kind == 'gu':
        vsum = [V.get() for _ in range(MT)]; vsq = [V.get() for _ in range(MT)]
        for mt in range(MT):
            a(f"v_mov_b32 v{vsum[mt]}, 0\nv_mov_b32 v{vsq[mt]}, 0")
    vq = V.get(); vtok = V.get()
    a(f"""
    v_lshrrev_b32 v{vq}, 4, v2           ; q
    v_and_b32 v{vtok}, 15, v2
    s_mul_i32 s30, s16, {BM}
    s_mul_i32 s31, s18, {16*MT}
    s_add_u32 s30, s30, s31
    v_add_u32 v{vtok}, s30, v{vtok}
    """)
    if kind == 'wo':
        RES = [V.get(2, 2) for _ in range(NT)]
        a(f"""
        v_mul_u32_u24 v{t0}, 1280, v{vtok}
        v_lshl_add_u32 v{t0}, v{vq}, 3, v{t0}
        """)
        for nt in range(NT):
            a(f"buffer_load_dwordx2 {vr(RES[nt],2)}, v{t0}, s[36:39], s28 offen offset:{nt*32}")
        nres = NT
    elif kind == 'down':
        RES = [V.get(2, 2) for _ in range(NT)]
        a(f"""
        v_lshrrev_b32 v{t0}, 1, v{vq}
        v_lshlrev_b32 v{t0}, 15, v{t0}
        v_lshl_add_u32 v{t0}, v{vtok}, 4, v{t0}
        v_and_b32 v{t1}, 1, v{vq}
        v_lshl_add_u32 v{t0}, v{t1}, 3, v{t0}
        s_mul_i32 s30, s17, {10*32768}
        """)
        for nt in range(NT):
            a(f"s_add_u32 s31, s30, {nt*2*32768}")
            a(f"buffer_load_dwordx2 {vr(RES[nt],2)}, v{t0}, s[36:39], s31 offen")
        nres = NT
    else:
        CS = [V.get(4, 4) for _ in range(NTT)]
        a(f"""
        v_lshlrev_b32 v{t0}, 4, v{vq}
        s_mul_i32 s30, s17, {112*4}
        """)
        for rg in range(2):
            for nt in range(NT):
                a(f"s_add_u32 s31, s30, {rg*FF*4 + nt*64}")
                a(f"buffer_load_dwordx4 {vr(CS[rg*NT+nt],4)}, v{t0}, s[36:39], s31 offen")
        nres = NTT
    per_hi = NXI + NWI
    per_lo = NXI + NWI - (0 if kind == 'gu' else 1)
    q = LdsQ(a)
    JOBS = 2 * NTT
    def xread(ks):
        for mt in range(MT):
            q.issue(('x', ks & 1), f"ds_read_b128 {vr(XF[ks&1][mt],4)}, v{vXa} offset:{ks*4*BM*16 + mt*256}")
    def wread(u):
        ks, nt = divmod(u, NTT)
        rg, ntl = divmod(nt, NT)
        slot = u % WIN
        for jh in range(2):
            q.issue(('w', u), f"ds_read_b64_tr_b16 {vr(WF[slot]+2*jh,2)}, v{vWa} offset:{XB + rg*WB + (32*ks + 8*jh)*RS + ntl*32}")
    def vmwait(nstages_hi_expr_label):
        pass
    def stage_enter(first):
        if first:
            n_st = min(D - 1, NST - 1)
            labs = a.newlabel(name + "_w"); labe = a.newlabel(name + "_w")
            if per_hi != per_lo:
                a(f"s_cmp_ge_u32 s18, 2\ns_cbranch_scc1 {labs}")
                a(f"s_waitcnt vmcnt({min(63, per_hi*n_st + nres)})")
                a(f"s_branch {labe}")
                a.label(labs)
                a(f"s_waitcnt vmcnt({min(63, per_lo*n_st + nres)})")
                a.label(labe)
            else:
                a(f"s_waitcnt vmcnt({min(63, per_hi*n_st + nres)})")
            a("s_barrier")
        else:
            n_st = D - 2
            l0 = a.newlabel(name + "_w"); l1 = a.newlabel(name + "_w"); le = a.newlabel(name + "_w")
            a(f"s_cmp_gt_u32 s49, {max(NST - D + 1, 0)}\ns_cbranch_scc1 {l0}")
            if per_hi != per_lo:
                a(f"s_cmp_ge_u32 s18, 2\ns_cbranch_scc1 {l1}")
                a(f"s_waitcnt vmcnt({per_hi*n_st}) lgkmcnt(0)")
                a(f"s_branch {le}")
                a.label(l1)
                a(f"s_waitcnt vmcnt({per_lo*n_st}) lgkmcnt(0)")
                a(f"s_branch {le}")
            else:
                a(f"s_waitcnt vmcnt({per_hi*n_st}) lgkmcnt(0)")
                a(f"s_branch {le}")
            a.label(l0)
            a("s_waitcnt vmcnt(0) lgkmcnt(0)")
            a.label(le)
            q.drain()
            a("s_barrier")
            ls = a.newlabel(name + "_ni")
            a(f"s_cmp_ge_u32 s49, {max(NST - D + 1, 0)}\ns_cbranch_scc1 {ls}")
            issue_stage()
            a.label(ls)
    def set_read_addr():
        a(f"v_add_u32 v{vXa}, s45, v{vXl}\nv_add_u32 v{vWa}, s45, v{vWl}")
    def adv_read_slot():
        a(f"""
        s_add_u32 s45, s45, {STG}
        s_cmp_ge_u32 s45, {D*STG}
        s_cselect_b32 s30, {D*STG}, 0
        s_sub_u32 s45, s45, s30
        """)
    def job_mfma(u):
        ks, nt = divmod(u, NTT)
        slot = u % WIN
        q.need({('w', u), ('x', ks & 1)})
        for mt in range(MT):
            a(f"v_mfma_f32_16x16x32_bf16 {vr(ACC[nt][mt],4)}, {vr(WF[slot],4)}, {vr(XF[ks&1][mt],4)}, {vr(ACC[nt][mt],4)}")
        if kind == 'gu' and nt < 2 * MT * 2 // 2 and False:
            pass
        if kind == 'gu':
            if nt < 8:
                mt, r = divmod(nt, 4)
                a(f"v_dot2c_f32_bf16 v{vsq[mt]}, v{XF[ks&1][mt]+r}, v{XF[ks&1][mt]+r}")
                a(f"v_dot2c_f32_bf16 v{vsum[mt]}, 0x3f803f80, v{XF[ks&1][mt]+r}")
    assert JOBS % WIN == 0 or True
    a("s_mov_b32 s49, 0\ns_mov_b32 s45, 0")
    stage_enter(True)
    set_read_addr()
    xread(0)
    for u in range(WIN): wread(u)
    a.label(f"{name}_loop")
    qstate = list(q.q)
    assert JOBS % WIN == 0, (JOBS, WIN)
    for u in range(JOBS):
        if u == JOBS - WIN:
            lend = f"{name}_tail"
            a(f"s_add_u32 s49, s49, 1")
            a(f"s_cmp_ge_u32 s49, {NST}\ns_cbranch_scc1 {lend}")
            stage_enter(False)
            adv_read_slot()
            set_read_addr()
            xread(0)
        if u == NTT - WIN:
            xread(1)
        job_mfma(u)
        un = u + WIN
        wread(un % JOBS)
    assert q.q == qstate, (q.q, qstate)
    a(f"s_branch {name}_loop")
    a.label(f"{name}_tail")
    a("s_waitcnt lgkmcnt(0)")
    q.drain()
    for u in range(JOBS - WIN, JOBS):
        job_mfma(u)
    a("s_nop 7\ns_nop 7")
    a("s_waitcnt vmcnt(0)")
    if kind in ('wo', 'down'):
        pk = V.get(2, 2)
        if kind == 'wo':
            a(f"""
            v_lshrrev_b32 v{t0}, 1, v{vq}
            v_lshlrev_b32 v{t0}, 15, v{t0}
            v_lshl_add_u32 v{t0}, v{vtok}, 4, v{t0}
            v_and_b32 v{t1}, 1, v{vq}
            v_lshl_add_u32 v{t0}, v{t1}, 3, v{t0}
            s_mul_i32 s30, s17, {10*32768}
            """)
        else:
            a(f"""
            v_mul_u32_u24 v{t0}, 1280, v{vtok}
            v_lshl_add_u32 v{t0}, v{vq}, 3, v{t0}
            """)
        for nt in range(NT):
            acc = ACC[nt][0]; r = RES[nt]
            a(f"""
            v_lshlrev_b32 v{t1}, 16, v{r}
            v_and_b32 v{t2}, 0xffff0000, v{r}
            v_add_f32 v{acc}, v{acc}, v{t1}
            v_add_f32 v{acc+1}, v{acc+1}, v{t2}
            v_lshlrev_b32 v{t1}, 16, v{r+1}
            v_and_b32 v{t2}, 0xffff0000, v{r+1}
            v_add_f32 v{acc+2}, v{acc+2}, v{t1}
            v_add_f32 v{acc+3}, v{acc+3}, v{t2}
            v_cvt_pk_bf16_f32 v{pk}, v{acc}, v{acc+1}
            v_cvt_pk_bf16_f32 v{pk+1}, v{acc+2}, v{acc+3}
            """)
            if kind == 'wo':
                a(f"s_add_u32 s31, s30, {nt*2*32768}")
                a(f"buffer_store_dwordx2 {vr(pk,2)}, v{t0}, s[12:15], s31 offen")
            else:
                a(f"buffer_store_dwordx2 {vr(pk,2)}, v{t0}, s[12:15], s28 offen offset:{nt*32}")
            a("s_nop 0")
    else:
        ag = [V.get() for _ in range(MT)]; mu = [V.get() for _ in range(MT)]; au = [V.get() for _ in range(MT)]
        for mt in range(MT):
            for reg in (vsum[mt], vsq[mt]):
                a(f"""
                v_mov_b32 v{t0}, v{reg}
                s_nop 1
                v_permlane32_swap_b32 v{t0}, v{reg}
                s_nop 1
                v_add_f32 v{reg}, v{reg}, v{t0}
                v_mov_b32 v{t0}, v{reg}
                s_nop 1
                v_permlane16_swap_b32 v{t0}, v{reg}
                s_nop 1
                v_add_f32 v{reg}, v{reg}, v{t0}
                """)
            a(f"""
            s_mov_b32 s30, {f32bits(1.0/DM)}
            v_mul_f32 v{mu[mt]}, s30, v{vsum[mt]}
            v_mul_f32 v{vsq[mt]}, s30, v{vsq[mt]}
            v_fma_f32 v{vsq[mt]}, -v{mu[mt]}, v{mu[mt]}, v{vsq[mt]}
            v_max_f32 v{vsq[mt]}, 0, v{vsq[mt]}
            v_add_f32 v{vsq[mt]}, {f32bits(1e-5)}, v{vsq[mt]}
            v_rsq_f32 v{vsq[mt]}, v{vsq[mt]}
            s_nop 0
            v_mul_f32 v{ag[mt]}, {f32bits(-math.log2(math.e))}, v{vsq[mt]}     ; -log2e*rstd
            v_mul_f32 v{au[mt]}, {f32bits(-math.log(2.0))}, v{vsq[mt]}         ; -ln2*rstd
            v_sub_f32 v{mu[mt]}, 0, v{mu[mt]}                                  ; -mu
            """)
        pk = V.get(2, 2); vo = V.get(); w = [V.get() for _ in range(4)]; e = [V.get() for _ in range(4)]
        a(f"""
        v_lshrrev_b32 v{t0}, 1, v{vq}
        v_lshlrev_b32 v{t0}, 15, v{t0}
        v_lshl_add_u32 v{t0}, v{vtok}, 4, v{t0}
        v_and_b32 v{t1}, 1, v{vq}
        v_lshl_add_u32 v{vo}, v{t1}, 3, v{t0}
        s_mul_i32 s30, s17, {14*32768}
        """)
        for nt in range(NT):
            for mt in range(MT):
                g = ACC[nt][mt]; u_ = ACC[NT+nt][mt]; cg = CS[nt]; cu = CS[NT+nt]
                for r in range(4):
                    a(f"v_fmac_f32 v{g+r}, v{cg+r}, v{mu[mt]}")
                for r in range(4):
                    a(f"v_mul_f32 v{w[r]}, v{g+r}, v{ag[mt]}")
                for r in range(4):
                    a(f"v_exp_f32 v{e[r]}, v{w[r]}")
                for r in range(4):
                    a(f"v_fmac_f32 v{u_+r}, v{cu+r}, v{mu[mt]}")
                for r in range(4):
                    a(f"v_add_f32 v{e[r]}, 1.0, v{e[r]}")
                for r in range(4):
                    a(f"v_rcp_f32 v{e[r]}, v{e[r]}")
                for r in range(4):
                    a(f"v_mul_f32 v{u_+r}, v{u_+r}, v{au[mt]}")
                for r in range(4):
                    a(f"v_mul_f32 v{w[r]}, v{w[r]}, v{u_+r}")
                for r in range(4):
                    a(f"v_mul_f32 v{w[r]}, v{w[r]}, v{e[r]}")
                a(f"v_cvt_pk_bf16_f32 v{pk}, v{w[0]}, v{w[1]}")
                a(f"v_cvt_pk_bf16_f32 v{pk+1}, v{w[2]}, v{w[3]}")
                a(f"s_add_u32 s31, s30, {nt*2*32768}")
                a(f"buffer_store_dwordx2 {vr(pk,2)}, v{vo}, s[12:15], s31 offen offset:{mt*256}")
                a("s_nop 0")
    a.label(f"{name}_end")
    a("s_endpgm")
    return a.text(), V.n, D*STG
```

```python
from common import *

def k_qkv(name="qkv_kernel"):
    a = Asm()
    D = 4
    NST = 10; STG = 32768
    QS = (DH ** -0.5) * math.log2(math.e)
    a(f"""
    s_cmp_ge_u32 s2, 256
    s_cbranch_scc1 {name}_end
    s_load_dwordx2 s[36:37], s[0:1], {KA['x']}
    s_load_dwordx2 s[38:39], s[0:1], {KA['wqkv']}
    s_load_dwordx2 s[40:41], s[0:1], {KA['ws']}
    s_load_dwordx2 s[42:43], s[0:1], {KA['wg']}
    s_load_dwordx2 s[44:45], s[0:1], {KA['wu']}
    v_lshrrev_b32 v1, 6, v0
    v_and_b32 v2, 63, v0
    v_readfirstlane_b32 s18, v1
    s_waitcnt lgkmcnt(0)
    s_cmp_ge_u32 s2, 240
    s_cbranch_scc1 {name}_colsum
    """)
    srd(a, 4, 36, 37, REG)
    srd(a, 8, 38, 39, DM*3*DM*2)
    srd(a, 12, 40, 41, 3*REG)
    a(f"""
    s_and_b32 s30, s2, 7          ; xcd
    s_lshr_b32 s31, s2, 3         ; idx 0..29
    s_and_b32 s32, s30, 1
    s_mul_i32 s32, s32, 30
    s_add_u32 s32, s32, s31       ; t 0..59
    s_lshr_b32 s17, s32, 2        ; cb
    s_and_b32 s33, s32, 3
    s_lshr_b32 s30, s30, 1
    s_lshl_b32 s30, s30, 2
    s_add_u32 s16, s30, s33       ; rb
    s_lshr_b32 s19, s18, 1        ; wm
    s_and_b32 s20, s18, 1         ; wn
    s_mul_i32 s21, s16, {128*1280}
    s_mul_i32 s30, s18, {32*1280}
    s_add_u32 s21, s21, s30
    s_mul_i32 s22, s18, {16*3840}
    s_lshl_b32 s30, s17, 8
    s_add_u32 s22, s22, s30
    s_lshl_b32 s23, s18, 12       ; m0 base X = w*4096
    s_add_u32 s24, s23, 16384     ; m0 base W
    """)
    V = VAlloc(3)
    vXd = [V.get(), V.get()]
    vWd = V.get()
    t0 = V.get(); t1 = V.get(); t2 = V.get(); t3 = V.get()
    a(f"""
    v_lshrrev_b32 v{t0}, 3, v2            ; row_l
    v_and_b32 v{t1}, 7, v2                ; pos
    v_lshrrev_b32 v{t2}, 1, v{t0}         ; row_l>>1
    v_xor_b32 v{t3}, v{t1}, v{t2}
    v_mul_u32_u24 v{t0}, 1280, v{t0}
    v_lshl_add_u32 v{vXd[0]}, v{t3}, 4, v{t0}
    v_xor_b32 v{t3}, 4, v{t3}
    v_lshl_add_u32 v{vXd[1]}, v{t3}, 4, v{t0}
    v_lshrrev_b32 v{t0}, 4, v2            ; r
    v_and_b32 v{t1}, 15, v2               ; pos
    v_lshlrev_b32 v{t2}, 2, v{t0}
    v_xor_b32 v{t1}, v{t1}, v{t2}
    v_mul_u32_u24 v{t0}, 3840, v{t0}
    v_lshl_add_u32 v{vWd}, v{t1}, 4, v{t0}
    """)
    def issue(st):
        slot = st % D
        for i in range(4):
            a(f"s_add_u32 m0, s23, {slot*STG + i*1024}")
            a(f"s_add_u32 s30, s21, {i*8*1280 + st*128}")
            a(f"buffer_load_dwordx4 v{vXd[i&1]}, s[4:7], s30 offen lds")
        for i in range(4):
            a(f"s_add_u32 m0, s24, {slot*STG + i*1024}")
            a(f"s_add_u32 s30, s22, {(st*64 + i*4)*3840}")
            a(f"buffer_load_dwordx4 v{vWd}, s[8:11], s30 offen lds")
    for st in range(D-1):
        issue(st)
    vXA = [[[V.get() for sm in range(2)] for s in range(4)] for st_ in range(2)]
    vWA = [[V.get() for sn in range(2)] for st_ in range(2)]
    a(f"""
    v_and_b32 v{t0}, 31, v2               ; r
    v_lshrrev_b32 v{t1}, 5, v2            ; hh
    v_bfe_u32 v{t2}, v{t0}, 1, 3          ; f
    v_xor_b32 v{t2}, v{t2}, v{t1}         ; hh ^ f
    v_lshlrev_b32 v{t2}, 4, v{t2}
    v_lshl_add_u32 v{t2}, v{t0}, 7, v{t2} ; r*128 + ((hh^f)<<4)
    s_lshl_b32 s30, s19, 13               ; wm*8192
    s_lshl_b32 s31, s20, 12               ; wn*4096
    s_add_u32 s30, s30, s31
    v_add_u32 v{t2}, s30, v{t2}
    """)
    for s in range(4):
        a(f"v_xor_b32 v{vXA[0][s][0]}, {s*32}, v{t2}")
        a(f"v_xor_b32 v{vXA[0][s][1]}, 0x1000, v{vXA[0][s][0]}")
        for sm in range(2):
            a(f"v_add_u32 v{vXA[1][s][sm]}, 0x10000, v{vXA[0][s][sm]}")
    a(f"""
    v_lshrrev_b32 v{t0}, 5, v2            ; g>>1
    v_bfe_u32 v{t1}, v2, 2, 2             ; rr
    v_lshl_add_u32 v{t0}, v{t0}, 3, v{t1} ; 8*(g>>1)+rr
    v_lshlrev_b32 v{t0}, 8, v{t0}
    v_bfe_u32 v{t2}, v2, 4, 1             ; g&1
    v_lshlrev_b32 v{t2}, 1, v{t2}
    v_bfe_u32 v{t3}, v2, 1, 1             ; c4>>1
    v_add_u32 v{t2}, v{t2}, v{t3}
    s_lshl_b32 s30, s20, 3                ; wn*8
    s_lshl_b32 s31, s19, 2
    s_add_u32 s30, s30, s31
    v_add_u32 v{t2}, s30, v{t2}           ; chunk
    v_lshlrev_b32 v{t1}, 2, v{t1}
    v_xor_b32 v{t2}, v{t2}, v{t1}
    v_lshl_add_u32 v{t0}, v{t2}, 4, v{t0}
    v_and_b32 v{t3}, 1, v2
    v_lshl_add_u32 v{vWA[0][0]}, v{t3}, 3, v{t0}
    v_xor_b32 v{vWA[0][1]}, 64, v{vWA[0][0]}
    v_add_u32 v{vWA[1][0]}, 0x10000, v{vWA[0][0]}
    v_add_u32 v{vWA[1][1]}, 0x10000, v{vWA[0][1]}
    """)
    XF = [[V.get(4, 4) for sm in range(2)] for b in range(2)]
    WF = [[V.get(4, 4) for sn in range(2)] for b in range(2)]
    ACC = [[V.get(16, 4) for j in range(2)] for i in range(2)]
    vsum = V.get(); vsq = V.get(); vcs = V.get()
    for i in range(2):
        for j in range(2):
            for r in range(16):
                a(f"v_mov_b32 v{ACC[i][j]+r}, 0")
    a(f"v_mov_b32 v{vsum}, 0\nv_mov_b32 v{vsq}, 0\nv_mov_b32 v{vcs}, 0")

    def read_frags(gs):
        st, s = gs // 4, gs % 4
        slot = st % D; b = gs & 1
        rs = slot >> 1; base = (slot & 1) * STG
        for sm in range(2):
            a(f"ds_read_b128 {vr(XF[b][sm],4)}, v{vXA[rs][s][sm]} offset:{base}")
        for sn in range(2):
            for jh in range(2):
                a(f"ds_read_b64_tr_b16 {vr(WF[b][sn]+2*jh,2)}, v{vWA[rs][sn]} offset:{base + 16384 + s*4096 + jh*1024}")
    def mfmas(gs, vmode):
        b = gs & 1
        ops = []
        for sn in range(2):
            for sm in range(2):
                if vmode:
                    ops.append(f"v_mfma_f32_32x32x16_bf16 {vr(ACC[sn][sm],16)}, {vr(XF[b][sm],4)}, {vr(WF[b][sn],4)}, {vr(ACC[sn][sm],16)}")
                else:
                    ops.append(f"v_mfma_f32_32x32x16_bf16 {vr(ACC[sn][sm],16)}, {vr(WF[b][sn],4)}, {vr(XF[b][sm],4)}, {vr(ACC[sn][sm],16)}")
        st_ops = []
        for r in range(4):
            st_ops.append(f"v_dot2c_f32_bf16 v{vsq}, v{XF[b][0]+r}, v{XF[b][0]+r}")
            st_ops.append(f"v_dot2c_f32_bf16 v{vsum}, 0x3f803f80, v{XF[b][0]+r}")
            st_ops.append(f"v_dot2c_f32_bf16 v{vcs}, 0x3f803f80, v{WF[b][0]+r}")
        for i in range(4):
            a(ops[i])
            for o in st_ops[3*i:3*i+3]:
                a(o)

    def mainloop(vmode):
        for st in range(NST):
            n_out = 8 * (min(st + D - 2, NST - 1) - st)
            a(f"s_waitcnt vmcnt({n_out}) lgkmcnt(0)")
            a("s_barrier")
            if st + D - 1 < NST:
                issue(st + D - 1)
            read_frags(4*st)
            if st > 0:
                mfmas(4*st - 1, vmode)
            for s in range(3):
                a("s_waitcnt lgkmcnt(0)")
                read_frags(4*st + s + 1)
                mfmas(4*st + s, vmode)
        a("s_waitcnt lgkmcnt(0)")
        mfmas(4*NST - 1, vmode)

    def stats():
        a("s_nop 3")
        tt = [V.get() for _ in range(4)]
        a(f"""
        v_mov_b32 v{tt[0]}, v{vsum}
        v_mov_b32 v{tt[1]}, v{vsq}
        v_mov_b32 v{tt[2]}, v{vcs}
        s_nop 1
        v_permlane32_swap_b32 v{tt[0]}, v{vsum}
        v_permlane32_swap_b32 v{tt[1]}, v{vsq}
        v_permlane32_swap_b32 v{tt[2]}, v{vcs}
        s_nop 1
        v_add_f32 v{vsum}, v{vsum}, v{tt[0]}
        v_add_f32 v{vsq}, v{vsq}, v{tt[1]}
        v_add_f32 v{vcs}, v{vcs}, v{tt[2]}
        s_mov_b32 s30, {f32bits(1.0/DM)}
        v_mul_f32 v{vsum}, s30, v{vsum}            ; mu
        v_mul_f32 v{vsq}, s30, v{vsq}              ; E[x^2]
        v_fma_f32 v{vsq}, -v{vsum}, v{vsum}, v{vsq} ; var
        v_max_f32 v{vsq}, 0, v{vsq}
        v_add_f32 v{vsq}, {f32bits(1e-5)}, v{vsq}
        v_rsq_f32 v{vsq}, v{vsq}                   ; rstd
        s_nop 0
        v_mul_f32 v{vsum}, v{vsum}, v{vsq}
        v_sub_f32 v{vsum}, 0, v{vsum}              ; -mu*rstd
        v_and_b32 v{tt[0]}, 31, v2
        s_lshl_b32 s30, s19, 6
        s_lshl_b32 s31, s20, 5
        s_add_u32 s30, s30, s31
        v_add_lshl_u32 v{tt[1]}, v{tt[0]}, s30, 2
        s_lshl_b32 s30, s20, 6
        s_lshl_b32 s31, s19, 5
        s_add_u32 s30, s30, s31
        v_add_lshl_u32 v{tt[2]}, v{tt[0]}, s30, 2
        s_barrier
        ds_write_b32 v{tt[1]}, v{vsq}
        ds_write_b32 v{tt[1]}, v{vsum} offset:512
        ds_write_b32 v{tt[2]}, v{vcs} offset:1024
        s_waitcnt lgkmcnt(0)
        s_barrier
        """)
        return tt

    a(f"s_cmp_ge_u32 s17, 10")
    a(f"s_cbranch_scc1 {name}_vpath")
    mainloop(False)
    tt = stats()
    am = [V.get(), V.get()]; bm = [V.get(), V.get()]
    csr = V.get(4, 4); pk = V.get(2, 2); vo = V.get(); vca = V.get(); w0 = V.get(); w1 = V.get(); w2=V.get(); w3=V.get()
    a(f"""
    v_and_b32 v{tt[0]}, 31, v2
    s_lshl_b32 s30, s19, 6
    s_lshl_b32 s31, s20, 5
    s_add_u32 s30, s30, s31
    v_add_lshl_u32 v{tt[1]}, v{tt[0]}, s30, 2
    v_xor_b32 v{tt[2]}, 128, v{tt[1]}
    ds_read_b32 v{am[0]}, v{tt[1]}
    ds_read_b32 v{bm[0]}, v{tt[1]} offset:512
    ds_read_b32 v{am[1]}, v{tt[2]}
    ds_read_b32 v{bm[1]}, v{tt[2]} offset:512
    v_lshrrev_b32 v{tt[3]}, 5, v2        ; hh
    v_lshlrev_b32 v{vca}, 4, v{tt[3]}
    s_lshl_b32 s30, s20, 8
    v_add_u32 v{vca}, s30, v{vca}
    s_cmp_lt_u32 s17, 5
    s_cselect_b32 s34, {f32bits(QS)}, 1.0
    ; output: region = (cb>=5)?KF:QF ; cbl = cb%5
    s_cselect_b32 s35, {QF_OFF}, {KF_OFF}
    s_cselect_b32 s30, 0, 5
    s_sub_u32 s30, s17, s30              ; cbl
    s_lshl_b32 s31, s30, 5
    s_lshl_b32 s33, s20, 4
    s_add_u32 s31, s31, s33
    s_lshl_b32 s31, s31, 8
    s_add_u32 s35, s35, s31
    s_lshl_b32 s31, s16, 2
    s_lshl_b32 s33, s19, 1
    s_add_u32 s31, s31, s33
    s_mul_i32 s31, s31, 40960
    s_add_u32 s35, s35, s31
    v_lshlrev_b32 v{vo}, 8, v{tt[3]}
    v_lshl_add_u32 v{vo}, v{tt[0]}, 3, v{vo}
    s_waitcnt lgkmcnt(0)
    v_mul_f32 v{am[0]}, s34, v{am[0]}
    v_mul_f32 v{bm[0]}, s34, v{bm[0]}
    v_mul_f32 v{am[1]}, s34, v{am[1]}
    v_mul_f32 v{bm[1]}, s34, v{bm[1]}
    s_mul_i32 s46, s20, 40960
    s_sub_u32 s47, 40960, s46
    s_add_u32 s46, s46, s35
    s_add_u32 s47, s47, s35
    s_lshl_b32 s48, s19, 11
    s_sub_u32 s49, 2048, s48
    s_lshl_b32 s50, s19, 7
    s_sub_u32 s51, 128, s50
    """)
    for sn in range(2):
        a(f"v_add_u32 v{tt[1]}, s{50+sn}, v{vca}")
        for aa in range(4):
            a(f"ds_read_b128 {vr(csr,4)}, v{tt[1]} offset:{1024 + aa*32}")
            a("s_waitcnt lgkmcnt(0)")
            for sm in range(2):
                acc = ACC[sn][sm] + 4*aa
                ws_ = [w0, w1, w2, w3]
                for i in range(4):
                    a(f"v_mul_f32 v{ws_[i]}, v{csr+i}, v{bm[sm]}")
                for i in range(4):
                    a(f"v_fmac_f32 v{ws_[i]}, v{acc+i}, v{am[sm]}")
                a(f"v_cvt_pk_bf16_f32 v{pk}, v{w0}, v{w1}")
                a(f"v_cvt_pk_bf16_f32 v{pk+1}, v{w2}, v{w3}")
                a(f"s_add_u32 s30, s{46+sm}, s{48+sn}")
                a(f"buffer_store_dwordx2 {vr(pk,2)}, v{vo}, s[12:15], s30 offen offset:{aa*512}")
                a("s_nop 1")
    a(f"s_branch {name}_end")

    a.label(f"{name}_vpath")
    mainloop(True)
    V2 = VAlloc(V.n)
    tt = stats()
    csn = [V.get(), V.get()]
    rs4 = V.get(4, 4); nb4 = V.get(4, 4); pk4 = V.get(4, 4); vo = V.get(); vra = V.get()
    wv = [V.get() for _ in range(8)]
    a(f"""
    v_and_b32 v{tt[0]}, 31, v2
    v_lshrrev_b32 v{tt[3]}, 5, v2        ; hh
    s_lshl_b32 s30, s20, 6
    s_lshl_b32 s31, s19, 5
    s_add_u32 s30, s30, s31
    v_add_lshl_u32 v{tt[1]}, v{tt[0]}, s30, 2
    v_xor_b32 v{tt[2]}, 128, v{tt[1]}
    ds_read_b32 v{csn[0]}, v{tt[1]} offset:1024
    ds_read_b32 v{csn[1]}, v{tt[2]} offset:1024
    v_lshlrev_b32 v{vra}, 4, v{tt[3]}
    s_lshl_b32 s30, s19, 8
    v_add_u32 v{vra}, s30, v{vra}
    s_lshl_b32 s30, s16, 3
    s_lshl_b32 s31, s19, 2
    s_add_u32 s30, s30, s31
    s_mul_i32 s30, s30, 20480
    s_sub_u32 s31, s17, 10
    s_lshl_b32 s31, s31, 7
    s_lshl_b32 s33, s20, 6
    s_add_u32 s31, s31, s33
    s_lshl_b32 s31, s31, 4
    s_add_u32 s35, s30, s31
    s_add_u32 s35, s35, {VT_OFF}
    v_mul_u32_u24 v{vo}, 10240, v{tt[3]}
    v_lshl_add_u32 v{vo}, v{tt[0]}, 4, v{vo}
    s_mul_i32 s46, s20, 40960
    s_sub_u32 s47, 40960, s46
    s_add_u32 s46, s46, s35
    s_add_u32 s47, s47, s35
    s_lshl_b32 s48, s19, 9               ; tn*32*16
    s_sub_u32 s49, 512, s48
    s_lshl_b32 s50, s20, 7
    s_sub_u32 s51, 128, s50
    s_waitcnt lgkmcnt(0)
    """)
    for sm in range(2):
        a(f"v_add_u32 v{tt[1]}, s{50+sm}, v{vra}")
        for g in range(2):
            for sn in range(2):
                for ah in range(2):
                    aa = 2*g + ah
                    a(f"ds_read_b128 {vr(rs4,4)}, v{tt[1]} offset:{aa*32}")
                    a(f"ds_read_b128 {vr(nb4,4)}, v{tt[1]} offset:{512 + aa*32}")
                    a("s_waitcnt lgkmcnt(0)")
                    acc = ACC[sn][sm] + 4*aa
                    for i in range(4):
                        a(f"v_mul_f32 v{wv[4*ah+i]}, v{nb4+i}, v{csn[sn]}")
                    for i in range(4):
                        a(f"v_fmac_f32 v{wv[4*ah+i]}, v{acc+i}, v{rs4+i}")
                for i in range(4):
                    a(f"v_cvt_pk_bf16_f32 v{pk4+i}, v{wv[2*i]}, v{wv[2*i+1]}")
                a(f"s_add_u32 s30, s{46+sm}, s{48+sn}")
                a(f"s_add_u32 s30, s30, {g*20480}")
                a(f"buffer_store_dwordx4 {vr(pk4,4)}, v{vo}, s[12:15], s30 offen")
                a("s_nop 1")
    a(f"s_branch {name}_end")

    a.label(f"{name}_colsum")
    a(f"""
    s_sub_u32 s30, s2, 240
    s_lshr_b32 s31, s30, 3
    s_and_b32 s32, s30, 7
    s_cmp_eq_u32 s31, 0
    s_cselect_b32 s4, s42, s44
    s_cselect_b32 s5, s43, s45
    s_mov_b32 s6, {DM*FF*2}
    s_mov_b32 s7, 0x00020000
    """)
    srd(a, 12, 40, 41, CS_BYTES, CS_OFF)
    C = VAlloc(3)
    c0 = C.get(); c1 = C.get(); vo = C.get()
    acc = C.get(8, 4)
    buf = C.get(64, 4)
    a(f"""
    v_and_b32 v{c0}, 31, v0              ; chunk c
    v_lshrrev_b32 v{c1}, 5, v0
    v_mul_u32_u24 v{vo}, {80*FF*2}, v{c1}
    v_lshl_add_u32 v{vo}, v{c0}, 4, v{vo}
    s_mul_i32 s33, s32, 432
    s_mov_b32 s46, 0x00003f80
    s_mov_b32 s47, 0x3f800000
    """)
    for i in range(8):
        a(f"v_mov_b32 v{acc+i}, 0")
    for bt in range(5):
        for i in range(16):
            a(f"s_add_u32 s30, s33, {(bt*16+i)*FF*2}")
            a(f"buffer_load_dwordx4 {vr(buf+4*i,4)}, v{vo}, s[4:7], s30 offen")
        for i in range(16):
            a(f"s_waitcnt vmcnt({15-i})")
            for r in range(4):
                a(f"v_dot2c_f32_bf16 v{acc+2*r}, s46, v{buf+4*i+r}")
                a(f"v_dot2c_f32_bf16 v{acc+2*r+1}, s47, v{buf+4*i+r}")
    a(f"""
    s_nop 3
    v_lshlrev_b32 v{c1}, 5, v0
    ds_write_b128 v{c1}, {vr(acc,4)}
    ds_write_b128 v{c1}, {vr(acc+4,4)} offset:16
    s_waitcnt lgkmcnt(0)
    s_barrier
    v_lshlrev_b32 v{c1}, 2, v0           ; column t (0..215) *4
    """)
    assert acc % 4 == 0 or True
    for rg in range(8):
        a(f"ds_read_b32 v{buf+rg}, v{c1} offset:{rg*1024}")
    a("s_waitcnt lgkmcnt(0)")
    for rg in range(1, 8):
        a(f"v_add_f32 v{buf}, v{buf}, v{buf+rg}")
    a(f"""
    s_mul_i32 s30, s31, {FF*4}
    s_mul_i32 s33, s32, {216*4}
    s_add_u32 s30, s30, s33
    v_cmp_gt_u32 vcc, 216, v0
    s_and_saveexec_b64 s[34:35], vcc
    s_cbranch_execz {name}_end
    buffer_store_dword v{buf}, v{c1}, s[12:15], s30 offen
    """)
    a.label(f"{name}_end")
    a("s_endpgm")
    return a.text(), max(V.n, C.n), D*STG
```

```python
import sys
from common import *
from k_qkv import k_qkv
from k_attn import k_attn
from k_gemm import k_gemm

HDR = open("sequential_preLN__mha_block__swiglu_ffn__prompt.s.ref").read().split("\n")
HDR = [l for l in HDR if l.startswith(";") and "@launch" not in l and "Override" not in l and "grid=ceil" not in l]

def build(which=None):
    ks = []
    t, n, l = k_qkv("qkv_kernel"); ks.append(("qkv_kernel", t, n, l, 256, 256))
    t, n, l = k_attn("attn_kernel"); ks.append(("attn_kernel", t, n, l, 256, 512))
    t, n, l = k_gemm("wo_kernel", "wo"); ks.append(("wo_kernel", t, n, l, 256, 256))
    t, n, l = k_gemm("gu_kernel", "gu"); ks.append(("gu_kernel", t, n, l, 256, 256))
    t, n, l = k_gemm("down_kernel", "down"); ks.append(("down_kernel", t, n, l, 256, 256))
    out = "\n".join(HDR) + "\n"
    for name, t, n, l, g, b in ks:
        out += f"; @launch kernel={name} grid=({g},1,1) block=({b},1,1) lds={l}\n"
    out += '.amdgcn_target "amdgcn-amd-amdhsa--gfx950"\n.text\n'
    for name, t, n, l, g, b in ks:
        out += kernel_header(name) + t
    out += '.section .rodata,"a"\n'
    for name, t, n, l, g, b in ks:
        out += ".p2align 6\n" + kernel_desc(name, n)
    return out

if __name__ == "__main__":
    dst = sys.argv[1] if len(sys.argv) > 1 else "sequential_preLN__mha_block__swiglu_ffn__prompt.s"
    open(dst, "w").write(build())
    print("wrote", dst)
```

```python
import sys
from ab import *
import numpy as np

def gen(nwaves=4, depth=4, nwg=240, BM=128, BN=128, K=640, N=1920, BK=64, name="mb_kernel", xcdmap=True, aux="", pf=False):
    a = Asm()
    stageA = BM*BK*2; stageB = BK*BN*2; stage = stageA+stageB
    ninstA = stageA//1024; ninstB = stageB//1024
    perwA = ninstA//nwaves; perwB = ninstB//nwaves
    nst = K//BK
    ncb = N//BN
    a(f"""
    s_cmp_ge_u32 s2, {nwg}
    s_cbranch_scc1 L_end
    s_load_dwordx2 s[4:5], s[0:1], 0
    s_load_dwordx2 s[6:7], s[0:1], 8
    s_waitcnt lgkmcnt(0)
    s_mov_b32 s8, s4
    s_mov_b32 s9, s5
    s_mov_b32 s10, {2048*K*2}
    s_mov_b32 s11, 0x00020000
    s_add_u32 s12, s4, {4<<20}
    s_addc_u32 s13, s5, 0
    s_mov_b32 s14, {K*N*2}
    s_mov_b32 s15, 0x00020000
    s_mov_b32 s16, s6
    s_mov_b32 s17, s7
    s_mov_b32 s18, 0x100000
    s_mov_b32 s19, 0x00020000
    s_memtime s[40:41]
    """)
    if xcdmap:
        a(f"""
        s_and_b32 s20, s2, 7
        s_lshr_b32 s21, s2, 3
        s_cmp_ge_u32 s21, {ncb}
        s_cselect_b32 s22, 1, 0
        s_mul_i32 s23, s22, {ncb}
        s_sub_u32 s24, s21, s23      ; cb
        s_lshl_b32 s25, s20, 1
        s_add_u32 s25, s25, s22      ; rb
        """)
    else:
        a(f"""
        s_and_b32 s25, s2, 15
        s_lshr_b32 s24, s2, 4
        """)
    a(f"""
    v_lshrrev_b32 v1, 6, v0
    s_nop 0
    v_readfirstlane_b32 s26, v1
    v_and_b32 v2, 63, v0
    v_lshlrev_b32 v7, 4, v0
    ; A: lane -> row = lane/8, chunk = lane%8 ; voffset = row*K*2 + chunk*16
    v_lshrrev_b32 v3, 3, v2
    v_and_b32 v4, 7, v2
    v_mul_u32_u24 v5, {K*2}, v3
    v_lshl_add_u32 v5, v4, 4, v5
    v_lshrrev_b32 v3, {int(np.log2(BN*2//16))}, v2
    v_and_b32 v4, {BN*2//16-1}, v2
    v_mul_u32_u24 v6, {N*2}, v3
    v_lshl_add_u32 v6, v4, 4, v6
    s_mul_i32 s27, s25, {BM*K*2}
    s_mul_i32 s28, s26, {perwA*8*K*2}
    s_add_u32 s27, s27, s28
    s_mul_i32 s29, s24, {BN*2}
    s_mul_i32 s28, s26, {perwB*(1024//(BN*2))*N*2}
    s_add_u32 s29, s29, s28
    s_mul_i32 s30, s26, {perwA*1024}
    s_mul_i32 s31, s26, {perwB*1024}
    s_add_u32 s31, s31, {stageA}
    """)
    def issue(st):
        slot = st % depth
        for i in range(perwA):
            a(f"s_add_u32 m0, s30, {slot*stage + i*1024}")
            a(f"s_add_u32 s32, s27, {st*BK*2 + i*8*K*2}")
            a(f"buffer_load_dwordx4 v5, s[8:11], s32 offen lds {aux}")
        for i in range(perwB):
            a(f"s_add_u32 m0, s31, {slot*stage + i*1024}")
            a(f"s_add_u32 s32, s29, {(st*BK + i*(1024//(BN*2)))*N*2}")
            a(f"buffer_load_dwordx4 v6, s[12:15], s32 offen lds {aux}")
    per = perwA+perwB
    if pf:
        a(f"s_cmp_lt_u32 s26, {nwaves}")
        a("s_cbranch_scc1 L_main")
        a(f"""
        s_sub_u32 s33, s26, {nwaves}
        v_mul_u32_u24 v10, {N*2}, v2
        s_lshl_b32 s34, s21, 7
        v_add_u32 v10, s34, v10
        s_lshl_b32 s35, s20, 8
        s_and_b32 s36, s21, 3
        s_lshl_b32 s36, s36, 6
        s_add_u32 s35, s35, s36
        v_add_u32 v11, s35, v2
        v_mul_u32_u24 v11, {K*2}, v11
        s_cmp_eq_u32 s33, 0
        s_cbranch_scc0 L_pfx
        """)
        for st in range(nst):
            a(f"s_mov_b32 s37, {st*64*N*2}")
            a(f"buffer_load_dword v12, v10, s[12:15], s37 offen")
        a("s_branch L_pfdone")
        a.label("L_pfx")
        a("s_cmp_ge_u32 s21, 4")
        a("s_cbranch_scc1 L_pfdone")
        for st in range(nst):
            a(f"buffer_load_dword v12, v11, s[8:11], 0 offen offset:{st*128}")
        a.label("L_pfdone")
        for st in range(nst):
            a("s_barrier")
        a("s_endpgm")
        a.label("L_main")
    for st in range(depth-1):
        issue(st)
    for st in range(nst):
        inflight_after = min(depth-2, nst-1-st)
        a(f"s_waitcnt vmcnt({inflight_after*per})")
        a("s_barrier")
        a(f"s_memtime s[{50+2*st}:{51+2*st}]")
        if st+depth-1 < nst:
            issue(st+depth-1)
        a("ds_read_b128 v[8:11], v7")
        a("s_waitcnt lgkmcnt(0)")
    a(f"""
    s_memtime s[42:43]
    s_waitcnt lgkmcnt(0)
    s_sub_u32 s44, s42, s40
    v_mov_b32 v1, s44
    v_lshlrev_b32 v2, 2, v0
    s_lshl_b32 s3, s2, 2
    v_mov_b32 v2, s3
    buffer_store_dword v1, v2, s[16:19], 0 offen
    s_lshl_b32 s3, s2, 6
    s_add_u32 s3, s3, 4096
    """)
    for st in range(nst):
        a(f"s_sub_u32 s44, s{50+2*st}, s40")
        a("v_mov_b32 v1, s44")
        a(f"s_add_u32 s45, s3, {4*st}")
        a("v_mov_b32 v2, s45")
        a("buffer_store_dword v1, v2, s[16:19], 0 offen")
    a("s_waitcnt vmcnt(0)")
    a.label("L_end")
    a("s_endpgm")
    txt = f"; @launch grid=({nwg},1,1) block=({64*(nwaves + (2 if pf else 0))},1,1) lds={depth*stage}\n" + '.amdgcn_target "amdgcn-amd-amdhsa--gfx950"\n.text\n'
    txt += kernel_header(name) + a.text()
    txt += '.section .rodata,"a"\n.p2align 6\n' + kernel_desc(name, 32, kernarg=16)
    return txt

if __name__ == "__main__":
    cfgs = [dict(nwaves=4, depth=4), dict(nwaves=4, depth=4, pf=True)]
    for i, c in enumerate(cfgs):
        open(f"mb_dma_{i}.s", "w").write(gen(**c))
    if len(sys.argv) > 1 and sys.argv[1] == "run":
        import ctypes
        from mbrun import *
        from mbrun import _check, _hip
        big = DeviceBuffer(1 << 30)
        def flush(n):
            def f():
                _check(_hip.hipMemset(big._ptr, 1, n))
            return f
        for i, c in enumerate(cfgs):
            path = f"mb_dma_{i}.s"
            asm, co = build(path, "mb_kernel", 2)
            g, b, lds = parse_launch_directive(asm)
            k = AsmKernel(co, "mb_kernel")
            host = np.random.randint(0, 1<<30, size=(8<<20)//4, dtype=np.uint32)
            din = DeviceBuffer.from_numpy(host)
            din2 = DeviceBuffer.from_numpy(host)
            dout = DeviceBuffer.from_numpy(np.zeros((1<<20)//4, dtype=np.uint32))
            ka = pack_ptr_kernargs([din.ptr, dout.ptr])
            f = lambda: k.launch(g, b, ka, lds)
            def copyin():
                _check(_hip.hipMemcpy(din._ptr, din2._ptr, 8<<20, 3))
            for nm, fl in (("warm", None), ("flush32M", flush(32<<20)), ("flush128M", flush(128<<20)), ("flush1G", flush(1<<30)), ("rewritten(d2d copy)", copyin)):
                res = []
                for rep in range(4):
                    if fl: fl()
                    _check(_hip.hipDeviceSynchronize())
                    f(); _check(_hip.hipDeviceSynchronize())
                    o = dout.to_numpy(np.uint32, (256,))[:g[0]]
                    res.append(int(np.median(o)))
                print(c, nm, "median cycles per WG:", res, flush=True)
```

```python
from ab import *
import math, struct

S_TOK = 2048; DM = 640; NH = 32; DH = 20; FF = 1728
REG = 2621440
QF_OFF = 0; KF_OFF = REG; VT_OFF = 2*REG; O_OFF = 3*REG; H_OFF = 4*REG; ACT_OFF = 5*REG
ACT_BYTES = S_TOK*FF*2
CS_OFF = ACT_OFF + ACT_BYTES
CS_BYTES = 2*FF*4
ST_OFF = CS_OFF + 16384
ST_BYTES = S_TOK*8*8
WP_OFF = ST_OFF + ST_BYTES
WP_WO = 0; WP_GU = 800*1024; WP_WD = (800+4480)*1024; WPX = (800+4480+2160)*1024
SY_OFF = WP_OFF + WPX
SY_BYTES = 4096
WS_END = SY_OFF + SY_BYTES
KA = dict(x=0, wqkv=8, wo=16, bx=24, wg=32, wu=40, wd=48, out=56, dbg=64, ws=72)
P = dict(x=64, wqkv=66, wo=68, bx=70, wg=72, wu=74, wd=76, out=78, dbg=80, ws=82)

def f32bits(x):
    return struct.unpack("<I", struct.pack("<f", x))[0]

def srd(a, d, p, nbytes, off=0):
    if off:
        a(f"s_add_u32 s{d}, s{p}, {off}")
        a(f"s_addc_u32 s{d+1}, s{p+1}, 0")
    else:
        a(f"s_mov_b32 s{d}, s{p}")
        a(f"s_mov_b32 s{d+1}, s{p+1}")
    a(f"s_mov_b32 s{d+2}, {nbytes}")
    a(f"s_mov_b32 s{d+3}, 0x00020000")

def entry(a, name, nwg=256):
    a(f"""
    s_cmp_ge_u32 s2, {nwg}
    s_cbranch_scc1 {name}_end
    s_load_dwordx16 s[64:79], s[0:1], 0
    s_load_dwordx4 s[80:83], s[0:1], 64
    v_lshrrev_b32 v1, 6, v0
    v_and_b32 v2, 63, v0
    v_readfirstlane_b32 s18, v1
    """)

class VAlloc:
    def __init__(self, start=1, limit=256):
        self.n = start; self.limit = limit; self.hi = start
    def get(self, cnt=1, align=1):
        self.n = (self.n + align - 1)//align*align
        r = self.n
        self.n += cnt
        self.hi = max(self.hi, self.n)
        assert self.n <= self.limit, "out of vgprs"
        return r
    def mark(self): return self.n
    def reset(self, m): self.n = m

def vr(b, n):
    return f"v[{b}:{b+n-1}]" if n > 1 else f"v{b}"
def sr(b, n):
    return f"s[{b}:{b+n-1}]" if n > 1 else f"s{b}"

class LdsQ:
    def __init__(self, a):
        self.a = a; self.q = []
    def issue(self, tag, text):
        self.a(text); self.q.append(tag)
    def need(self, tags):
        idx = max([i for i, t in enumerate(self.q) if t in tags], default=-1)
        if idx < 0: return
        n = len(self.q) - 1 - idx
        assert n <= 15
        self.a(f"s_waitcnt lgkmcnt({n})")
        self.q = self.q[idx+1:]
    def drain(self):
        self.q = []
```

```python
from common import *

def k_attn(name="attn_kernel"):
    a = Asm()
    VOFF = 10240
    CH = VOFF + 33*336
    NCH = 8; NB = 3
    FLAG = NB*CH + 256
    CSTR = 327680
    entry(a, name)
    a(f"""
    s_and_b32 s30, s2, 7                 ; xcd
    s_lshr_b32 s31, s2, 3                ; idx 0..31
    s_lshr_b32 s32, s31, 3
    s_lshl_b32 s16, s30, 2
    s_add_u32 s16, s16, s32              ; head
    s_and_b32 s17, s31, 7                ; qblock
    """)
    V = VAlloc(3)
    t0 = V.get(); t1 = V.get(); t2 = V.get(); t3 = V.get(); t4 = V.get()
    vd = [V.get() for _ in range(3)]
    vpl = V.get(); vrow = V.get()
    a(f"""
    v_mul_u32_u24 v{vpl}, 49, v2
    v_lshrrev_b32 v{vpl}, 10, v{vpl}
    v_mul_u32_u24 v{t0}, 21, v{vpl}
    v_sub_u32 v{vrow}, v2, v{t0}
    v_cmp_gt_u32 vcc, 20, v{vrow}
    v_cmp_gt_u32 s[30:31], 63, v2
    s_nop 1
    s_and_b64 s[56:57], vcc, s[30:31]
    """)
    for i in range(3):
        a(f"""
        s_add_u32 s30, s18, {8*i}            ; id
        s_cmp_lt_u32 s30, 10
        s_cselect_b64 s[{58+2*i}:{59+2*i}], -1, s[56:57]
        s_cselect_b32 s31, 0, 1              ; isV
        s_lshl_b32 s32, s30, 10              ; K lds
        s_sub_u32 s33, s30, 10               ; jv
        s_mul_i32 s34, s33, 1008
        s_add_u32 s34, s34, {VOFF}
        s_cmp_eq_u32 s31, 0
        s_cselect_b32 s{50+i}, s32, s34
        ; K variant: b = id*1024 + lane*16 ; t = b/1280 ; o = b%1280 ; off = t*40960 + head*1280 + o
        v_lshlrev_b32 v{t0}, 4, v2
        v_add_u32 v{t0}, s32, v{t0}
        v_lshrrev_b32 v{t1}, 8, v{t0}
        v_mul_u32_u24 v{t1}, 52429, v{t1}
        v_lshrrev_b32 v{t1}, 18, v{t1}
        v_mul_u32_u24 v{t2}, {40960-1280}, v{t1}
        v_add_u32 v{t3}, v{t0}, v{t2}
        s_mul_i32 s32, s16, 1280
        v_add_u32 v{t3}, s32, v{t3}
        s_mul_i32 s33, s33, 3
        v_add_u32 v{t4}, s33, v{vpl}
        v_mul_u32_u24 v{t4}, 10240, v{t4}
        v_lshl_add_u32 v{t4}, v{vrow}, 4, v{t4}
        s_mul_i32 s32, s16, 320
        s_add_u32 s32, s32, {REG}
        v_add_u32 v{t4}, s32, v{t4}
        s_cmp_eq_u32 s31, 0
        s_cselect_b64 vcc, -1, 0
        s_nop 1
        v_cndmask_b32 v{vd[i]}, v{t4}, v{t3}, vcc
        """)
    a("s_waitcnt lgkmcnt(0)")
    srd(a, 4, P['ws'], 2*REG, KF_OFF)
    def issue_chunk(sbuf, soff):
        for i in range(3):
            if i == 2:
                lab = a.newlabel(name + "_sk")
                a(f"s_cmp_ge_u32 s18, 5\ns_cbranch_scc1 {lab}")
            a(f"s_add_u32 m0, s{50+i}, s{sbuf}")
            a(f"s_mov_b64 exec, s[{58+2*i}:{59+2*i}]")
            a(f"buffer_load_dwordx4 v{vd[i]}, s[4:7], s{soff} offen lds")
            if i == 2:
                a.label(lab)
        a("s_mov_b64 exec, -1")
    def set_goff(cidx_sgpr_expr):
        a(f"s_add_u32 s21, s17, {cidx_sgpr_expr}\ns_and_b32 s21, s21, 7\ns_mul_i32 s21, s21, {CSTR}")
    def start_stream():
        a("s_mov_b32 s20, 0")
        set_goff(0)
        issue_chunk(20, 21)
        a(f"s_mov_b32 s20, {CH}")
        set_goff(1)
        issue_chunk(20, 21)
    start_stream()
    srd(a, 8, P['ws'], REG, QF_OFF)
    srd(a, 12, P['ws'], REG, O_OFF)
    RPK = FLAG + 64
    RPK = (RPK + 255)//256*256
    rp_v = [V.get(), V.get()]
    rp_c = [V.get(), V.get()]
    rp_row = V.get(); rp_ra = V.get(); rp_f = V.get(); rp_t = V.get(); rp_o = V.get()
    RF = V.get(28, 4)
    a(f"""
    v_lshrrev_b32 v{rp_row}, 4, v2               ; row_l
    v_and_b32 v{rp_t}, 15, v2                    ; slot
    v_lshlrev_b32 v{rp_c[0]}, 1, v{rp_row}
    v_xor_b32 v{rp_c[0]}, v{rp_c[0]}, v{rp_t}
    v_xor_b32 v{rp_c[1]}, 8, v{rp_c[0]}
    v_lshrrev_b32 v{rp_t}, 4, v2                 ; g
    v_bfe_u32 v{rp_f}, v2, 2, 2                  ; rr
    v_lshl_add_u32 v{rp_ra}, v{rp_t}, 3, v{rp_f} ; 8g+rr
    v_lshlrev_b32 v{rp_ra}, 8, v{rp_ra}
    v_and_b32 v{rp_o}, 3, v2
    v_lshl_add_u32 v{rp_ra}, v{rp_o}, 3, v{rp_ra}
    s_lshl_b32 s30, s18, 13
    s_add_u32 s30, s30, {RPK}
    v_add_u32 v{rp_ra}, s30, v{rp_ra}
    v_and_b32 v{rp_t}, 1, v{rp_t}
    v_lshl_or_b32 v{rp_f}, v{rp_t}, 2, v{rp_f}
    v_lshlrev_b32 v{rp_f}, 5, v{rp_f}            ; f*32
    v_lshlrev_b32 v{rp_o}, 4, v2
    s_lshl_b32 s53, s2, 3
    s_add_u32 s53, s53, s18
    """)
    srd(a, 40, P['ws'], WPX, WP_OFF)
    def rp_decode(usg):
        l_gu = a.newlabel(name + "_rg"); l_wd = a.newlabel(name + "_rd"); l_e = a.newlabel(name + "_re")
        a(f"""
        s_cmp_ge_u32 s{usg}, 800
        s_cbranch_scc1 {l_wd}
        s_cmp_ge_u32 s{usg}, 160
        s_cbranch_scc1 {l_gu}
        s_mul_i32 s30, s{usg}, 3277
        s_lshr_b32 s30, s30, 16
        s_mul_i32 s31, s30, 20
        s_sub_u32 s31, s{usg}, s31
        s_mul_i32 s32, s30, 160
        s_mul_i32 s44, s31, {32*1280}
        s_add_u32 s44, s44, s32
        s_mov_b32 s45, 1280
        s_mul_i32 s46, s{usg}, 5120
        s_add_u32 s46, s46, {WP_WO}
        s_mov_b32 s47, 5
        s_mov_b32 s36, s{P['wo']}
        s_mov_b32 s37, s{P['wo']+1}
        s_mov_b32 s38, {DM*DM*2}
        s_branch {l_e}
        """)
        a.label(l_gu)
        a(f"""
        s_sub_u32 s49, s{usg}, 160
        s_mul_i32 s30, s49, 1639
        s_lshr_b32 s30, s30, 16
        s_mul_i32 s31, s30, 40
        s_sub_u32 s31, s49, s31
        s_mul_i32 s32, s30, 224
        s_lshr_b32 s49, s31, 1
        s_mul_i32 s44, s49, {32*3456}
        s_add_u32 s44, s44, s32
        s_mov_b32 s45, 3456
        s_mul_i32 s46, s30, 20
        s_add_u32 s46, s46, s49
        s_mul_i32 s46, s46, 14
        s_and_b32 s31, s31, 1
        s_mul_i32 s30, s31, 7
        s_add_u32 s46, s46, s30
        s_lshl_b32 s46, s46, 10
        s_add_u32 s46, s46, {WP_GU}
        s_mov_b32 s47, 7
        s_cmp_eq_u32 s31, 0
        s_cselect_b32 s36, s{P['wg']}, s{P['wu']}
        s_cselect_b32 s37, s{P['wg']+1}, s{P['wu']+1}
        s_mov_b32 s38, {DM*FF*2}
        s_branch {l_e}
        """)
        a.label(l_wd)
        a(f"""
        s_sub_u32 s49, s{usg}, 800
        s_mul_i32 s30, s49, 1214
        s_lshr_b32 s30, s30, 16
        s_mul_i32 s31, s30, 54
        s_sub_u32 s31, s49, s31
        s_mul_i32 s32, s30, 160
        s_mul_i32 s44, s31, {32*1280}
        s_add_u32 s44, s44, s32
        s_mov_b32 s45, 1280
        s_mul_i32 s46, s49, 5120
        s_add_u32 s46, s46, {WP_WD}
        s_mov_b32 s47, 5
        s_mov_b32 s36, s{P['wd']}
        s_mov_b32 s37, s{P['wd']+1}
        s_mov_b32 s38, {FF*DM*2}
        """)
        a.label(l_e)
        a("s_mov_b32 s39, 0x00020000")
    def rp_A(usg):
        rp_decode(usg)
        a(f"""
        s_lshl_b32 s49, s47, 1
        v_mul_lo_u32 v{rp_t}, v{rp_row}, s45
        v_lshl_add_u32 v{rp_v[0]}, v{rp_c[0]}, 4, v{rp_t}
        v_lshl_add_u32 v{rp_v[1]}, v{rp_c[1]}, 4, v{rp_t}
        v_cmp_gt_u32 s[54:55], s49, v{rp_c[0]}
        v_cmp_gt_u32 s[26:27], s49, v{rp_c[1]}
        s_lshl_b32 s30, s18, 13
        s_add_u32 s30, s30, {RPK}
        s_lshl_b32 s31, s45, 2
        """)
        for i in range(8):
            var = (i >> 1) & 1
            a(f"s_add_u32 m0, s30, {i*1024}")
            a(f"s_mov_b64 exec, {['s[54:55]', 's[26:27]'][var]}")
            a(f"buffer_load_dwordx4 v{rp_v[var]}, s[36:39], s44 offen lds")
            a(f"s_add_u32 s44, s44, s31")
        a("s_mov_b64 exec, -1")
    def rp_B():
        for nt in range(7):
            a(f"v_xor_b32 v{rp_t}, {nt*32}, v{rp_f}")
            a(f"v_add_u32 v{rp_t}, v{rp_t}, v{rp_ra}")
            a(f"ds_read_b64_tr_b16 {vr(RF+4*nt,2)}, v{rp_t}")
            a(f"ds_read_b64_tr_b16 {vr(RF+4*nt+2,2)}, v{rp_t} offset:1024")
        a("s_waitcnt lgkmcnt(0)")
        lab = a.newlabel(name + "_r5")
        for nt in range(7):
            if nt == 5:
                a(f"s_cmp_lt_u32 s47, 7\ns_cbranch_scc1 {lab}")
            a(f"s_add_u32 s30, s46, {nt*1024}")
            a(f"buffer_store_dwordx4 {vr(RF+4*nt,4)}, v{rp_o}, s[40:43], s30 offen sc1")
        a.label(lab)
    Q1 = V.get(4, 4); Q2 = V.get(4, 4)
    SS = [V.get(16, 4), V.get(16, 4)]
    PP = [V.get(4, 4), V.get(4, 4)]
    OO = V.get(16, 4)
    K1 = [V.get(4, 4), V.get(4, 4)]; K2 = [V.get(4, 4), V.get(4, 4)]
    V1 = [V.get(4, 4), V.get(4, 4)]; V2 = [V.get(4, 4), V.get(4, 4)]
    lk = V.get(); lk2 = V.get(); lv = V.get()
    ck = V.get(); ck2 = V.get(); cv = V.get()
    nk = V.get(); nk2 = V.get(); nv = V.get()
    vm = V.get(); vq = V.get(); vhh = V.get()
    a(f"""
    s_lshl_b32 s30, s17, 3
    s_add_u32 s30, s30, s18              ; q tile
    s_mul_i32 s30, s30, 40960
    s_mul_i32 s31, s16, 1280
    s_add_u32 s24, s30, s31
    v_and_b32 v{vq}, 31, v2
    v_lshrrev_b32 v{vhh}, 5, v2
    v_lshlrev_b32 v{lk2}, 3, v{vq}
    v_lshl_add_u32 v{lk}, v{vhh}, 9, v{lk2}
    buffer_load_dwordx2 {vr(Q1,2)}, v{lk}, s[8:11], s24 offen
    buffer_load_dwordx2 {vr(Q1+2,2)}, v{lk}, s[8:11], s24 offen offset:256
    buffer_load_dwordx2 {vr(Q2,2)}, v{lk2}, s[8:11], s24 offen offset:1024
    v_add_u32 v{lk2}, 1024, v{lk2}
    v_mul_u32_u24 v{t4}, 336, v{vhh}
    v_lshl_add_u32 v{lv}, v{vq}, 4, v{t4}
    v_add_u32 v{lv}, {VOFF}, v{lv}
    v_mov_b32 v{t0}, {FLAG}
    v_mov_b32 v{t1}, 0
    ds_write_b32 v{t0}, v{t1}
    ; ones rows: thread t<96: buffer = t/32, piece = t%32
    v_lshrrev_b32 v{t0}, 5, v0
    v_mul_u32_u24 v{t0}, {CH}, v{t0}
    v_and_b32 v{t1}, 31, v0
    v_mul_u32_u24 v{t1}, 336, v{t1}
    v_add_u32 v{t0}, v{t0}, v{t1}
    v_add_u32 v{t0}, {VOFF+320}, v{t0}
    v_mov_b32 v{SS[0]}, 0x3f803f80
    v_mov_b32 v{SS[0]+1}, 0x3f803f80
    v_mov_b32 v{SS[0]+2}, 0x3f803f80
    v_mov_b32 v{SS[0]+3}, 0x3f803f80
    v_cmp_gt_u32 vcc, 96, v0
    s_and_saveexec_b64 s[30:31], vcc
    s_cbranch_execz {name}_no1
    ds_write_b128 v{t0}, {vr(SS[0],4)}
    """)
    a.label(f"{name}_no1")
    a("s_mov_b64 exec, -1")
    for b in range(2):
        a(f"v_mov_b32 v{K2[b]+2}, 0x3f803f80")
        a(f"v_mov_b32 v{K2[b]+3}, 0x00003f80")
    a(f"""
    v_cmp_gt_u32 s[28:29], 32, v2
    v_mov_b32 v{Q2+2}, 0
    v_mov_b32 v{Q2+3}, 0
    """)
    a(f"""
    s_waitcnt vmcnt(0) lgkmcnt(0)
    v_cndmask_b32 v{Q2}, 0, v{Q2}, s[28:29]
    v_cndmask_b32 v{Q2+1}, 0, v{Q2+1}, s[28:29]
    s_barrier
    """)
    def readK(buf, t, nxt):
        ak, ak2 = (nk, nk2) if nxt else (ck, ck2)
        a(f"ds_read_b64 {vr(K1[buf],2)}, v{ak} offset:{t*1280}")
        a(f"ds_read_b64 {vr(K1[buf]+2,2)}, v{ak} offset:{t*1280 + 256}")
        a(f"ds_read_b64 {vr(K2[buf],2)}, v{ak2} offset:{t*1280}")
    def readV(buf, t, nxt):
        av = nv if nxt else cv
        a(f"ds_read_b128 {vr(V1[buf],4)}, v{av} offset:{t*4*336}")
        a(f"ds_read_b128 {vr(V2[buf],4)}, v{av} offset:{(t*4+2)*336}")
    def mf(d, A, B, C):
        a(f"v_mfma_f32_32x32x16_bf16 {vr(d,16)}, {vr(A,4)}, {vr(B,4)}, {C}")
    def smfma(sb, kb):
        mf(SS[sb], K1[kb], Q1, "0"); mf(SS[sb], K2[kb], Q2, vr(SS[sb],16))
    def set_m():
        a(f"""
        v_sub_f32 v{t0}, 0, v{vm}
        v_and_b32 v{t1}, 0xffff0000, v{t0}
        v_sub_f32 v{t0}, v{t0}, v{t1}
        v_and_b32 v{t3}, 0xffff0000, v{t0}
        v_sub_f32 v{t0}, v{t0}, v{t3}
        v_lshrrev_b32 v{t1}, 16, v{t1}
        v_or_b32 v{t1}, v{t1}, v{t3}
        v_lshrrev_b32 v{t0}, 16, v{t0}
        v_cndmask_b32 v{Q2+2}, 0, v{t1}, s[28:29]
        v_cndmask_b32 v{Q2+3}, 0, v{t0}, s[28:29]
        s_nop 1
        """)
    def max16(sb, first):
        s = SS[sb]
        if first: a(f"v_max_f32 v{vm}, v{s}, v{s+1}")
        else: a(f"v_max3_f32 v{vm}, v{s}, v{s+1}, v{vm}")
        for r in range(2, 16, 2):
            a(f"v_max3_f32 v{vm}, v{s+r}, v{s+r+1}, v{vm}")
    def xhalf_max():
        a(f"""
        v_mov_b32 v{t0}, v{vm}
        s_nop 1
        v_permlane32_swap_b32 v{t0}, v{vm}
        s_nop 1
        v_max_f32 v{vm}, v{vm}, v{t0}
        """)
    def set_addrs(cur, nxt):
        a(f"""
        v_add_u32 v{ck}, s{cur}, v{lk}
        v_add_u32 v{ck2}, s{cur}, v{lk2}
        v_add_u32 v{cv}, s{cur}, v{lv}
        v_add_u32 v{nk}, s{nxt}, v{lk}
        v_add_u32 v{nk2}, s{nxt}, v{lk2}
        v_add_u32 v{nv}, s{nxt}, v{lv}
        """)
    a("; STAMP 0")
    a(f"s_mov_b32 s33, 0\ns_mov_b32 s34, {CH}")
    set_addrs(33, 34)
    readK(0, 0, False)
    a("s_waitcnt lgkmcnt(0)")
    smfma(0, 0)
    a("s_nop 15\ns_nop 3")
    max16(0, True)
    xhalf_max()
    set_m()
    a("s_mov_b32 s23, 0")
    a.label(f"{name}_main")
    a("; STAMP 1")
    for r in range(16):
        a(f"v_mov_b32 v{OO+r}, 0")
    for r in range(4):
        a(f"v_mov_b32 v{PP[1]+r}, 0\nv_mov_b32 v{V2[1]+r}, 0")
    a(f"""
    s_mov_b32 s22, 0
    s_mov_b32 s33, 0
    s_mov_b32 s34, {CH}
    s_mov_b32 s20, {2*CH}
    """)
    set_addrs(33, 34)
    readK(0, 0, False)
    a("s_waitcnt lgkmcnt(0)")
    smfma(0, 0)
    readK(1, 1, False)
    readV(0, 0, False)
    a("s_nop 7\ns_nop 3")
    a.label(f"{name}_loop")
    for t in range(8):
        sb = t & 1; s = SS[sb]; n = SS[sb ^ 1]
        def E(lo):
            for r in range(lo, lo+4): a(f"v_exp_f32 v{s+r}, v{s+r}")
        def C(lo):
            for r in range(lo, lo+4, 2): a(f"v_cvt_pk_bf16_f32 v{PP[r//8]+(r%8)//2}, v{s+r}, v{s+r+1}")
        if t == 6:
            a("s_waitcnt vmcnt(0)")
            a("s_barrier")
            lb = a.newlabel(name + "_nb"); la = a.newlabel(name + "_na")
            a(f"""
            s_cmp_lg_u32 s23, 0
            s_cbranch_scc1 {la}
            s_cmp_ge_u32 s53, 1232
            s_cbranch_scc1 {la}
            s_cmp_lg_u32 s22, 2
            s_cbranch_scc1 {lb}
            """)
            rp_B()
            a(f"s_branch {la}")
            a.label(lb)
            a(f"s_cmp_lg_u32 s22, 1\ns_cbranch_scc1 {la}")
            rp_A(53)
            a.label(la)
            a(f"s_cmp_ge_u32 s22, {NCH-2}\ns_cbranch_scc1 {name}_nodma")
            a("s_add_u32 s30, s22, 2")
            set_goff("s30")
            issue_chunk(20, 21)
            a.label(f"{name}_nodma")
        a("s_waitcnt lgkmcnt(2)")
        mf(n, K1[sb^1], Q1, "0")
        E(0)
        mf(OO, V2[sb^1], PP[1], vr(OO,16))
        E(4); C(0); C(4)
        mf(n, K2[sb^1], Q2, vr(n,16))
        readK(sb, (t + 2) % 8, t + 2 >= 8)
        E(8)
        a("s_waitcnt lgkmcnt(3)")
        mf(OO, V1[sb], PP[0], vr(OO,16))
        readV(sb ^ 1, (t + 1) % 8, t + 1 >= 8)
        E(12); C(8); C(12)
    a(f"""
    s_add_u32 s22, s22, 1
    s_mov_b32 s30, s33
    s_mov_b32 s33, s34
    s_mov_b32 s34, s20
    s_mov_b32 s20, s30
    """)
    set_addrs(33, 34)
    a(f"s_cmp_lt_u32 s22, {NCH}\ns_cbranch_scc1 {name}_loop")
    mf(OO, V2[1], PP[1], vr(OO,16))
    a("s_waitcnt lgkmcnt(0)\ns_nop 15")
    a("; STAMP 2")
    vl = V.get(); vz = V.get()
    a(f"""
    v_mov_b32 v{t0}, v{OO+8}
    v_mov_b32 v{vl}, v{OO+8}
    s_nop 1
    v_permlane32_swap_b32 v{t0}, v{vl}
    v_mov_b32 v{vz}, 0
    """)
    for r in range(12):
        a(f"v_fma_f32 v{vz}, v{OO+r}, 0, v{vz}")
    a(f"""
    s_cmp_lg_u32 s23, 0
    s_cbranch_scc1 {name}_fin
    s_mov_b32 s30, {f32bits(2.0**60)}
    v_add_f32 v{t1}, v{vz}, v{vl}
    v_cmp_nlt_f32 vcc, v{t1}, s30
    s_cmp_eq_u64 vcc, 0
    s_cbranch_scc1 {name}_noflag
    v_mov_b32 v{t0}, {FLAG}
    v_mov_b32 v{t1}, 1
    ds_write_b32 v{t0}, v{t1}
    s_waitcnt lgkmcnt(0)
    """)
    a.label(f"{name}_noflag")
    a(f"""
    s_barrier
    v_mov_b32 v{t0}, {FLAG}
    ds_read_b32 v{t1}, v{t0}
    s_waitcnt lgkmcnt(0)
    v_readfirstlane_b32 s30, v{t1}
    s_nop 3
    s_cmp_eq_u32 s30, 0
    s_cbranch_scc1 {name}_fin
    v_mov_b32 v{Q2+2}, 0
    v_mov_b32 v{Q2+3}, 0
    v_mov_b32 v{vm}, 0xff7fffff
    s_mov_b32 s22, 0
    s_mov_b32 s21, 0
    s_mov_b32 s20, 0
    s_mov_b32 s33, 0
    """)
    set_addrs(33, 33)
    a.label(f"{name}_maxloop")
    a("s_barrier")
    issue_chunk(20, 21)
    a("s_waitcnt vmcnt(0)")
    a("s_barrier")
    for t in range(8):
        readK(0, t, False)
        a("s_waitcnt lgkmcnt(0)")
        smfma(0, 0)
        a("s_nop 15\ns_nop 3")
        max16(0, False)
    a(f"""
    s_add_u32 s22, s22, 1
    s_add_u32 s21, s21, {CSTR}
    s_cmp_lt_u32 s22, {NCH}
    s_cbranch_scc1 {name}_maxloop
    """)
    xhalf_max()
    set_m()
    a("s_mov_b32 s23, 1")
    a("s_barrier")
    start_stream()
    a("s_waitcnt vmcnt(0)")
    a("s_barrier")
    a(f"s_branch {name}_main")
    a.label(f"{name}_fin")
    a("; STAMP 3")
    pk = V.get(2, 2); vo = V.get()
    a(f"""
    v_rcp_f32 v{vl}, v{vl}
    s_lshl_b32 s30, s17, 2
    s_lshr_b32 s31, s18, 1
    s_add_u32 s30, s30, s31
    s_mul_i32 s30, s30, 81920
    s_and_b32 s31, s18, 1
    s_lshl_b32 s31, s31, 9
    s_add_u32 s30, s30, s31
    v_lshlrev_b32 v{vo}, 4, v{vq}
    v_add_u32 v{vo}, s30, v{vo}
    s_mul_i32 s31, s16, 5
    """)
    for grp in range(3):
        a(f"""
        v_add_u32 v{t0}, s31, v{vhh}
        v_add_u32 v{t0}, {2*grp}, v{t0}
        v_lshrrev_b32 v{t1}, 1, v{t0}
        v_lshlrev_b32 v{t1}, 10, v{t1}
        v_and_b32 v{t0}, 1, v{t0}
        v_lshl_add_u32 v{t1}, v{t0}, 3, v{t1}
        v_add_u32 v{t1}, v{t1}, v{vo}
        v_mul_f32 v{t0}, v{OO+4*grp}, v{vl}
        v_mul_f32 v{t2}, v{OO+4*grp+1}, v{vl}
        v_mul_f32 v{t3}, v{OO+4*grp+2}, v{vl}
        v_mul_f32 v{t4}, v{OO+4*grp+3}, v{vl}
        v_cvt_pk_bf16_f32 v{pk}, v{t0}, v{t2}
        v_cvt_pk_bf16_f32 v{pk+1}, v{t3}, v{t4}
        """)
        if grp == 2:
            a("s_mov_b64 exec, s[28:29]")
        a(f"buffer_store_dwordx2 {vr(pk,2)}, v{t1}, s[12:15], 0 offen")
        a("s_nop 1")
    a.label(f"{name}_end")
    a("s_endpgm")
    return a.text(), V.hi, RPK + 8*8192
```

```python
from common import *
import os

def k_gemm(name, kind):
    a = Asm()
    if kind == 'wo':
        BM, NT, NREG, K, D, G, wsec = 64, 5, 1, 640, 8, 2, WP_WO
        xoff, xbytes = O_OFF, REG
    elif kind == 'down':
        BM, NT, NREG, K, D, G, wsec = 64, 5, 1, 1728, 8, 2, WP_WD
        xoff, xbytes = ACT_OFF, ACT_BYTES
    else:
        BM, NT, NREG, K, D, G, wsec = 128, 7, 2, 640, 7, 1, WP_GU
        xoff, xbytes = H_OFF, REG
    NC = NT*16
    XTBS = (K//8)*1024
    HTBS = 81920; ATBS = 221184
    MT = BM // 64; NTT = NT * NREG
    XB = G * 4 * BM * 16; WB = G * NTT * 1024
    STG = XB + WB
    NST = K // (32*G)
    NXT = XB // 1024
    NXI = NXT // 4
    NWT = G * NTT
    WIN = 4 if kind == 'gu' else 5
    entry(a, name)
    sh = 2 if kind == 'gu' else 1
    a(f"""
    s_and_b32 s35, s2, 7                 ; xcd
    s_lshr_b32 s31, s2, 3                ; idx
    s_and_b32 s32, s31, 7
    s_lshr_b32 s33, s31, 3
    s_lshr_b32 s34, s35, {sh}
    s_lshl_b32 s34, s34, 3
    s_add_u32 s16, s34, s32              ; rb
    s_and_b32 s34, s35, {(1<<sh)-1}
    s_lshl_b32 s34, s34, 2
    s_add_u32 s17, s34, s33              ; cb
    s_mul_i32 s28, s17, {NC*2}
    s_cmp_ge_u32 s18, 4
    s_cbranch_scc1 {name}_loader
    """)
    V = VAlloc(3)
    t0 = V.get(); t1 = V.get(); t2 = V.get(); t3 = V.get()
    vXl = V.get(); vWl = V.get(); vXa = V.get(); vWa = V.get()
    a(f"""
    v_and_b32 v{t0}, 15, v2              ; tok
    v_lshrrev_b32 v{t1}, 4, v2           ; g
    v_mul_u32_u24 v{vXl}, {BM*16}, v{t1}
    v_lshl_add_u32 v{vXl}, v{t0}, 4, v{vXl}
    s_mul_i32 s30, s18, {16*MT*16}
    v_add_u32 v{vXl}, s30, v{vXl}
    v_lshlrev_b32 v{vWl}, 4, v2
    v_add_u32 v{vWl}, {XB}, v{vWl}
    """)
    XF = [[V.get(4, 4) for mt in range(MT)] for b in range(2)]
    WF = [V.get(4, 4) for _ in range(WIN)]
    ACC = [[V.get(4, 4) for mt in range(MT)] for nt in range(NTT)]
    for nt in range(NTT):
        for mt in range(MT):
            for r in range(4):
                a(f"v_mov_b32 v{ACC[nt][mt]+r}, 0")
    vq = V.get(); vtok = V.get(); vcm = V.get()
    a(f"""
    v_lshrrev_b32 v{vq}, 4, v2           ; q
    v_and_b32 v{vtok}, 15, v2
    s_mul_i32 s30, s16, {BM}
    s_mul_i32 s31, s18, {16*MT}
    s_add_u32 s30, s30, s31
    v_add_u32 v{vtok}, s30, v{vtok}
    s_lshr_b32 s29, s30, 6
    v_and_b32 v{t0}, 63, v{vtok}
    v_lshlrev_b32 v{t0}, 4, v{t0}
    v_lshrrev_b32 v{t1}, 1, v{vq}
    v_lshl_add_u32 v{t0}, v{t1}, 10, v{t0}
    v_and_b32 v{t1}, 1, v{vq}
    v_lshl_add_u32 v{vcm}, v{t1}, 3, v{t0}
    s_waitcnt lgkmcnt(0)
    """)
    if kind in ('wo', 'down'):
        RES = [V.get(2, 2) for _ in range(NT)]
    else:
        CS = [V.get(4, 4) for _ in range(NTT)]
    if kind in ('gu', 'down'):
        STT = [V.get(4, 4) for _ in range(MT)]
    def epi_loads():
        if kind == 'wo':
            srd(a, 12, P['ws'], REG, H_OFF); srd(a, 36, P['x'], REG); srd(a, 40, P['ws'], ST_BYTES, ST_OFF)
            a(f"v_mul_u32_u24 v{t0}, 1280, v{vtok}\nv_lshl_add_u32 v{t0}, v{vq}, 3, v{t0}")
            for nt in range(NT):
                a(f"buffer_load_dwordx2 {vr(RES[nt],2)}, v{t0}, s[36:39], s28 offen offset:{nt*32}")
        elif kind == 'down':
            srd(a, 12, P['out'], REG); srd(a, 36, P['ws'], REG, H_OFF); srd(a, 40, P['ws'], ST_BYTES, ST_OFF)
            a(f"""
            s_mul_i32 s30, s17, {10*1024}
            s_mul_i32 s31, s29, {HTBS}
            s_add_u32 s30, s30, s31
            """)
            for nt in range(NT):
                a(f"buffer_load_dwordx2 {vr(RES[nt],2)}, v{vcm}, s[36:39], s30 offen offset:{nt*2048 if nt < 2 else 0}") if nt < 2 else (a(f"s_add_u32 s31, s30, {nt*2048}"), a(f"buffer_load_dwordx2 {vr(RES[nt],2)}, v{vcm}, s[36:39], s31 offen"))
        else:
            srd(a, 12, P['ws'], ACT_BYTES, ACT_OFF); srd(a, 36, P['ws'], CS_BYTES, CS_OFF); srd(a, 40, P['ws'], ST_BYTES, ST_OFF)
            a(f"v_lshlrev_b32 v{t0}, 4, v{vq}\ns_mul_i32 s30, s17, {112*4}")
            for rg in range(2):
                for nt in range(NT):
                    a(f"s_add_u32 s31, s30, {rg*FF*4 + nt*64}")
                    a(f"buffer_load_dwordx4 {vr(CS[rg*NT+nt],4)}, v{t0}, s[36:39], s31 offen")
        if kind in ('gu', 'down'):
            a(f"v_lshlrev_b32 v{t1}, 6, v{vtok}\nv_lshl_add_u32 v{t1}, v{vq}, 4, v{t1}")
            for mt in range(MT):
                a(f"buffer_load_dwordx4 {vr(STT[mt],4)}, v{t1}, s[40:43], 0 offen offset:{mt*16*64}")
    q = LdsQ(a)
    JOBS = 2 * NTT
    assert JOBS % WIN == 0
    def xread(ks):
        off = (ks*4*BM*16) if G == 2 else 0
        for mt in range(MT):
            q.issue(('x', ks & 1), f"ds_read_b128 {vr(XF[ks&1][mt],4)}, v{vXa} offset:{off + mt*256}")
    def wread(u):
        off = u*1024 if G == 2 else (u % NTT)*1024
        q.issue(('w', u), f"ds_read_b128 {vr(WF[u % WIN],4)}, v{vWa} offset:{off}")
    def set_read_addr():
        a(f"v_add_u32 v{vXa}, s45, v{vXl}\nv_add_u32 v{vWa}, s45, v{vWl}")
    def job_mfma(u):
        ks, nt = divmod(u, NTT)
        slot = u % WIN
        q.need({('w', u), ('x', ks & 1)})
        for mt in range(MT):
            if os.environ.get("NOMFMA"): continue
            a(f"v_mfma_f32_16x16x32_bf16 {vr(ACC[nt][mt],4)}, {vr(WF[slot],4)}, {vr(XF[ks&1][mt],4)}, {vr(ACC[nt][mt],4)}")
    def enter(check_exit):
        if check_exit:
            a(f"s_add_u32 s49, s49, 1")
            a(f"s_cmp_ge_u32 s49, {K//64}\ns_cbranch_scc1 {name}_tail")
        a(f"""
        s_add_u32 s45, s45, {STG}
        s_cmp_ge_u32 s45, {D*STG}
        s_cselect_b32 s30, {D*STG}, 0
        s_sub_u32 s45, s45, s30
        s_barrier
        """)
        set_read_addr()
    a("s_mov_b32 s49, 0\ns_mov_b32 s45, 0")
    a("; STAMP 0")
    a("s_barrier")
    a("; STAMP 1")
    set_read_addr()
    xread(0)
    for u in range(WIN): wread(u)
    epi_loads()
    a.label(f"{name}_loop")
    qstate = list(q.q)
    for u in range(JOBS):
        if u == JOBS - WIN:
            enter(True)
            xread(0)
        if u == NTT - WIN:
            if G == 1: enter(False)
            xread(1)
        job_mfma(u)
        wread((u + WIN) % JOBS)
    assert q.q == qstate, (q.q, qstate)
    a(f"s_branch {name}_loop")
    a.label(f"{name}_tail")
    a("; STAMP 2")
    a("s_waitcnt lgkmcnt(0)")
    q.drain()
    for u in range(JOBS - WIN, JOBS):
        job_mfma(u)
    a("s_waitcnt vmcnt(0)")
    def red_q(reg):
        a(f"""
        v_mov_b32 v{t0}, v{reg}
        s_nop 1
        v_permlane32_swap_b32 v{t0}, v{reg}
        s_nop 1
        v_add_f32 v{reg}, v{reg}, v{t0}
        v_mov_b32 v{t0}, v{reg}
        s_nop 1
        v_permlane16_swap_b32 v{t0}, v{reg}
        s_nop 1
        v_add_f32 v{reg}, v{reg}, v{t0}
        """)
    if kind in ('gu', 'down'):
        mu = [V.get() for _ in range(MT)]; rs_ = [V.get() for _ in range(MT)]
        for mt in range(MT):
            s_ = STT[mt]
            a(f"v_add_f32 v{s_}, v{s_}, v{s_+2}\nv_add_f32 v{s_+1}, v{s_+1}, v{s_+3}")
            red_q(s_); red_q(s_+1)
            a(f"""
            s_mov_b32 s30, {f32bits(1.0/DM)}
            v_mul_f32 v{mu[mt]}, s30, v{s_}
            v_mul_f32 v{s_+1}, s30, v{s_+1}
            v_fma_f32 v{s_+1}, -v{mu[mt]}, v{mu[mt]}, v{s_+1}
            v_max_f32 v{s_+1}, 0, v{s_+1}
            v_add_f32 v{s_+1}, {f32bits(1e-5)}, v{s_+1}
            v_rsq_f32 v{rs_[mt]}, v{s_+1}
            v_sub_f32 v{mu[mt]}, 0, v{mu[mt]}
            """)
    a("; STAMP 3")
    if kind in ('wo', 'down'):
        pk = V.get(2, 2)
        if kind == 'wo':
            ssum = V.get(); ssq = V.get()
            a(f"""
            v_mov_b32 v{t3}, v{vcm}
            s_mul_i32 s30, s17, {10*1024}
            s_mul_i32 s31, s29, {HTBS}
            s_add_u32 s30, s30, s31
            v_mov_b32 v{ssum}, 0
            v_mov_b32 v{ssq}, 0
            """)
        else:
            a(f"""
            v_mul_u32_u24 v{t3}, 1280, v{vtok}
            v_lshl_add_u32 v{t3}, v{vq}, 3, v{t3}
            v_mul_f32 v{rs_[0]}, {f32bits(-math.log(2.0))}, v{rs_[0]}
            """)
        for nt in range(NT):
            acc = ACC[nt][0]; r = RES[nt]
            a(f"v_lshlrev_b32 v{t1}, 16, v{r}\nv_and_b32 v{t2}, 0xffff0000, v{r}")
            if kind == 'wo':
                a(f"v_add_f32 v{acc}, v{acc}, v{t1}\nv_add_f32 v{acc+1}, v{acc+1}, v{t2}")
            else:
                a(f"v_fma_f32 v{acc}, v{acc}, v{rs_[0]}, v{t1}\nv_fma_f32 v{acc+1}, v{acc+1}, v{rs_[0]}, v{t2}")
            a(f"v_lshlrev_b32 v{t1}, 16, v{r+1}\nv_and_b32 v{t2}, 0xffff0000, v{r+1}")
            if kind == 'wo':
                a(f"v_add_f32 v{acc+2}, v{acc+2}, v{t1}\nv_add_f32 v{acc+3}, v{acc+3}, v{t2}")
            else:
                a(f"v_fma_f32 v{acc+2}, v{acc+2}, v{rs_[0]}, v{t1}\nv_fma_f32 v{acc+3}, v{acc+3}, v{rs_[0]}, v{t2}")
            a(f"v_cvt_pk_bf16_f32 v{pk}, v{acc}, v{acc+1}\nv_cvt_pk_bf16_f32 v{pk+1}, v{acc+2}, v{acc+3}")
            if kind == 'wo':
                a(f"s_add_u32 s31, s30, {nt*2048}")
                a(f"buffer_store_dwordx2 {vr(pk,2)}, v{t3}, s[12:15], s31 offen")
                for h_ in range(2):
                    a(f"""
                    v_lshlrev_b32 v{t1}, 16, v{pk+h_}
                    v_and_b32 v{t2}, 0xffff0000, v{pk+h_}
                    v_add_f32 v{ssum}, v{ssum}, v{t1}
                    v_fmac_f32 v{ssq}, v{t1}, v{t1}
                    v_add_f32 v{ssum}, v{ssum}, v{t2}
                    v_fmac_f32 v{ssq}, v{t2}, v{t2}
                    """)
            else:
                a(f"buffer_store_dwordx2 {vr(pk,2)}, v{t3}, s[12:15], s28 offen offset:{nt*32}")
        if kind == 'wo':
            red_q(ssum); red_q(ssq)
            st2 = V.get(2, 2)
            a(f"""
            v_mov_b32 v{st2}, v{ssum}
            v_mov_b32 v{st2+1}, v{ssq}
            v_lshlrev_b32 v{t0}, 6, v{vtok}
            s_lshl_b32 s30, s17, 3
            s_mov_b64 exec, 0xffff
            buffer_store_dwordx2 {vr(st2,2)}, v{t0}, s[40:43], s30 offen
            """)
    else:
        ag = [V.get() for _ in range(MT)]
        for mt in range(MT):
            a(f"v_mul_f32 v{ag[mt]}, {f32bits(-math.log2(math.e))}, v{rs_[mt]}")
        pk = V.get(2, 2); vo = V.get(); w = [V.get() for _ in range(4)]; e = [V.get() for _ in range(4)]
        a(f"""
        v_mov_b32 v{vo}, v{vcm}
        s_mul_i32 s30, s17, {14*1024}
        s_mul_i32 s31, s29, {ATBS}
        s_add_u32 s30, s30, s31
        """)
        for nt in range(NT):
            if nt == 3:
                a(f"s_cmp_eq_u32 s17, 15\ns_cbranch_scc1 {name}_end")
            for mt in range(MT):
                g = ACC[nt][mt]; u_ = ACC[NT+nt][mt]; cg = CS[nt]; cu = CS[NT+nt]
                for r in range(4): a(f"v_fmac_f32 v{g+r}, v{cg+r}, v{mu[mt]}")
                for r in range(4): a(f"v_mul_f32 v{w[r]}, v{g+r}, v{ag[mt]}")
                for r in range(4): a(f"v_exp_f32 v{e[r]}, v{w[r]}")
                for r in range(4): a(f"v_fmac_f32 v{u_+r}, v{cu+r}, v{mu[mt]}")
                for r in range(4): a(f"v_add_f32 v{e[r]}, 1.0, v{e[r]}")
                for r in range(4): a(f"v_rcp_f32 v{e[r]}, v{e[r]}")
                for r in range(4): a(f"v_mul_f32 v{w[r]}, v{w[r]}, v{u_+r}")
                for r in range(4): a(f"v_mul_f32 v{w[r]}, v{w[r]}, v{e[r]}")
                a(f"v_cvt_pk_bf16_f32 v{pk}, v{w[0]}, v{w[1]}")
                a(f"v_cvt_pk_bf16_f32 v{pk+1}, v{w[2]}, v{w[3]}")
                a(f"s_add_u32 s31, s30, {nt*2048}")
                a(f"buffer_store_dwordx2 {vr(pk,2)}, v{vo}, s[12:15], s31 offen offset:{mt*256}")
                a("s_nop 0")
    a(f"s_branch {name}_end")
    a.label(f"{name}_loader")
    L = VAlloc(3)
    vd = L.get()
    ra, rb_ = (3, 7) if NST == 27 else ((1, 3) if NST == 10 else (2, 5))
    if os.environ.get('NOROT'): ra, rb_ = 0, 0
    a(f"""
    s_sub_u32 s18, s18, 4
    v_lshlrev_b32 v{vd}, 4, v2
    s_mul_i32 s50, s18, {NXI // (BM//64) * 1024}
    s_mul_i32 s30, s16, {(BM//64)*XTBS}
    s_add_u32 s50, s50, s30
    s_mul_i32 s25, s18, {NXI*1024}
    s_lshl_b32 s27, s18, 10
    s_add_u32 s27, s27, {XB}
    s_mul_i32 s51, s17, {(K//32)*NTT*1024}
    s_lshl_b32 s30, s18, 10
    s_add_u32 s51, s51, s30
    s_add_u32 s51, s51, {wsec}
    s_mul_i32 s30, s32, {ra}
    s_mul_i32 s31, s33, {rb_}
    s_add_u32 s44, s30, s31
    s_cmp_ge_u32 s44, {NST}
    s_cselect_b32 s30, {NST}, 0
    s_sub_u32 s44, s44, s30
    s_cmp_ge_u32 s44, {NST}
    s_cselect_b32 s30, {NST}, 0
    s_sub_u32 s44, s44, s30
    s_mov_b32 s46, 0
    s_waitcnt lgkmcnt(0)
    """)
    srd(a, 4, P['ws'], xbytes, xoff)
    srd(a, 8, P['ws'], WPX, WP_OFF)
    NWI = (NWT + 3)//4
    uneven = NWT % 4 != 0
    per_hi = NXI + NWI
    per_lo = NXI + NWI - (1 if uneven else 0)
    def issue_stage():
        a(f"s_mul_i32 s47, s44, {G*4*1024}\ns_add_u32 s47, s47, s50")
        a(f"s_mul_i32 s48, s44, {WB}\ns_add_u32 s48, s48, s51")
        a(f"s_add_u32 s52, s27, s46\ns_add_u32 s53, s25, s46")
        for i in range(NWI):
            lab = None
            if uneven and i == NWI - 1:
                lab = a.newlabel(name + "_sk")
                a(f"s_cmp_ge_u32 s18, {NWT % 4}\ns_cbranch_scc1 {lab}")
            a(f"s_add_u32 m0, s52, {i*4096}")
            a(f"s_add_u32 s31, s48, {i*4096}")
            if not os.environ.get("NODMAW"): a(f"buffer_load_dwordx4 v{vd}, s[8:11], s31 offen lds")
            if lab: a.label(lab)
        for i in range(NXI):
            c, tg = divmod(i, BM//64)
            a(f"s_add_u32 m0, s53, {i*1024}")
            a(f"s_add_u32 s31, s47, {c*1024 + tg*XTBS}")
            if not os.environ.get("NODMAX"): a(f"buffer_load_dwordx4 v{vd}, s[4:7], s31 offen lds")
        a(f"""
        s_add_u32 s44, s44, 1
        s_cmp_ge_u32 s44, {NST}
        s_cselect_b32 s30, {NST}, 0
        s_sub_u32 s44, s44, s30
        s_add_u32 s46, s46, {STG}
        s_cmp_ge_u32 s46, {D*STG}
        s_cselect_b32 s30, {D*STG}, 0
        s_sub_u32 s46, s46, s30
        """)
    def vmw(n_st):
        if per_hi != per_lo:
            l1 = a.newlabel(name + "_w"); le = a.newlabel(name + "_w")
            a(f"s_cmp_ge_u32 s18, {NWT % 4}\ns_cbranch_scc1 {l1}")
            a(f"s_waitcnt vmcnt({per_hi*n_st})\ns_branch {le}")
            a.label(l1)
            a(f"s_waitcnt vmcnt({per_lo*n_st})")
            a.label(le)
        else:
            a(f"s_waitcnt vmcnt({per_hi*n_st})")
    a("; STAMP 4")
    issued = min(2, D)
    plan = []
    for j in range(NST):
        ow = issued - 1 - j
        lim = min(NST, max(D, j - 1 + D))
        n_new = max(0, min(2, lim - issued))
        plan.append((ow, n_new)); issued += n_new
    assert issued == NST
    runs = []
    for p in plan:
        if runs and runs[-1][0] == p: runs[-1][1] += 1
        else: runs.append([p, 1])
    for _ in range(min(2, D)): issue_stage()
    for (ow, nn), cnt in runs:
        if cnt > 1:
            lab = a.newlabel(name + "_ll")
            a(f"s_mov_b32 s49, 0")
            a.label(lab)
            vmw(ow); a("s_barrier")
            for _ in range(nn): issue_stage()
            a(f"s_add_u32 s49, s49, 1\ns_cmp_lt_u32 s49, {cnt}\ns_cbranch_scc1 {lab}")
        else:
            vmw(ow); a("s_barrier")
            for _ in range(nn): issue_stage()
    if kind in ('wo', 'gu') and not os.environ.get("NOPF"):
        nlines = 8960 if kind == 'wo' else 8640
        base = WP_GU if kind == 'wo' else WP_WD
        msk = 3 if kind == 'wo' else 1
        pf = L.get(); pfd = L.get()
        PFTXT = f"""
        s_lshr_b32 s30, s2, 3
        s_lshl_b32 s30, s30, 2
        s_add_u32 s30, s30, s18
        s_mul_i32 s30, s30, {70*128}
        s_and_b32 s31, s35, {msk}
        s_mul_i32 s31, s31, {nlines*128}
        s_add_u32 s30, s30, s31
        s_add_u32 s30, s30, {base}
        v_lshlrev_b32 v{pf}, 7, v2
        buffer_load_dword v{pfd}, v{pf}, s[8:11], s30 offen
        s_add_u32 s30, s30, {64*128}
        s_mov_b64 exec, 0x3f
        buffer_load_dword v{pfd}, v{pf}, s[8:11], s30 offen
        s_mov_b64 exec, -1
        """
    if kind in ('wo', 'gu') and not os.environ.get("NOPF"):
        a(PFTXT)
    a.label(f"{name}_end")
    a("s_endpgm")
    return a.text(), max(V.hi, L.hi), D*STG
```

```python
from common import *

import os
def k_qkv(name="qkv_kernel"):
    a = Asm()
    D = 4; NST = 10; STG = 32768
    STATS = D*STG
    QS = (DH ** -0.5) * math.log2(math.e)
    entry(a, name)
    a(f"""
    s_cmp_ge_u32 s2, 240
    s_cbranch_scc1 {name}_colsum
    s_and_b32 s30, s2, 7          ; xcd
    s_lshr_b32 s31, s2, 3         ; idx 0..29
    s_and_b32 s32, s30, 1
    s_mul_i32 s32, s32, 30
    s_add_u32 s32, s32, s31       ; t 0..59
    s_lshr_b32 s17, s32, 2        ; cb
    s_and_b32 s33, s32, 3
    s_lshr_b32 s30, s30, 1
    s_lshl_b32 s30, s30, 2
    s_add_u32 s16, s30, s33       ; rb
    s_cmp_ge_u32 s18, 4
    s_cbranch_scc1 {name}_loader
    s_lshr_b32 s19, s18, 1        ; wm
    s_and_b32 s20, s18, 1         ; wn
    """)
    V = VAlloc(3)
    t0 = V.get(); t1 = V.get(); t2 = V.get(); t3 = V.get()
    lX = [[V.get() for sm in range(2)] for s in range(4)]
    lW = [V.get() for sn in range(2)]
    aX = [[V.get() for sm in range(2)] for s in range(4)]
    aW = [V.get() for sn in range(2)]
    a(f"""
    v_and_b32 v{t0}, 31, v2               ; r
    v_lshrrev_b32 v{t1}, 5, v2            ; hh
    v_bfe_u32 v{t2}, v{t0}, 1, 3          ; f
    v_xor_b32 v{t2}, v{t2}, v{t1}
    v_lshlrev_b32 v{t2}, 4, v{t2}
    v_lshl_add_u32 v{t2}, v{t0}, 7, v{t2}
    s_lshl_b32 s30, s19, 13
    s_lshl_b32 s31, s20, 12
    s_add_u32 s30, s30, s31
    v_add_u32 v{t2}, s30, v{t2}
    """)
    for s in range(4):
        a(f"v_xor_b32 v{lX[s][0]}, {s*32}, v{t2}")
        a(f"v_xor_b32 v{lX[s][1]}, 0x1000, v{lX[s][0]}")
    a(f"""
    v_lshrrev_b32 v{t0}, 5, v2            ; g>>1
    v_bfe_u32 v{t1}, v2, 2, 2             ; rr
    v_lshl_add_u32 v{t0}, v{t0}, 3, v{t1}
    v_lshlrev_b32 v{t0}, 8, v{t0}
    v_bfe_u32 v{t2}, v2, 4, 1
    v_lshlrev_b32 v{t2}, 1, v{t2}
    v_bfe_u32 v{t3}, v2, 1, 1
    v_add_u32 v{t2}, v{t2}, v{t3}
    s_lshl_b32 s30, s20, 3
    s_lshl_b32 s31, s19, 2
    s_add_u32 s30, s30, s31
    v_add_u32 v{t2}, s30, v{t2}
    v_lshlrev_b32 v{t1}, 2, v{t1}
    v_xor_b32 v{t2}, v{t2}, v{t1}
    v_lshl_add_u32 v{t0}, v{t2}, 4, v{t0}
    v_and_b32 v{t3}, 1, v2
    v_lshl_add_u32 v{lW[0]}, v{t3}, 3, v{t0}
    v_add_u32 v{lW[0]}, 16384, v{lW[0]}
    v_xor_b32 v{lW[1]}, 64, v{lW[0]}
    """)
    XF = [[V.get(4, 4) for sm in range(2)] for b in range(2)]
    WF = [[V.get(4, 4) for sn in range(2)] for b in range(2)]
    ACC = [[V.get(16, 4) for j in range(2)] for i in range(2)]
    CSA = V.get(4, 4); ONE = V.get(2, 2)
    for i in range(2):
        for j in range(2):
            for r in range(16):
                a(f"v_mov_b32 v{ACC[i][j]+r}, 0")
    for r in range(4):
        a(f"v_mov_b32 v{CSA+r}, 0")
        for j in range(2):
            a(f"v_mov_b32 v{XF[1][j]+r}, 0\nv_mov_b32 v{WF[1][j]+r}, 0")
    a(f"v_mov_b32 v{ONE}, 0x3f803f80\nv_mov_b32 v{ONE+1}, 0x3f803f80")
    def read_frags(s):
        b = s & 1
        for sm in range(2):
            a(f"ds_read_b128 {vr(XF[b][sm],4)}, v{aX[s][sm]}")
        for sn in range(2):
            for jh in range(2):
                a(f"ds_read_b64_tr_b16 {vr(WF[b][sn]+2*jh,2)}, v{aW[sn]} offset:{s*4096 + jh*1024}")
    def mfmas(b, vmode):
        k = 0
        for sn in range(2):
            for sm in range(2):
                if os.environ.get("NOMFMA"): pass
                elif vmode:
                    a(f"v_mfma_f32_32x32x16_bf16 {vr(ACC[sn][sm],16)}, {vr(XF[b][sm],4)}, {vr(WF[b][sn],4)}, {vr(ACC[sn][sm],16)}")
                else:
                    a(f"v_mfma_f32_32x32x16_bf16 {vr(ACC[sn][sm],16)}, {vr(WF[b][sn],4)}, {vr(XF[b][sm],4)}, {vr(ACC[sn][sm],16)}")
                if k in (1, 3) and not os.environ.get("NOCS"):
                    h_ = k >> 1
                    a(f"v_mfma_f32_4x4x4_16b_bf16 {vr(CSA,4)}, {vr(WF[b][0]+2*h_,2)}, {vr(ONE,2)}, {vr(CSA,4)}")
                k += 1
    def mainloop(vmode, lab):
        a("s_mov_b32 s49, 0\ns_mov_b32 s45, 0")
        a("; STAMP 0")
        a.label(lab)
        a("s_waitcnt lgkmcnt(0)")
        a("s_barrier")
        for s in range(4):
            for sm in range(2):
                a(f"v_add_u32 v{aX[s][sm]}, s45, v{lX[s][sm]}")
        for sn in range(2):
            a(f"v_add_u32 v{aW[sn]}, s45, v{lW[sn]}")
        read_frags(0)
        mfmas(1, vmode)
        for s in range(3):
            a("s_waitcnt lgkmcnt(0)")
            read_frags(s + 1)
            mfmas(s & 1, vmode)
        a(f"""
        s_add_u32 s45, s45, {STG}
        s_and_b32 s45, s45, {D*STG-1}
        s_add_u32 s49, s49, 1
        s_cmp_lt_u32 s49, {NST}
        s_cbranch_scc1 {lab}
        s_waitcnt lgkmcnt(0)
        """)
        mfmas(1, vmode)
        a("; STAMP 2")
    def cs_publish():
        a(f"""
        s_nop 7
        v_and_b32 v{t0}, 3, v2
        v_cmp_eq_u32 vcc, 1, v{t0}
        v_cmp_eq_u32 s[30:31], 2, v{t0}
        v_cmp_eq_u32 s[32:33], 3, v{t0}
        s_nop 1
        v_cndmask_b32 v{t1}, v{CSA}, v{CSA+1}, vcc
        v_cndmask_b32 v{t1}, v{t1}, v{CSA+2}, s[30:31]
        v_cndmask_b32 v{t1}, v{t1}, v{CSA+3}, s[32:33]
        v_mov_b32 v{t2}, v{t1}
        s_nop 1
        v_permlane32_swap_b32 v{t2}, v{t1}
        s_nop 1
        v_add_f32 v{t1}, v{t1}, v{t2}
        v_and_b32 v{t0}, 31, v2
        s_lshl_b32 s30, s20, 6
        s_lshl_b32 s31, s19, 5
        s_add_u32 s30, s30, s31
        v_add_lshl_u32 v{t2}, v{t0}, s30, 2
        v_add_u32 v{t2}, {STATS}, v{t2}
        ds_write_b32 v{t2}, v{t1} offset:1024
        s_waitcnt lgkmcnt(0)
        s_barrier
        """)
        a("; STAMP 3")
    a("s_waitcnt lgkmcnt(0)")
    srd(a, 12, P['ws'], 3*REG)
    a(f"s_cmp_ge_u32 s17, 10\ns_cbranch_scc1 {name}_vpath")
    mainloop(False, f"{name}_lq")
    cs_publish()
    mk = V.mark()
    am = [V.get(), V.get()]; bm = [V.get(), V.get()]
    csr = [V.get(4, 4), V.get(4, 4)]; pk = [V.get(2, 2), V.get(2,2)]; vo = V.get(); vca = V.get(); w = [V.get() for _ in range(4)]
    th = V.get()
    a(f"""
    v_and_b32 v{t0}, 31, v2
    s_lshl_b32 s30, s19, 6
    s_lshl_b32 s31, s20, 5
    s_add_u32 s30, s30, s31
    v_add_lshl_u32 v{t1}, v{t0}, s30, 2
    v_add_u32 v{t1}, {STATS}, v{t1}
    v_xor_b32 v{t2}, 128, v{t1}
    ds_read_b32 v{am[0]}, v{t1}
    ds_read_b32 v{bm[0]}, v{t1} offset:512
    ds_read_b32 v{am[1]}, v{t2}
    ds_read_b32 v{bm[1]}, v{t2} offset:512
    v_lshrrev_b32 v{th}, 5, v2        ; hh
    v_lshlrev_b32 v{vca}, 4, v{th}
    s_lshl_b32 s30, s20, 8
    s_add_u32 s30, s30, {STATS}
    v_add_u32 v{vca}, s30, v{vca}
    s_cmp_lt_u32 s17, 5
    s_cselect_b32 s34, {f32bits(QS)}, 1.0
    s_cselect_b32 s35, {QF_OFF}, {KF_OFF}
    s_cselect_b32 s30, 0, 5
    s_sub_u32 s30, s17, s30              ; cbl
    s_lshl_b32 s31, s30, 5
    s_lshl_b32 s33, s20, 4
    s_add_u32 s31, s31, s33
    s_lshl_b32 s31, s31, 8
    s_add_u32 s35, s35, s31
    s_lshl_b32 s31, s16, 2
    s_lshl_b32 s33, s19, 1
    s_add_u32 s31, s31, s33
    s_mul_i32 s31, s31, 40960
    s_add_u32 s35, s35, s31
    v_lshlrev_b32 v{vo}, 8, v{th}
    v_lshl_add_u32 v{vo}, v{t0}, 3, v{vo}
    s_mul_i32 s46, s20, 40960
    s_sub_u32 s47, 40960, s46
    s_add_u32 s46, s46, s35
    s_add_u32 s47, s47, s35
    s_lshl_b32 s48, s19, 11
    s_sub_u32 s49, 2048, s48
    s_lshl_b32 s50, s19, 7
    s_sub_u32 s51, 128, s50
    v_add_u32 v{t1}, s50, v{vca}
    v_add_u32 v{t2}, s51, v{vca}
    ds_read_b128 {vr(csr[0],4)}, v{t1} offset:1024
    s_waitcnt lgkmcnt(1)
    v_mul_f32 v{am[0]}, s34, v{am[0]}
    v_mul_f32 v{bm[0]}, s34, v{bm[0]}
    v_mul_f32 v{am[1]}, s34, v{am[1]}
    v_mul_f32 v{bm[1]}, s34, v{bm[1]}
    """)
    items = [(sn, aa) for sn in range(2) for aa in range(4)]
    for i, (sn, aa) in enumerate(items):
        if i + 1 < len(items):
            sn2, aa2 = items[i+1]
            a(f"ds_read_b128 {vr(csr[(i+1)&1],4)}, v{t1 if sn2 == 0 else t2} offset:{1024 + aa2*32}")
            a("s_waitcnt lgkmcnt(1)")
        else:
            a("s_waitcnt lgkmcnt(0)")
        c = csr[i & 1]
        for sm in range(2):
            acc = ACC[sn][sm] + 4*aa
            for r in range(4): a(f"v_mul_f32 v{w[r]}, v{c+r}, v{bm[sm]}")
            for r in range(4): a(f"v_fmac_f32 v{w[r]}, v{acc+r}, v{am[sm]}")
            a(f"v_cvt_pk_bf16_f32 v{pk[sm]}, v{w[0]}, v{w[1]}")
            a(f"v_cvt_pk_bf16_f32 v{pk[sm]+1}, v{w[2]}, v{w[3]}")
            a(f"s_add_u32 s30, s{46+sm}, s{48+sn}")
            a(f"buffer_store_dwordx2 {vr(pk[sm],2)}, v{vo}, s[12:15], s30 offen offset:{aa*512}")
    a(f"s_branch {name}_end")
    a.label(f"{name}_vpath")
    V.reset(mk)
    mainloop(True, f"{name}_lv")
    cs_publish()
    csn = [V.get(), V.get()]
    rs4 = [V.get(4, 4), V.get(4, 4)]; nb4 = [V.get(4, 4), V.get(4, 4)]; pk4 = V.get(4, 4); vo = V.get(); vra = V.get()
    wv = [V.get() for _ in range(8)]; th = V.get()
    a(f"""
    v_and_b32 v{t0}, 31, v2
    v_lshrrev_b32 v{th}, 5, v2        ; hh
    s_lshl_b32 s30, s20, 6
    s_lshl_b32 s31, s19, 5
    s_add_u32 s30, s30, s31
    v_add_lshl_u32 v{t1}, v{t0}, s30, 2
    v_add_u32 v{t1}, {STATS}, v{t1}
    v_xor_b32 v{t2}, 128, v{t1}
    ds_read_b32 v{csn[0]}, v{t1} offset:1024
    ds_read_b32 v{csn[1]}, v{t2} offset:1024
    v_lshlrev_b32 v{vra}, 4, v{th}
    s_lshl_b32 s30, s19, 8
    s_add_u32 s30, s30, {STATS}
    v_add_u32 v{vra}, s30, v{vra}
    s_lshl_b32 s30, s16, 3
    s_lshl_b32 s31, s19, 2
    s_add_u32 s30, s30, s31
    s_mul_i32 s30, s30, 20480
    s_sub_u32 s31, s17, 10
    s_lshl_b32 s31, s31, 7
    s_lshl_b32 s33, s20, 6
    s_add_u32 s31, s31, s33
    s_lshl_b32 s31, s31, 4
    s_add_u32 s35, s30, s31
    s_add_u32 s35, s35, {VT_OFF}
    v_mul_u32_u24 v{vo}, 10240, v{th}
    v_lshl_add_u32 v{vo}, v{t0}, 4, v{vo}
    s_mul_i32 s46, s20, 40960
    s_sub_u32 s47, 40960, s46
    s_add_u32 s46, s46, s35
    s_add_u32 s47, s47, s35
    s_lshl_b32 s48, s19, 9
    s_sub_u32 s49, 512, s48
    s_lshl_b32 s50, s20, 7
    s_sub_u32 s51, 128, s50
    v_add_u32 v{t1}, s50, v{vra}
    v_add_u32 v{t2}, s51, v{vra}
    s_waitcnt lgkmcnt(0)
    """)
    for sm in range(2):
        ad = t1 if sm == 0 else t2
        for g in range(2):
            for ah in range(2):
                aa = 2*g + ah
                a(f"ds_read_b128 {vr(rs4[ah],4)}, v{ad} offset:{aa*32}")
                a(f"ds_read_b128 {vr(nb4[ah],4)}, v{ad} offset:{512 + aa*32}")
            a("s_waitcnt lgkmcnt(0)")
            for sn in range(2):
                for ah in range(2):
                    acc = ACC[sn][sm] + 4*(2*g + ah)
                    for i in range(4): a(f"v_mul_f32 v{wv[4*ah+i]}, v{nb4[ah]+i}, v{csn[sn]}")
                    for i in range(4): a(f"v_fmac_f32 v{wv[4*ah+i]}, v{acc+i}, v{rs4[ah]+i}")
                for i in range(4):
                    a(f"v_cvt_pk_bf16_f32 v{pk4+i}, v{wv[2*i]}, v{wv[2*i+1]}")
                a(f"s_add_u32 s30, s{46+sm}, s{48+sn}")
                a(f"s_add_u32 s30, s30, {g*20480}")
                a(f"buffer_store_dwordx4 {vr(pk4,4)}, v{vo}, s[12:15], s30 offen")
                a("s_nop 1")
    a(f"s_branch {name}_end")
    a.label(f"{name}_loader")
    L = VAlloc(3)
    t0 = L.get(); t1 = L.get(); t2 = L.get(); t3 = L.get()
    vXd = [L.get(), L.get()]; vWd = L.get()
    a(f"""
    s_sub_u32 s18, s18, 4
    s_mul_i32 s21, s16, {128*1280}
    s_mul_i32 s30, s18, {32*1280}
    s_add_u32 s21, s21, s30
    s_mul_i32 s22, s18, {16*3840}
    s_lshl_b32 s30, s17, 8
    s_add_u32 s22, s22, s30
    s_lshl_b32 s23, s18, 12
    s_add_u32 s24, s23, 16384
    v_lshrrev_b32 v{t0}, 3, v2
    v_and_b32 v{t1}, 7, v2
    v_lshrrev_b32 v{t2}, 1, v{t0}
    v_xor_b32 v{t3}, v{t1}, v{t2}
    v_mul_u32_u24 v{t0}, 1280, v{t0}
    v_lshl_add_u32 v{vXd[0]}, v{t3}, 4, v{t0}
    v_xor_b32 v{t3}, 4, v{t3}
    v_lshl_add_u32 v{vXd[1]}, v{t3}, 4, v{t0}
    v_lshrrev_b32 v{t0}, 4, v2
    v_and_b32 v{t1}, 15, v2
    v_lshlrev_b32 v{t2}, 2, v{t0}
    v_xor_b32 v{t1}, v{t1}, v{t2}
    v_mul_u32_u24 v{t0}, 3840, v{t0}
    v_lshl_add_u32 v{vWd}, v{t1}, 4, v{t0}
    s_waitcnt lgkmcnt(0)
    """)
    srd(a, 4, P['x'], REG)
    srd(a, 8, P['wqkv'], DM*3*DM*2)
    def dma(i):
        if i == 0:
            a(f"s_lshl_b32 s47, s44, 7\ns_mul_i32 s48, s44, {64*3840}")
        if i < 4:
            a(f"s_add_u32 s30, s24, s46\ns_add_u32 m0, s30, {i*1024}")
            a(f"s_add_u32 s31, s22, s48\ns_add_u32 s31, s31, {i*4*3840}")
            if not os.environ.get("NODMAW"): a(f"buffer_load_dwordx4 v{vWd}, s[8:11], s31 offen lds")
        else:
            i -= 4
            a(f"s_add_u32 s30, s23, s46\ns_add_u32 m0, s30, {i*1024}")
            a(f"s_add_u32 s31, s21, s47\ns_add_u32 s31, s31, {i*8*1280}")
            if not os.environ.get("NODMAX"): a(f"buffer_load_dwordx4 v{vXd[i&1]}, s[4:7], s31 offen lds")
    def adv():
        a(f"""
        s_add_u32 s44, s44, 1
        s_cmp_ge_u32 s44, {NST}
        s_cselect_b32 s30, {NST}, 0
        s_sub_u32 s44, s44, s30
        s_add_u32 s46, s46, {STG}
        s_and_b32 s46, s46, {D*STG-1}
        """)
    a("; STAMP 4")
    a(f"""
    s_and_b32 s30, s16, 3
    s_mul_i32 s30, s30, 3
    s_add_u32 s44, s30, s17
    s_cmp_ge_u32 s44, 20
    s_cselect_b32 s30, 20, 0
    s_sub_u32 s44, s44, s30
    s_cmp_ge_u32 s44, 10
    s_cselect_b32 s30, 10, 0
    s_sub_u32 s44, s44, s30
    s_mov_b32 s46, 0
    """)
    for st in range(2):
        for i in range(8): dma(i)
        adv()
    lS = [L.get() for _ in range(4)]; aS = [L.get() for _ in range(4)]
    XS = [L.get(4, 4) for _ in range(4)]
    su = [L.get(), L.get()]; sq = [L.get(), L.get()]; u0 = L.get(); u1 = L.get()
    a(f"""
    v_and_b32 v{t0}, 31, v2
    v_lshrrev_b32 v{t1}, 5, v2
    v_lshlrev_b32 v{t1}, 2, v{t1}         ; 4*hh
    v_bfe_u32 v{t2}, v{t0}, 1, 3
    v_xor_b32 v{t2}, v{t2}, v{t1}
    v_lshlrev_b32 v{t2}, 4, v{t2}
    v_lshl_add_u32 v{t2}, v{t0}, 7, v{t2}
    v_add_u32 v{t2}, s23, v{t2}           ; + lw*4096
    """)
    for c in range(4):
        a(f"v_xor_b32 v{lS[c]}, {c*16}, v{t2}")
    for r in su + sq: a(f"v_mov_b32 v{r}, 0")
    a("s_mov_b32 s49, 0\ns_mov_b32 s45, 0")
    def stats_regs(c):
        if os.environ.get("NOSTATS"): return
        for r in range(4):
            x = XS[c] + r; k = r & 1
            a(f"""
            v_lshlrev_b32 v{u0}, 16, v{x}
            v_and_b32 v{u1}, 0xffff0000, v{x}
            v_add_f32 v{su[0]}, v{su[0]}, v{u0}
            v_fmac_f32 v{sq[0]}, v{u0}, v{u0}
            v_add_f32 v{su[1]}, v{su[1]}, v{u1}
            v_fmac_f32 v{sq[1]}, v{u1}, v{u1}
            """)
    def lbody(n_wait, do_issue, stamp=None):
        a(f"s_waitcnt vmcnt({n_wait})")
        if stamp is not None: a(f"; STAMP {stamp}")
        a("s_barrier")
        for c in range(4):
            a(f"v_add_u32 v{aS[c]}, s45, v{lS[c]}")
        for c in range(4):
            a(f"ds_read_b128 {vr(XS[c],4)}, v{aS[c]}")
        for c in range(4):
            if do_issue:
                dma(2*c);
            a(f"s_waitcnt lgkmcnt({3-c})")
            stats_regs(c)
            if do_issue:
                dma(2*c+1)
        if do_issue: adv()
        a(f"s_add_u32 s45, s45, {STG}\ns_and_b32 s45, s45, {D*STG-1}")
    lbody(8, True, 5)
    for i in range(8): dma(i)
    adv()
    a("s_mov_b32 s49, 1")
    a.label(f"{name}_lloop")
    lbody(8*(D-2), True)
    a(f"s_add_u32 s49, s49, 1\ns_cmp_le_u32 s49, {NST-D}\ns_cbranch_scc1 {name}_lloop")
    for j in range(NST-D+1, NST):
        lbody(8*(NST-1-j), False, 6 if j == NST-1 else None)
    a(f"""
    v_add_f32 v{su[0]}, v{su[0]}, v{su[1]}
    v_add_f32 v{sq[0]}, v{sq[0]}, v{sq[1]}
    v_mov_b32 v{u0}, v{su[0]}
    v_mov_b32 v{u1}, v{sq[0]}
    s_nop 1
    v_permlane32_swap_b32 v{u0}, v{su[0]}
    v_permlane32_swap_b32 v{u1}, v{sq[0]}
    s_nop 1
    v_add_f32 v{su[0]}, v{su[0]}, v{u0}
    v_add_f32 v{sq[0]}, v{sq[0]}, v{u1}
    s_mov_b32 s30, {f32bits(1.0/DM)}
    v_mul_f32 v{su[0]}, s30, v{su[0]}
    v_mul_f32 v{sq[0]}, s30, v{sq[0]}
    v_fma_f32 v{sq[0]}, -v{su[0]}, v{su[0]}, v{sq[0]}
    v_max_f32 v{sq[0]}, 0, v{sq[0]}
    v_add_f32 v{sq[0]}, {f32bits(1e-5)}, v{sq[0]}
    v_rsq_f32 v{sq[0]}, v{sq[0]}
    s_nop 0
    v_mul_f32 v{su[0]}, v{su[0]}, v{sq[0]}
    v_sub_f32 v{su[0]}, 0, v{su[0]}
    v_and_b32 v{t0}, 31, v2
    s_lshl_b32 s30, s18, 7
    s_add_u32 s30, s30, {STATS}
    v_lshlrev_b32 v{t0}, 2, v{t0}
    v_add_u32 v{t0}, s30, v{t0}
    ds_write_b32 v{t0}, v{sq[0]}
    ds_write_b32 v{t0}, v{su[0]} offset:512
    s_waitcnt lgkmcnt(0)
    s_barrier
    s_branch {name}_end
    """)
    a.label(f"{name}_colsum")
    a(f"""
    s_sub_u32 s30, s2, 240
    s_lshr_b32 s31, s30, 3
    s_and_b32 s32, s30, 7
    s_waitcnt lgkmcnt(0)
    s_cmp_eq_u32 s31, 0
    s_cselect_b32 s4, s{P['wg']}, s{P['wu']}
    s_cselect_b32 s5, s{P['wg']+1}, s{P['wu']+1}
    s_mov_b32 s6, {DM*FF*2}
    s_mov_b32 s7, 0x00020000
    """)
    srd(a, 12, P['ws'], CS_BYTES, CS_OFF)
    C = VAlloc(3)
    c0 = C.get(); c1 = C.get(); vo = C.get()
    acc = C.get(8, 4)
    buf = C.get(80, 4)
    a(f"""
    v_and_b32 v{c0}, 31, v0              ; chunk c
    v_lshrrev_b32 v{c1}, 5, v0
    v_mul_u32_u24 v{vo}, {40*FF*2}, v{c1}
    v_lshl_add_u32 v{vo}, v{c0}, 4, v{vo}
    s_mul_i32 s33, s32, 432
    s_mov_b32 s46, 0x00003f80
    s_mov_b32 s47, 0x3f800000
    s_mov_b32 s49, 0
    """)
    for i in range(8):
        a(f"v_mov_b32 v{acc+i}, 0")
    a.label(f"{name}_csl")
    for i in range(20):
        a(f"s_add_u32 s30, s33, {i*FF*2}")
        a(f"buffer_load_dwordx4 {vr(buf+4*i,4)}, v{vo}, s[4:7], s30 offen")
    for i in range(20):
        a(f"s_waitcnt vmcnt({19-i})")
        for r in range(4):
            a(f"v_dot2c_f32_bf16 v{acc+2*r}, s46, v{buf+4*i+r}")
            a(f"v_dot2c_f32_bf16 v{acc+2*r+1}, s47, v{buf+4*i+r}")
    a(f"""
    s_add_u32 s33, s33, {20*FF*2}
    s_add_u32 s49, s49, 1
    s_cmp_lt_u32 s49, 2
    s_cbranch_scc1 {name}_csl
    s_nop 3
    v_lshlrev_b32 v{c1}, 5, v0
    ds_write_b128 v{c1}, {vr(acc,4)}
    ds_write_b128 v{c1}, {vr(acc+4,4)} offset:16
    s_waitcnt lgkmcnt(0)
    s_barrier
    v_lshlrev_b32 v{c1}, 2, v0
    """)
    for rg in range(16):
        a(f"ds_read_b32 v{buf+rg}, v{c1} offset:{rg*1024}")
    a("s_waitcnt lgkmcnt(0)")
    for rg in range(1, 16):
        a(f"v_add_f32 v{buf}, v{buf}, v{buf+rg}")
    a(f"""
    s_mul_i32 s30, s31, {FF*4}
    s_mul_i32 s33, s32, {216*4}
    s_add_u32 s30, s30, s33
    v_cmp_gt_u32 vcc, 216, v0
    s_and_saveexec_b64 s[34:35], vcc
    s_cbranch_execz {name}_end
    buffer_store_dword v{buf}, v{c1}, s[12:15], s30 offen
    """)
    a.label(f"{name}_end")
    a("s_endpgm")
    return a.text(), max(V.hi, L.hi, C.hi), D*STG + 2048
```

```python
import sys
from common import *
from k_qkv import k_qkv
from k_attn import k_attn
from k_gemm import k_gemm

HDR = open("sequential_preLN__mha_block__swiglu_ffn__prompt.s.ref").read().split("\n")
HDR = [l for l in HDR if l.startswith(";") and "@launch" not in l and "Override" not in l and "grid=ceil" not in l]

def build(which=None):
    ks = []
    t, n, l = k_qkv("qkv_kernel"); ks.append(("qkv_kernel", t, n, l, 256, 768))
    t, n, l = k_attn("attn_kernel"); ks.append(("attn_kernel", t, n, l, 256, 768))
    import os
    if not os.environ.get("FUSE"):
        t, n, l = k_gemm("wo_kernel", "wo"); ks.append(("wo_kernel", t, n, l, 256, 512))
    t, n, l = k_gemm("gu_kernel", "gu"); ks.append(("gu_kernel", t, n, l, 256, 512))
    t, n, l = k_gemm("down_kernel", "down"); ks.append(("down_kernel", t, n, l, 256, 512))
    out = "\n".join(HDR) + "\n"
    for name, t, n, l, g, b in ks:
        out += f"; @launch kernel={name} grid=({g},1,1) block=({b},1,1) lds={l}\n"
    out += '.amdgcn_target "amdgcn-amd-amdhsa--gfx950"\n.text\n'
    for name, t, n, l, g, b in ks:
        out += kernel_header(name) + t
    out += '.section .rodata,"a"\n'
    for name, t, n, l, g, b in ks:
        out += ".p2align 6\n" + kernel_desc(name, n)
    return out

if __name__ == "__main__":
    dst = sys.argv[1] if len(sys.argv) > 1 else "sequential_preLN__mha_block__swiglu_ffn__prompt.s"
    open(dst, "w").write(build())
    print("wrote", dst)
```

```python
from common import *
import os

def k_attn(name="attn_kernel"):
    a = Asm()
    KH = 8192; VOFF = 10240
    CH = VOFF + 33*336
    NCH = 8; NB = 3
    FLAG = NB*CH + 256
    RPK = (FLAG + 64 + 255)//256*256
    CSTR = 327680
    entry(a, name)
    a(f"""
    s_and_b32 s30, s2, 7                 ; xcd
    s_lshr_b32 s31, s2, 3                ; idx 0..31
    s_lshr_b32 s32, s31, 3
    s_lshl_b32 s16, s30, 2
    s_add_u32 s16, s16, s32              ; head
    s_and_b32 s17, s31, 7                ; qblock
    s_cmp_eq_u32 s18, 8
    s_cbranch_scc1 {name}_svc
    """)
    V = VAlloc(3)
    t0 = V.get(); t1 = V.get(); t2 = V.get(); t3 = V.get(); t4 = V.get()
    Q1 = V.get(4, 4); Q2 = V.get(4, 4)
    SS = [V.get(16, 4), V.get(16, 4)]
    PP = [V.get(4, 4), V.get(4, 4)]
    OO = V.get(16, 4)
    K1 = [V.get(4, 4), V.get(4, 4)]; K2 = [V.get(4, 4), V.get(4, 4)]
    V1 = [V.get(4, 4), V.get(4, 4)]; V2 = [V.get(4, 4), V.get(4, 4)]
    lk = V.get(); lk2 = V.get(); lv = V.get()
    ck = V.get(); ck2 = V.get(); cv = V.get()
    nk = V.get(); nk2 = V.get(); nv = V.get()
    vm = V.get(); vq = V.get(); vhh = V.get()
    a(f"""
    s_lshl_b32 s30, s17, 3
    s_add_u32 s30, s30, s18              ; q tile
    s_mul_i32 s30, s30, 40960
    s_mul_i32 s31, s16, 1280
    s_add_u32 s24, s30, s31
    v_and_b32 v{vq}, 31, v2
    v_lshrrev_b32 v{vhh}, 5, v2
    v_lshlrev_b32 v{lk2}, 3, v{vq}
    v_lshl_add_u32 v{lk}, v{vhh}, 9, v{lk2}
    v_mul_u32_u24 v{t4}, 336, v{vhh}
    v_lshl_add_u32 v{lv}, v{vq}, 4, v{t4}
    v_add_u32 v{lv}, {VOFF}, v{lv}
    ; ones rows: thread t<96: buffer = t/32, piece = t%32
    v_lshrrev_b32 v{t0}, 5, v0
    v_mul_u32_u24 v{t0}, {CH}, v{t0}
    v_and_b32 v{t1}, 31, v0
    v_mul_u32_u24 v{t1}, 336, v{t1}
    v_add_u32 v{t0}, v{t0}, v{t1}
    v_add_u32 v{t0}, {VOFF+320}, v{t0}
    v_mov_b32 v{SS[0]}, 0x3f803f80
    v_mov_b32 v{SS[0]+1}, 0x3f803f80
    v_mov_b32 v{SS[0]+2}, 0x3f803f80
    v_mov_b32 v{SS[0]+3}, 0x3f803f80
    v_cmp_gt_u32 vcc, 96, v0
    s_and_saveexec_b64 s[30:31], vcc
    s_cbranch_execz {name}_no1
    ds_write_b128 v{t0}, {vr(SS[0],4)}
    """)
    a.label(f"{name}_no1")
    a(f"""
    s_mov_b64 exec, -1
    v_mov_b32 v{t0}, {FLAG}
    v_mov_b32 v{t1}, 0
    ds_write_b32 v{t0}, v{t1}
    v_cmp_gt_u32 s[28:29], 32, v2
    v_mov_b32 v{Q2+2}, 0
    v_mov_b32 v{Q2+3}, 0
    s_waitcnt lgkmcnt(0)
    """)
    srd(a, 8, P['ws'], REG, QF_OFF)
    srd(a, 12, P['ws'], REG, O_OFF)
    a(f"""
    buffer_load_dwordx2 {vr(Q1,2)}, v{lk}, s[8:11], s24 offen
    buffer_load_dwordx2 {vr(Q1+2,2)}, v{lk}, s[8:11], s24 offen offset:256
    buffer_load_dwordx2 {vr(Q2,2)}, v{lk2}, s[8:11], s24 offen offset:1024
    v_add_u32 v{lk2}, {KH}, v{lk2}
    """)
    for b in range(2):
        a(f"v_mov_b32 v{K2[b]+2}, 0x3f803f80")
        a(f"v_mov_b32 v{K2[b]+3}, 0x00003f80")
    def readK(buf, t, nxt):
        ak, ak2 = (nk, nk2) if nxt else (ck, ck2)
        a(f"ds_read_b64 {vr(K1[buf],2)}, v{ak} offset:{t*1024}")
        a(f"ds_read_b64 {vr(K1[buf]+2,2)}, v{ak} offset:{t*1024 + 256}")
        a(f"ds_read_b64 {vr(K2[buf],2)}, v{ak2} offset:{t*256}")
    def readV(buf, t, nxt):
        av = nv if nxt else cv
        a(f"ds_read_b128 {vr(V1[buf],4)}, v{av} offset:{t*4*336}")
        a(f"ds_read_b128 {vr(V2[buf],4)}, v{av} offset:{(t*4+2)*336}")
    def mf(d, A, B, C):
        a(f"v_mfma_f32_32x32x16_bf16 {vr(d,16)}, {vr(A,4)}, {vr(B,4)}, {C}")
    def smfma(sb, kb):
        mf(SS[sb], K1[kb], Q1, "0"); mf(SS[sb], K2[kb], Q2, vr(SS[sb],16))
    def set_m():
        a(f"""
        v_sub_f32 v{t0}, 0, v{vm}
        v_and_b32 v{t1}, 0xffff0000, v{t0}
        v_sub_f32 v{t0}, v{t0}, v{t1}
        v_and_b32 v{t3}, 0xffff0000, v{t0}
        v_sub_f32 v{t0}, v{t0}, v{t3}
        v_lshrrev_b32 v{t1}, 16, v{t1}
        v_or_b32 v{t1}, v{t1}, v{t3}
        v_lshrrev_b32 v{t0}, 16, v{t0}
        v_cndmask_b32 v{Q2+2}, 0, v{t1}, s[28:29]
        v_cndmask_b32 v{Q2+3}, 0, v{t0}, s[28:29]
        s_nop 1
        """)
    def max16(sb, first):
        s = SS[sb]
        if first: a(f"v_max_f32 v{vm}, v{s}, v{s+1}")
        else: a(f"v_max3_f32 v{vm}, v{s}, v{s+1}, v{vm}")
        for r in range(2, 16, 2):
            a(f"v_max3_f32 v{vm}, v{s+r}, v{s+r+1}, v{vm}")
    def xhalf_max():
        a(f"""
        v_mov_b32 v{t0}, v{vm}
        s_nop 1
        v_permlane32_swap_b32 v{t0}, v{vm}
        s_nop 1
        v_max_f32 v{vm}, v{vm}, v{t0}
        """)
    def set_addrs(cur, nxt):
        a(f"""
        v_add_u32 v{ck}, s{cur}, v{lk}
        v_add_u32 v{ck2}, s{cur}, v{lk2}
        v_add_u32 v{cv}, s{cur}, v{lv}
        v_add_u32 v{nk}, s{nxt}, v{lk}
        v_add_u32 v{nk2}, s{nxt}, v{lk2}
        v_add_u32 v{nv}, s{nxt}, v{lv}
        """)
    a(f"s_mov_b32 s33, 0\ns_mov_b32 s34, {CH}")
    set_addrs(33, 34)
    a(f"""
    s_waitcnt vmcnt(0)
    v_cndmask_b32 v{Q2}, 0, v{Q2}, s[28:29]
    v_cndmask_b32 v{Q2+1}, 0, v{Q2+1}, s[28:29]
    s_barrier
    """)
    a("; STAMP 0")
    readK(0, 0, False)
    a("s_waitcnt lgkmcnt(0)")
    smfma(0, 0)
    readK(1, 1, False)
    readV(0, 0, False)
    a("s_nop 15\ns_nop 1")
    max16(0, True)
    xhalf_max()
    set_m()
    a("s_mov_b32 s23, 0")
    a(f"s_branch {name}_main2")
    a.label(f"{name}_main")
    a(f"s_mov_b32 s33, 0\ns_mov_b32 s34, {CH}")
    set_addrs(33, 34)
    readK(0, 0, False)
    a("s_waitcnt lgkmcnt(0)")
    readK(1, 1, False)
    readV(0, 0, False)
    a.label(f"{name}_main2")
    a("; STAMP 1")
    smfma(0, 0)
    for r in range(16):
        a(f"v_mov_b32 v{OO+r}, 0")
    for r in range(4):
        a(f"v_mov_b32 v{PP[1]+r}, 0\nv_mov_b32 v{V2[1]+r}, 0")
    a(f"""
    s_mov_b32 s22, 0
    s_mov_b32 s20, {2*CH}
    """)
    a.label(f"{name}_loop")
    for t in range(8):
        sb = t & 1; s = SS[sb]; n = SS[sb ^ 1]
        def E(lo):
            for r in range(lo, lo+4): a(f"v_exp_f32 v{s+r}, v{s+r}")
        def C(lo):
            for r in range(lo, lo+4, 2): a(f"v_cvt_pk_bf16_f32 v{PP[r//8]+(r%8)//2}, v{s+r}, v{s+r+1}")
        if t == 6:
            a("s_barrier")
        a("s_waitcnt lgkmcnt(2)")
        mf(n, K1[sb^1], Q1, "0")
        E(0)
        mf(OO, V2[sb^1], PP[1], vr(OO,16))
        E(4); C(0); C(4)
        mf(n, K2[sb^1], Q2, vr(n,16))
        readK(sb, (t + 2) % 8, t + 2 >= 8)
        E(8)
        a("s_waitcnt lgkmcnt(3)")
        mf(OO, V1[sb], PP[0], vr(OO,16))
        readV(sb ^ 1, (t + 1) % 8, t + 1 >= 8)
        E(12); C(8); C(12)
    a(f"""
    s_add_u32 s22, s22, 1
    s_mov_b32 s30, s33
    s_mov_b32 s33, s34
    s_mov_b32 s34, s20
    s_mov_b32 s20, s30
    """)
    set_addrs(33, 34)
    a(f"s_cmp_lt_u32 s22, {NCH}\ns_cbranch_scc1 {name}_loop")
    mf(OO, V2[1], PP[1], vr(OO,16))
    a("s_waitcnt lgkmcnt(0)\ns_nop 15")
    a("; STAMP 2")
    vl = V.get(); vz = V.get()
    a(f"""
    v_mov_b32 v{t0}, v{OO+8}
    v_mov_b32 v{vl}, v{OO+8}
    s_nop 1
    v_permlane32_swap_b32 v{t0}, v{vl}
    v_mov_b32 v{vz}, 0
    """)
    for r in range(12):
        a(f"v_fma_f32 v{vz}, v{OO+r}, 0, v{vz}")
    a(f"""
    s_cmp_lg_u32 s23, 0
    s_cbranch_scc1 {name}_fin
    s_mov_b32 s30, {f32bits(2.0**60)}
    v_add_f32 v{t1}, v{vz}, v{vl}
    v_cmp_nlt_f32 vcc, v{t1}, s30
    s_cmp_eq_u64 vcc, 0
    s_cbranch_scc1 {name}_noflag
    v_mov_b32 v{t0}, {FLAG}
    v_mov_b32 v{t1}, 1
    ds_write_b32 v{t0}, v{t1}
    s_waitcnt lgkmcnt(0)
    """)
    a.label(f"{name}_noflag")
    a(f"""
    s_barrier
    v_mov_b32 v{t0}, {FLAG}
    ds_read_b32 v{t1}, v{t0}
    s_waitcnt lgkmcnt(0)
    v_readfirstlane_b32 s30, v{t1}
    s_nop 3
    s_cmp_eq_u32 s30, 0
    s_cbranch_scc1 {name}_fin
    v_mov_b32 v{Q2+2}, 0
    v_mov_b32 v{Q2+3}, 0
    v_mov_b32 v{vm}, 0xff7fffff
    s_mov_b32 s22, 0
    s_mov_b32 s33, 0
    """)
    set_addrs(33, 33)
    a.label(f"{name}_maxloop")
    a("s_barrier\ns_barrier")
    for t in range(8):
        readK(0, t, False)
        a("s_waitcnt lgkmcnt(0)")
        smfma(0, 0)
        a("s_nop 15\ns_nop 3")
        max16(0, False)
    a(f"""
    s_add_u32 s22, s22, 1
    s_cmp_lt_u32 s22, {NCH}
    s_cbranch_scc1 {name}_maxloop
    """)
    xhalf_max()
    set_m()
    a("s_mov_b32 s23, 1")
    a("s_barrier\ns_barrier")
    a(f"s_branch {name}_main")
    a.label(f"{name}_fin")
    a("; STAMP 3")
    pk = V.get(2, 2); vo = V.get()
    a(f"""
    v_rcp_f32 v{vl}, v{vl}
    s_lshl_b32 s30, s17, 2
    s_lshr_b32 s31, s18, 1
    s_add_u32 s30, s30, s31
    s_mul_i32 s30, s30, 81920
    s_and_b32 s31, s18, 1
    s_lshl_b32 s31, s31, 9
    s_add_u32 s30, s30, s31
    v_lshlrev_b32 v{vo}, 4, v{vq}
    v_add_u32 v{vo}, s30, v{vo}
    s_mul_i32 s31, s16, 5
    """)
    for grp in range(3):
        a(f"""
        v_add_u32 v{t0}, s31, v{vhh}
        v_add_u32 v{t0}, {2*grp}, v{t0}
        v_lshrrev_b32 v{t1}, 1, v{t0}
        v_lshlrev_b32 v{t1}, 10, v{t1}
        v_and_b32 v{t0}, 1, v{t0}
        v_lshl_add_u32 v{t1}, v{t0}, 3, v{t1}
        v_add_u32 v{t1}, v{t1}, v{vo}
        v_mul_f32 v{t0}, v{OO+4*grp}, v{vl}
        v_mul_f32 v{t2}, v{OO+4*grp+1}, v{vl}
        v_mul_f32 v{t3}, v{OO+4*grp+2}, v{vl}
        v_mul_f32 v{t4}, v{OO+4*grp+3}, v{vl}
        v_cvt_pk_bf16_f32 v{pk}, v{t0}, v{t2}
        v_cvt_pk_bf16_f32 v{pk+1}, v{t3}, v{t4}
        """)
        if grp == 2:
            a("s_mov_b64 exec, s[28:29]")
        a(f"buffer_store_dwordx2 {vr(pk,2)}, v{t1}, s[12:15], 0 offen")
        a("s_nop 1")
    a(f"s_branch {name}_end")
    a.label(f"{name}_svc")
    S = VAlloc(3)
    vKlo = S.get(); vKhi = S.get(); vV = S.get(); u0 = S.get(); u1 = S.get(); u2 = S.get()
    a(f"""
    v_lshlrev_b32 v{vKlo}, 4, v2
    v_lshrrev_b32 v{u0}, 4, v2
    v_mul_u32_u24 v{u0}, 40960, v{u0}
    v_and_b32 v{u1}, 15, v2
    v_lshl_add_u32 v{vKhi}, v{u1}, 4, v{u0}
    v_add_u32 v{vKhi}, 1024, v{vKhi}
    v_mul_u32_u24 v{u0}, 49, v2
    v_lshrrev_b32 v{u0}, 10, v{u0}
    v_mul_u32_u24 v{u1}, 21, v{u0}
    v_sub_u32 v{u1}, v2, v{u1}           ; row
    v_cmp_gt_u32 vcc, 20, v{u1}
    v_cmp_gt_u32 s[30:31], 63, v2
    v_mul_u32_u24 v{u0}, 10240, v{u0}
    v_lshl_add_u32 v{vV}, v{u1}, 4, v{u0}
    s_and_b64 s[56:57], vcc, s[30:31]
    s_mul_i32 s50, s16, 1280
    s_mul_i32 s51, s16, 320
    s_add_u32 s51, s51, {REG}
    s_waitcnt lgkmcnt(0)
    """)
    srd(a, 4, P['ws'], 2*REG, KF_OFF)
    def issue_chunk(buf_sg, cidx):
        a(f"s_add_u32 s21, s17, {cidx}\ns_and_b32 s21, s21, 7\ns_mul_i32 s21, s21, {CSTR}")
        a(f"s_add_u32 s30, s21, s50")
        for t in range(8):
            a(f"s_add_u32 m0, s{buf_sg}, {t*1024}")
            a(f"s_add_u32 s31, s30, {t*40960}")
            a(f"buffer_load_dwordx4 v{vKlo}, s[4:7], s31 offen lds")
        for i in range(2):
            a(f"s_add_u32 m0, s{buf_sg}, {KH + i*1024}")
            a(f"s_add_u32 s31, s30, {i*4*40960}")
            a(f"buffer_load_dwordx4 v{vKhi}, s[4:7], s31 offen lds")
        a(f"s_add_u32 s30, s21, s51")
        a("s_mov_b64 exec, s[56:57]")
        for jv in range(11):
            a(f"s_add_u32 m0, s{buf_sg}, {VOFF + jv*1008}")
            a(f"s_add_u32 s31, s30, {jv*3*10240}")
            a(f"buffer_load_dwordx4 v{vV}, s[4:7], s31 offen lds")
        a("s_mov_b64 exec, -1")
    a("s_mov_b32 s20, 0")
    issue_chunk(20, "0")
    rp_v = [S.get(), S.get()]; rp_c = [S.get(), S.get()]
    rp_row = S.get(); rp_ra = S.get(); rp_f = S.get(); rp_t = S.get(); rp_o = S.get()
    RF = S.get(28, 4)
    a(f"""
    v_lshrrev_b32 v{rp_row}, 4, v2
    v_and_b32 v{rp_t}, 15, v2
    v_lshlrev_b32 v{rp_c[0]}, 1, v{rp_row}
    v_xor_b32 v{rp_c[0]}, v{rp_c[0]}, v{rp_t}
    v_xor_b32 v{rp_c[1]}, 8, v{rp_c[0]}
    v_lshrrev_b32 v{rp_t}, 4, v2
    v_bfe_u32 v{rp_f}, v2, 2, 2
    v_lshl_add_u32 v{rp_ra}, v{rp_t}, 3, v{rp_f}
    v_lshlrev_b32 v{rp_ra}, 8, v{rp_ra}
    v_and_b32 v{rp_o}, 3, v2
    v_lshl_add_u32 v{rp_ra}, v{rp_o}, 3, v{rp_ra}
    v_add_u32 v{rp_ra}, {RPK}, v{rp_ra}
    v_and_b32 v{rp_t}, 1, v{rp_t}
    v_lshl_or_b32 v{rp_f}, v{rp_t}, 2, v{rp_f}
    v_lshlrev_b32 v{rp_f}, 5, v{rp_f}
    v_lshlrev_b32 v{rp_o}, 4, v2
    """)
    srd(a, 40, P['ws'], WPX, WP_OFF)
    def rp_decode(usg):
        l_gu = a.newlabel(name + "_rg"); l_wd = a.newlabel(name + "_rd"); l_e = a.newlabel(name + "_re")
        a(f"""
        s_cmp_ge_u32 s{usg}, 800
        s_cbranch_scc1 {l_wd}
        s_cmp_ge_u32 s{usg}, 160
        s_cbranch_scc1 {l_gu}
        s_mul_i32 s30, s{usg}, 3277
        s_lshr_b32 s30, s30, 16
        s_mul_i32 s31, s30, 20
        s_sub_u32 s31, s{usg}, s31
        s_mul_i32 s32, s30, 160
        s_mul_i32 s44, s31, {32*1280}
        s_add_u32 s44, s44, s32
        s_mov_b32 s45, 1280
        s_mul_i32 s46, s{usg}, 5120
        s_add_u32 s46, s46, {WP_WO}
        s_mov_b32 s47, 5
        s_mov_b32 s36, s{P['wo']}
        s_mov_b32 s37, s{P['wo']+1}
        s_mov_b32 s38, {DM*DM*2}
        s_branch {l_e}
        """)
        a.label(l_gu)
        a(f"""
        s_sub_u32 s49, s{usg}, 160
        s_mul_i32 s30, s49, 1639
        s_lshr_b32 s30, s30, 16
        s_mul_i32 s31, s30, 40
        s_sub_u32 s31, s49, s31
        s_mul_i32 s32, s30, 224
        s_lshr_b32 s49, s31, 1
        s_mul_i32 s44, s49, {32*3456}
        s_add_u32 s44, s44, s32
        s_mov_b32 s45, 3456
        s_mul_i32 s46, s30, 20
        s_add_u32 s46, s46, s49
        s_mul_i32 s46, s46, 14
        s_and_b32 s31, s31, 1
        s_mul_i32 s30, s31, 7
        s_add_u32 s46, s46, s30
        s_lshl_b32 s46, s46, 10
        s_add_u32 s46, s46, {WP_GU}
        s_mov_b32 s47, 7
        s_cmp_eq_u32 s31, 0
        s_cselect_b32 s36, s{P['wg']}, s{P['wu']}
        s_cselect_b32 s37, s{P['wg']+1}, s{P['wu']+1}
        s_mov_b32 s38, {DM*FF*2}
        s_branch {l_e}
        """)
        a.label(l_wd)
        a(f"""
        s_sub_u32 s49, s{usg}, 800
        s_mul_i32 s30, s49, 1214
        s_lshr_b32 s30, s30, 16
        s_mul_i32 s31, s30, 54
        s_sub_u32 s31, s49, s31
        s_mul_i32 s32, s30, 160
        s_mul_i32 s44, s31, {32*1280}
        s_add_u32 s44, s44, s32
        s_mov_b32 s45, 1280
        s_mul_i32 s46, s49, 5120
        s_add_u32 s46, s46, {WP_WD}
        s_mov_b32 s47, 5
        s_mov_b32 s36, s{P['wd']}
        s_mov_b32 s37, s{P['wd']+1}
        s_mov_b32 s38, {FF*DM*2}
        """)
        a.label(l_e)
        a("s_mov_b32 s39, 0x00020000")
    def rp_A(usg):
        rp_decode(usg)
        a(f"""
        s_lshl_b32 s49, s47, 1
        v_mul_lo_u32 v{rp_t}, v{rp_row}, s45
        v_lshl_add_u32 v{rp_v[0]}, v{rp_c[0]}, 4, v{rp_t}
        v_lshl_add_u32 v{rp_v[1]}, v{rp_c[1]}, 4, v{rp_t}
        v_cmp_gt_u32 s[54:55], s49, v{rp_c[0]}
        v_cmp_gt_u32 s[26:27], s49, v{rp_c[1]}
        s_lshl_b32 s31, s45, 2
        s_nop 1
        """)
        for i in range(8):
            var = (i >> 1) & 1
            a(f"s_mov_b32 m0, {RPK + i*1024}")
            a(f"s_mov_b64 exec, {['s[54:55]', 's[26:27]'][var]}")
            a(f"buffer_load_dwordx4 v{rp_v[var]}, s[36:39], s44 offen lds")
            a(f"s_add_u32 s44, s44, s31")
        a("s_mov_b64 exec, -1")
    def rp_B():
        for nt in range(7):
            a(f"v_xor_b32 v{rp_t}, {nt*32}, v{rp_f}")
            a(f"v_add_u32 v{rp_t}, v{rp_t}, v{rp_ra}")
            a(f"ds_read_b64_tr_b16 {vr(RF+4*nt,2)}, v{rp_t}")
            a(f"ds_read_b64_tr_b16 {vr(RF+4*nt+2,2)}, v{rp_t} offset:1024")
        a("s_waitcnt lgkmcnt(0)")
        lab = a.newlabel(name + "_r5")
        for nt in range(7):
            if nt == 5:
                a(f"s_cmp_lt_u32 s47, 7\ns_cbranch_scc1 {lab}")
            a(f"s_add_u32 s30, s46, {nt*1024}")
            a(f"buffer_store_dwordx4 {vr(RF+4*nt,4)}, v{rp_o}, s[40:43], s30 offen sc1")
        a.label(lab)
    a(f"""
    s_mov_b32 s23, 0                     ; mode
    s_mov_b32 s53, s2
    s_mov_b32 s52, 0
    s_waitcnt vmcnt(0)
    s_barrier
    s_mov_b32 s20, {CH}
    """)
    issue_chunk(20, "1")
    a.label(f"{name}_smain")
    a(f"s_mov_b32 s22, 0\ns_mov_b32 s20, {2*CH}")
    a.label(f"{name}_sloop")
    lskip = a.newlabel(name + "_sk"); lnoB = a.newlabel(name + "_sk")
    a(f"s_cmp_lg_u32 s23, 0\ns_cbranch_scc1 {lskip}")
    a(f"s_cmp_eq_u32 s52, 0\ns_cbranch_scc1 {lnoB}")
    a("s_waitcnt vmcnt(0)")
    rp_B()
    a("s_mov_b32 s52, 0")
    a.label(lnoB)
    a(f"s_cmp_ge_u32 s53, 1232\ns_cbranch_scc1 {lskip}")
    rp_A(53)
    a("s_add_u32 s53, s53, 256\ns_mov_b32 s52, 1")
    a.label(lskip)
    a("s_waitcnt vmcnt(0)")
    a("s_barrier")
    lnd = a.newlabel(name + "_sk")
    a(f"s_cmp_ge_u32 s22, {NCH-2}\ns_cbranch_scc1 {lnd}")
    a("s_add_u32 s25, s22, 2")
    issue_chunk(20, "s25")
    a.label(lnd)
    a(f"""
    s_add_u32 s20, s20, {CH}
    s_cmp_ge_u32 s20, {3*CH}
    s_cselect_b32 s30, {3*CH}, 0
    s_sub_u32 s20, s20, s30
    s_add_u32 s22, s22, 1
    s_cmp_lt_u32 s22, {NCH}
    s_cbranch_scc1 {name}_sloop
    s_cmp_lg_u32 s23, 0
    s_cbranch_scc1 {name}_end
    s_barrier
    v_mov_b32 v{u0}, {FLAG}
    ds_read_b32 v{u1}, v{u0}
    s_waitcnt lgkmcnt(0)
    v_readfirstlane_b32 s30, v{u1}
    s_nop 3
    s_cmp_eq_u32 s30, 0
    s_cbranch_scc1 {name}_end
    s_mov_b32 s22, 0
    s_mov_b32 s20, 0
    """)
    a.label(f"{name}_smax")
    a("s_barrier")
    a("s_sub_u32 s25, s22, s17")
    issue_chunk(20, "s25")
    a("s_waitcnt vmcnt(0)\ns_barrier")
    a(f"s_add_u32 s22, s22, 1\ns_cmp_lt_u32 s22, {NCH}\ns_cbranch_scc1 {name}_smax")
    a("s_barrier")
    a("s_mov_b32 s20, 0")
    issue_chunk(20, "0")
    a(f"s_mov_b32 s20, {CH}")
    issue_chunk(20, "1")
    a("s_waitcnt vmcnt(0)\ns_barrier\ns_mov_b32 s23, 1")
    a(f"s_branch {name}_smain")
    a.label(f"{name}_end")
    a("s_endpgm")
    return a.text(), max(V.hi, S.hi), RPK + 8192
```

```python
from common import *
import os

def k_gemm(name, kind):
    a = Asm()
    if kind == 'wo':
        BM, NT, NREG, K, D, G, wsec = 64, 5, 1, 640, 8, 2, WP_WO
        xoff, xbytes = O_OFF, REG
    elif kind == 'down':
        BM, NT, NREG, K, D, G, wsec = 64, 5, 1, 1728, 8, 2, WP_WD
        xoff, xbytes = ACT_OFF, ACT_BYTES
    else:
        BM, NT, NREG, K, D, G, wsec = 128, 7, 2, 640, 7, 1, WP_GU
        xoff, xbytes = H_OFF, REG
    NC = NT*16
    XTBS = (K//8)*1024
    HTBS = 81920; ATBS = 221184
    MT = BM // 64; NTT = NT * NREG
    XB = G * 4 * BM * 16; WB = G * NTT * 1024
    STG = XB + WB
    NST = K // (32*G)
    NXT = XB // 1024
    NXI = NXT // 4
    NWT = G * NTT
    WIN = 4 if kind == 'gu' else 5
    entry(a, name)
    sh = 2 if kind == 'gu' else 1
    a(f"""
    s_and_b32 s35, s2, 7                 ; xcd
    s_lshr_b32 s31, s2, 3                ; idx
    s_and_b32 s32, s31, 7
    s_lshr_b32 s33, s31, 3
    s_lshr_b32 s34, s35, {sh}
    s_lshl_b32 s34, s34, 3
    s_add_u32 s16, s34, s32              ; rb
    s_and_b32 s34, s35, {(1<<sh)-1}
    s_lshl_b32 s34, s34, 2
    s_add_u32 s17, s34, s33              ; cb
    s_mul_i32 s28, s17, {NC*2}
    s_cmp_ge_u32 s18, 4
    s_cbranch_scc1 {name}_loader
    """)
    V = VAlloc(3)
    t0 = V.get(); t1 = V.get(); t2 = V.get(); t3 = V.get()
    vXl = V.get(); vWl = V.get(); vXa = V.get(); vWa = V.get()
    a(f"""
    v_and_b32 v{t0}, 15, v2              ; tok
    v_lshrrev_b32 v{t1}, 4, v2           ; g
    v_mul_u32_u24 v{vXl}, {BM*16}, v{t1}
    v_lshl_add_u32 v{vXl}, v{t0}, 4, v{vXl}
    s_mul_i32 s30, s18, {16*MT*16}
    v_add_u32 v{vXl}, s30, v{vXl}
    v_lshlrev_b32 v{vWl}, 4, v2
    v_add_u32 v{vWl}, {XB}, v{vWl}
    """)
    XF = [[V.get(4, 4) for mt in range(MT)] for b in range(2)]
    WF = [V.get(4, 4) for _ in range(WIN)]
    ACC = [[V.get(4, 4) for mt in range(MT)] for nt in range(NTT)]
    for nt in range(NTT):
        for mt in range(MT):
            for r in range(4):
                a(f"v_mov_b32 v{ACC[nt][mt]+r}, 0")
    vq = V.get(); vtok = V.get(); vcm = V.get()
    a(f"""
    v_lshrrev_b32 v{vq}, 4, v2           ; q
    v_and_b32 v{vtok}, 15, v2
    s_mul_i32 s30, s16, {BM}
    s_mul_i32 s31, s18, {16*MT}
    s_add_u32 s30, s30, s31
    v_add_u32 v{vtok}, s30, v{vtok}
    s_lshr_b32 s29, s30, 6
    v_and_b32 v{t0}, 63, v{vtok}
    v_lshlrev_b32 v{t0}, 4, v{t0}
    v_lshrrev_b32 v{t1}, 1, v{vq}
    v_lshl_add_u32 v{t0}, v{t1}, 10, v{t0}
    v_and_b32 v{t1}, 1, v{vq}
    v_lshl_add_u32 v{vcm}, v{t1}, 3, v{t0}
    s_waitcnt lgkmcnt(0)
    """)
    if kind in ('wo', 'down'):
        RES = [V.get(2, 2) for _ in range(NT)]
    else:
        CS = [V.get(4, 4) for _ in range(NTT)]
    if kind in ('gu', 'down'):
        STT = [V.get(4, 4) for _ in range(MT)]
    def epi_loads():
        if kind == 'wo':
            srd(a, 12, P['ws'], REG, H_OFF); srd(a, 36, P['x'], REG); srd(a, 40, P['ws'], ST_BYTES, ST_OFF)
            a(f"v_mul_u32_u24 v{t0}, 1280, v{vtok}\nv_lshl_add_u32 v{t0}, v{vq}, 3, v{t0}")
            for nt in range(NT):
                a(f"buffer_load_dwordx2 {vr(RES[nt],2)}, v{t0}, s[36:39], s28 offen offset:{nt*32}")
        elif kind == 'down':
            srd(a, 12, P['out'], REG); srd(a, 36, P['ws'], REG, H_OFF); srd(a, 40, P['ws'], ST_BYTES, ST_OFF)
            a(f"""
            s_mul_i32 s30, s17, {10*1024}
            s_mul_i32 s31, s29, {HTBS}
            s_add_u32 s30, s30, s31
            """)
            for nt in range(NT):
                a(f"buffer_load_dwordx2 {vr(RES[nt],2)}, v{vcm}, s[36:39], s30 offen offset:{nt*2048 if nt < 2 else 0}") if nt < 2 else (a(f"s_add_u32 s31, s30, {nt*2048}"), a(f"buffer_load_dwordx2 {vr(RES[nt],2)}, v{vcm}, s[36:39], s31 offen"))
        else:
            srd(a, 12, P['ws'], ACT_BYTES, ACT_OFF); srd(a, 36, P['ws'], CS_BYTES, CS_OFF); srd(a, 40, P['ws'], ST_BYTES, ST_OFF)
            a(f"v_lshlrev_b32 v{t0}, 4, v{vq}\ns_mul_i32 s30, s17, {112*4}")
            for rg in range(2):
                for nt in range(NT):
                    a(f"s_add_u32 s31, s30, {rg*FF*4 + nt*64}")
                    a(f"buffer_load_dwordx4 {vr(CS[rg*NT+nt],4)}, v{t0}, s[36:39], s31 offen")
        if kind in ('gu', 'down'):
            a(f"v_lshlrev_b32 v{t1}, 6, v{vtok}\nv_lshl_add_u32 v{t1}, v{vq}, 4, v{t1}")
            for mt in range(MT):
                a(f"buffer_load_dwordx4 {vr(STT[mt],4)}, v{t1}, s[40:43], 0 offen offset:{mt*16*64}")
    q = LdsQ(a)
    JOBS = 2 * NTT
    assert JOBS % WIN == 0
    def xread(ks):
        off = (ks*4*BM*16) if G == 2 else 0
        for mt in range(MT):
            q.issue(('x', ks & 1), f"ds_read_b128 {vr(XF[ks&1][mt],4)}, v{vXa} offset:{off + mt*256}")
    def wread(u):
        off = u*1024 if G == 2 else (u % NTT)*1024
        q.issue(('w', u), f"ds_read_b128 {vr(WF[u % WIN],4)}, v{vWa} offset:{off}")
    def set_read_addr():
        a(f"v_add_u32 v{vXa}, s45, v{vXl}\nv_add_u32 v{vWa}, s45, v{vWl}")
    def job_mfma(u):
        ks, nt = divmod(u, NTT)
        slot = u % WIN
        q.need({('w', u), ('x', ks & 1)})
        for mt in range(MT):
            if os.environ.get("NOMFMA"): continue
            a(f"v_mfma_f32_16x16x32_bf16 {vr(ACC[nt][mt],4)}, {vr(WF[slot],4)}, {vr(XF[ks&1][mt],4)}, {vr(ACC[nt][mt],4)}")
    def enter(check_exit):
        if check_exit:
            a(f"s_add_u32 s49, s49, 1")
            a(f"s_cmp_ge_u32 s49, {K//64}\ns_cbranch_scc1 {name}_tail")
        a(f"""
        s_add_u32 s45, s45, {STG}
        s_cmp_ge_u32 s45, {D*STG}
        s_cselect_b32 s30, {D*STG}, 0
        s_sub_u32 s45, s45, s30
        s_barrier
        """)
        set_read_addr()
    a("s_mov_b32 s49, 0\ns_mov_b32 s45, 0")
    a("; STAMP 0")
    a("s_barrier")
    a("; STAMP 1")
    set_read_addr()
    xread(0)
    for u in range(WIN): wread(u)
    epi_loads()
    a.label(f"{name}_loop")
    qstate = list(q.q)
    for u in range(JOBS):
        if u == JOBS - WIN:
            enter(True)
            xread(0)
        if u == NTT - WIN:
            if G == 1: enter(False)
            xread(1)
        job_mfma(u)
        wread((u + WIN) % JOBS)
    assert q.q == qstate, (q.q, qstate)
    a(f"s_branch {name}_loop")
    a.label(f"{name}_tail")
    a("; STAMP 2")
    a("s_waitcnt lgkmcnt(0)")
    q.drain()
    for u in range(JOBS - WIN, JOBS):
        job_mfma(u)
    a("s_waitcnt vmcnt(0)")
    def red_q(reg):
        a(f"""
        v_mov_b32 v{t0}, v{reg}
        s_nop 1
        v_permlane32_swap_b32 v{t0}, v{reg}
        s_nop 1
        v_add_f32 v{reg}, v{reg}, v{t0}
        v_mov_b32 v{t0}, v{reg}
        s_nop 1
        v_permlane16_swap_b32 v{t0}, v{reg}
        s_nop 1
        v_add_f32 v{reg}, v{reg}, v{t0}
        """)
    if kind in ('gu', 'down'):
        mu = [V.get() for _ in range(MT)]; rs_ = [V.get() for _ in range(MT)]
        for mt in range(MT):
            s_ = STT[mt]
            a(f"v_add_f32 v{s_}, v{s_}, v{s_+2}\nv_add_f32 v{s_+1}, v{s_+1}, v{s_+3}")
            red_q(s_); red_q(s_+1)
            a(f"""
            s_mov_b32 s30, {f32bits(1.0/DM)}
            v_mul_f32 v{mu[mt]}, s30, v{s_}
            v_mul_f32 v{s_+1}, s30, v{s_+1}
            v_fma_f32 v{s_+1}, -v{mu[mt]}, v{mu[mt]}, v{s_+1}
            v_max_f32 v{s_+1}, 0, v{s_+1}
            v_add_f32 v{s_+1}, {f32bits(1e-5)}, v{s_+1}
            v_rsq_f32 v{rs_[mt]}, v{s_+1}
            v_sub_f32 v{mu[mt]}, 0, v{mu[mt]}
            """)
    a("; STAMP 3")
    if kind in ('wo', 'down'):
        pk = V.get(2, 2)
        if kind == 'wo':
            ssum = V.get(); ssq = V.get()
            a(f"""
            v_mov_b32 v{t3}, v{vcm}
            s_mul_i32 s30, s17, {10*1024}
            s_mul_i32 s31, s29, {HTBS}
            s_add_u32 s30, s30, s31
            v_mov_b32 v{ssum}, 0
            v_mov_b32 v{ssq}, 0
            """)
        else:
            a(f"""
            v_mul_u32_u24 v{t3}, 1280, v{vtok}
            v_lshl_add_u32 v{t3}, v{vq}, 3, v{t3}
            v_mul_f32 v{rs_[0]}, {f32bits(-math.log(2.0))}, v{rs_[0]}
            """)
        for nt in range(NT):
            acc = ACC[nt][0]; r = RES[nt]
            a(f"v_lshlrev_b32 v{t1}, 16, v{r}\nv_and_b32 v{t2}, 0xffff0000, v{r}")
            if kind == 'wo':
                a(f"v_add_f32 v{acc}, v{acc}, v{t1}\nv_add_f32 v{acc+1}, v{acc+1}, v{t2}")
            else:
                a(f"v_fma_f32 v{acc}, v{acc}, v{rs_[0]}, v{t1}\nv_fma_f32 v{acc+1}, v{acc+1}, v{rs_[0]}, v{t2}")
            a(f"v_lshlrev_b32 v{t1}, 16, v{r+1}\nv_and_b32 v{t2}, 0xffff0000, v{r+1}")
            if kind == 'wo':
                a(f"v_add_f32 v{acc+2}, v{acc+2}, v{t1}\nv_add_f32 v{acc+3}, v{acc+3}, v{t2}")
            else:
                a(f"v_fma_f32 v{acc+2}, v{acc+2}, v{rs_[0]}, v{t1}\nv_fma_f32 v{acc+3}, v{acc+3}, v{rs_[0]}, v{t2}")
            a(f"v_cvt_pk_bf16_f32 v{pk}, v{acc}, v{acc+1}\nv_cvt_pk_bf16_f32 v{pk+1}, v{acc+2}, v{acc+3}")
            if kind == 'wo':
                a(f"s_add_u32 s31, s30, {nt*2048}")
                a(f"buffer_store_dwordx2 {vr(pk,2)}, v{t3}, s[12:15], s31 offen")
                for h_ in range(2):
                    a(f"""
                    v_lshlrev_b32 v{t1}, 16, v{pk+h_}
                    v_and_b32 v{t2}, 0xffff0000, v{pk+h_}
                    v_add_f32 v{ssum}, v{ssum}, v{t1}
                    v_fmac_f32 v{ssq}, v{t1}, v{t1}
                    v_add_f32 v{ssum}, v{ssum}, v{t2}
                    v_fmac_f32 v{ssq}, v{t2}, v{t2}
                    """)
            else:
                a(f"buffer_store_dwordx2 {vr(pk,2)}, v{t3}, s[12:15], s28 offen offset:{nt*32}")
        if kind == 'wo':
            red_q(ssum); red_q(ssq)
            st2 = V.get(2, 2)
            a(f"""
            v_mov_b32 v{st2}, v{ssum}
            v_mov_b32 v{st2+1}, v{ssq}
            v_lshlrev_b32 v{t0}, 6, v{vtok}
            s_lshl_b32 s30, s17, 3
            s_mov_b64 exec, 0xffff
            buffer_store_dwordx2 {vr(st2,2)}, v{t0}, s[40:43], s30 offen
            """)
    else:
        ag = [V.get() for _ in range(MT)]
        for mt in range(MT):
            a(f"v_mul_f32 v{ag[mt]}, {f32bits(-math.log2(math.e))}, v{rs_[mt]}")
        pk = V.get(2, 2); vo = V.get(); w = [V.get() for _ in range(4)]; e = [V.get() for _ in range(4)]
        a(f"""
        v_mov_b32 v{vo}, v{vcm}
        s_mul_i32 s30, s17, {14*1024}
        s_mul_i32 s31, s29, {ATBS}
        s_add_u32 s30, s30, s31
        """)
        for nt in range(NT):
            if nt == 3:
                a(f"s_cmp_eq_u32 s17, 15\ns_cbranch_scc1 {name}_end")
            for mt in range(MT):
                g = ACC[nt][mt]; u_ = ACC[NT+nt][mt]; cg = CS[nt]; cu = CS[NT+nt]
                for r in range(4): a(f"v_fmac_f32 v{g+r}, v{cg+r}, v{mu[mt]}")
                for r in range(4): a(f"v_mul_f32 v{w[r]}, v{g+r}, v{ag[mt]}")
                for r in range(4): a(f"v_exp_f32 v{e[r]}, v{w[r]}")
                for r in range(4): a(f"v_fmac_f32 v{u_+r}, v{cu+r}, v{mu[mt]}")
                for r in range(4): a(f"v_add_f32 v{e[r]}, 1.0, v{e[r]}")
                for r in range(4): a(f"v_rcp_f32 v{e[r]}, v{e[r]}")
                for r in range(4): a(f"v_mul_f32 v{w[r]}, v{w[r]}, v{u_+r}")
                for r in range(4): a(f"v_mul_f32 v{w[r]}, v{w[r]}, v{e[r]}")
                a(f"v_cvt_pk_bf16_f32 v{pk}, v{w[0]}, v{w[1]}")
                a(f"v_cvt_pk_bf16_f32 v{pk+1}, v{w[2]}, v{w[3]}")
                a(f"s_add_u32 s31, s30, {nt*2048}")
                a(f"buffer_store_dwordx2 {vr(pk,2)}, v{vo}, s[12:15], s31 offen offset:{mt*256}")
                a("s_nop 0")
    a(f"s_branch {name}_end")
    a.label(f"{name}_loader")
    L = VAlloc(3)
    vd = L.get()
    ra, rb_ = (3, 7) if NST == 27 else ((1, 3) if NST == 10 else (2, 5))
    if os.environ.get('NOROT'): ra, rb_ = 0, 0
    a(f"""
    s_sub_u32 s18, s18, 4
    v_lshlrev_b32 v{vd}, 4, v2
    s_mul_i32 s50, s18, {NXI // (BM//64) * 1024}
    s_mul_i32 s30, s16, {(BM//64)*XTBS}
    s_add_u32 s50, s50, s30
    s_mul_i32 s25, s18, {NXI*1024}
    s_lshl_b32 s27, s18, 10
    s_add_u32 s27, s27, {XB}
    s_mul_i32 s51, s17, {(K//32)*NTT*1024}
    s_lshl_b32 s30, s18, 10
    s_add_u32 s51, s51, s30
    s_add_u32 s51, s51, {wsec}
    s_mul_i32 s30, s32, {ra}
    s_mul_i32 s31, s33, {rb_}
    s_add_u32 s44, s30, s31
    s_cmp_ge_u32 s44, {NST}
    s_cselect_b32 s30, {NST}, 0
    s_sub_u32 s44, s44, s30
    s_cmp_ge_u32 s44, {NST}
    s_cselect_b32 s30, {NST}, 0
    s_sub_u32 s44, s44, s30
    s_mov_b32 s46, 0
    s_waitcnt lgkmcnt(0)
    """)
    srd(a, 4, P['ws'], xbytes, xoff)
    srd(a, 8, P['ws'], WPX, WP_OFF)
    NWI = (NWT + 3)//4
    uneven = NWT % 4 != 0
    per_hi = NXI + NWI
    per_lo = NXI + NWI - (1 if uneven else 0)
    def issue_stage():
        a(f"s_mul_i32 s47, s44, {G*4*1024}\ns_add_u32 s47, s47, s50")
        a(f"s_mul_i32 s48, s44, {WB}\ns_add_u32 s48, s48, s51")
        a(f"s_add_u32 s52, s27, s46\ns_add_u32 s53, s25, s46")
        for i in range(NWI):
            lab = None
            if uneven and i == NWI - 1:
                lab = a.newlabel(name + "_sk")
                a(f"s_cmp_ge_u32 s18, {NWT % 4}\ns_cbranch_scc1 {lab}")
            a(f"s_add_u32 m0, s52, {i*4096}")
            a(f"s_add_u32 s31, s48, {i*4096}")
            if not os.environ.get("NODMAW"): a(f"buffer_load_dwordx4 v{vd}, s[8:11], s31 offen lds")
            if lab: a.label(lab)
        for i in range(NXI):
            c, tg = divmod(i, BM//64)
            a(f"s_add_u32 m0, s53, {i*1024}")
            a(f"s_add_u32 s31, s47, {c*1024 + tg*XTBS}")
            if not os.environ.get("NODMAX"): a(f"buffer_load_dwordx4 v{vd}, s[4:7], s31 offen lds")
        a(f"""
        s_add_u32 s44, s44, 1
        s_cmp_ge_u32 s44, {NST}
        s_cselect_b32 s30, {NST}, 0
        s_sub_u32 s44, s44, s30
        s_add_u32 s46, s46, {STG}
        s_cmp_ge_u32 s46, {D*STG}
        s_cselect_b32 s30, {D*STG}, 0
        s_sub_u32 s46, s46, s30
        """)
    def vmw(n_st, extra=0):
        if extra:
            if per_hi != per_lo:
                l1 = a.newlabel(name + "_w"); le = a.newlabel(name + "_w")
                a(f"s_cmp_ge_u32 s18, {NWT % 4}\ns_cbranch_scc1 {l1}")
                a(f"s_waitcnt vmcnt({per_hi*n_st + extra})\ns_branch {le}")
                a.label(l1)
                a(f"s_waitcnt vmcnt({per_lo*n_st + extra})")
                a.label(le)
            else:
                a(f"s_waitcnt vmcnt({per_hi*n_st + extra})")
            return
        if per_hi != per_lo:
            l1 = a.newlabel(name + "_w"); le = a.newlabel(name + "_w")
            a(f"s_cmp_ge_u32 s18, {NWT % 4}\ns_cbranch_scc1 {l1}")
            a(f"s_waitcnt vmcnt({per_hi*n_st})\ns_branch {le}")
            a.label(l1)
            a(f"s_waitcnt vmcnt({per_lo*n_st})")
            a.label(le)
        else:
            a(f"s_waitcnt vmcnt({per_hi*n_st})")
    if kind in ('wo', 'gu') and not os.environ.get("NOPF"):
        nlines = 8960 if kind == 'wo' else 8640
        base = WP_GU if kind == 'wo' else WP_WD
        msk = 3 if kind == 'wo' else 1
        pf = L.get(); pfd = L.get()
        PFTXT = f"""
        s_lshr_b32 s30, s2, 3
        s_lshl_b32 s30, s30, 2
        s_add_u32 s30, s30, s18
        s_mul_i32 s30, s30, {70*128}
        s_and_b32 s31, s35, {msk}
        s_mul_i32 s31, s31, {nlines*128}
        s_add_u32 s30, s30, s31
        s_add_u32 s30, s30, {base}
        v_lshlrev_b32 v{pf}, 7, v2
        buffer_load_dword v{pfd}, v{pf}, s[8:11], s30 offen
        s_add_u32 s30, s30, {64*128}
        s_mov_b64 exec, 0x3f
        buffer_load_dword v{pfd}, v{pf}, s[8:11], s30 offen
        s_mov_b64 exec, -1
        """
    do_pf = kind in ('wo', 'gu') and not os.environ.get("NOPF")
    a("; STAMP 4")
    issued = min(2, D)
    plan = []
    for j in range(NST):
        ow = issued - 1 - j
        lim = min(NST, max(D, j - 1 + D))
        n_new = max(0, min(2, lim - issued))
        plan.append((ow, n_new)); issued += n_new
    assert issued == NST
    runs = []
    for p in plan:
        if runs and runs[-1][0] == p: runs[-1][1] += 1
        else: runs.append([p, 1])
    for _ in range(min(2, D)): issue_stage()
    tot = min(2, D); extra = 0
    for (ow, nn), cnt in runs:
        if cnt > 1:
            lab = a.newlabel(name + "_ll")
            a(f"s_mov_b32 s49, 0")
            a.label(lab)
            vmw(ow, extra); a("s_barrier")
            for _ in range(nn): issue_stage()
            a(f"s_add_u32 s49, s49, 1\ns_cmp_lt_u32 s49, {cnt}\ns_cbranch_scc1 {lab}")
        else:
            vmw(ow, extra); a("s_barrier")
            for _ in range(nn): issue_stage()
        tot += nn*cnt
        if tot == NST and do_pf and not extra:
            a(PFTXT); extra = 2
    a.label(f"{name}_end")
    a("s_endpgm")
    return a.text(), max(V.hi, L.hi), D*STG
```

```python
from common import *

import os
def k_qkv(name="qkv_kernel"):
    a = Asm()
    D = 4; NST = 10; STG = 32768
    STATS = D*STG
    QS = (DH ** -0.5) * math.log2(math.e)
    entry(a, name)
    a(f"""
    s_cmp_ge_u32 s2, 240
    s_cbranch_scc1 {name}_colsum
    s_and_b32 s30, s2, 7          ; xcd
    s_lshr_b32 s31, s2, 3         ; idx 0..29
    s_and_b32 s32, s30, 1
    s_mul_i32 s32, s32, 30
    s_add_u32 s32, s32, s31       ; t 0..59
    s_lshr_b32 s17, s32, 2        ; cb
    s_and_b32 s33, s32, 3
    s_lshr_b32 s30, s30, 1
    s_lshl_b32 s30, s30, 2
    s_add_u32 s16, s30, s33       ; rb
    s_cmp_ge_u32 s18, 8
    s_cbranch_scc1 {name}_stats
    s_cmp_ge_u32 s18, 4
    s_cbranch_scc1 {name}_loader
    s_lshr_b32 s19, s18, 1        ; wm
    s_and_b32 s20, s18, 1         ; wn
    """)
    V = VAlloc(3)
    t0 = V.get(); t1 = V.get(); t2 = V.get(); t3 = V.get()
    lX = [[V.get() for sm in range(2)] for s in range(4)]
    lW = [V.get() for sn in range(2)]
    aX = [[V.get() for sm in range(2)] for s in range(4)]
    aW = [V.get() for sn in range(2)]
    a(f"""
    v_and_b32 v{t0}, 31, v2               ; r
    v_lshrrev_b32 v{t1}, 5, v2            ; hh
    v_bfe_u32 v{t2}, v{t0}, 1, 3          ; f
    v_xor_b32 v{t2}, v{t2}, v{t1}
    v_lshlrev_b32 v{t2}, 4, v{t2}
    v_lshl_add_u32 v{t2}, v{t0}, 7, v{t2}
    s_lshl_b32 s30, s19, 13
    s_lshl_b32 s31, s20, 12
    s_add_u32 s30, s30, s31
    v_add_u32 v{t2}, s30, v{t2}
    """)
    for s in range(4):
        a(f"v_xor_b32 v{lX[s][0]}, {s*32}, v{t2}")
        a(f"v_xor_b32 v{lX[s][1]}, 0x1000, v{lX[s][0]}")
    a(f"""
    v_lshrrev_b32 v{t0}, 5, v2            ; g>>1
    v_bfe_u32 v{t1}, v2, 2, 2             ; rr
    v_lshl_add_u32 v{t0}, v{t0}, 3, v{t1}
    v_lshlrev_b32 v{t0}, 8, v{t0}
    v_bfe_u32 v{t2}, v2, 4, 1
    v_lshlrev_b32 v{t2}, 1, v{t2}
    v_bfe_u32 v{t3}, v2, 1, 1
    v_add_u32 v{t2}, v{t2}, v{t3}
    s_lshl_b32 s30, s20, 3
    s_lshl_b32 s31, s19, 2
    s_add_u32 s30, s30, s31
    v_add_u32 v{t2}, s30, v{t2}
    v_lshlrev_b32 v{t1}, 2, v{t1}
    v_xor_b32 v{t2}, v{t2}, v{t1}
    v_lshl_add_u32 v{t0}, v{t2}, 4, v{t0}
    v_and_b32 v{t3}, 1, v2
    v_lshl_add_u32 v{lW[0]}, v{t3}, 3, v{t0}
    v_add_u32 v{lW[0]}, 16384, v{lW[0]}
    v_xor_b32 v{lW[1]}, 64, v{lW[0]}
    """)
    XF = [[V.get(4, 4) for sm in range(2)] for b in range(2)]
    WF = [[V.get(4, 4) for sn in range(2)] for b in range(2)]
    ACC = [[V.get(16, 4) for j in range(2)] for i in range(2)]
    CSA = V.get(4, 4); ONE = V.get(2, 2)
    for i in range(2):
        for j in range(2):
            for r in range(16):
                a(f"v_mov_b32 v{ACC[i][j]+r}, 0")
    for r in range(4):
        a(f"v_mov_b32 v{CSA+r}, 0")
        for j in range(2):
            a(f"v_mov_b32 v{XF[1][j]+r}, 0\nv_mov_b32 v{WF[1][j]+r}, 0")
    a(f"v_mov_b32 v{ONE}, 0x3f803f80\nv_mov_b32 v{ONE+1}, 0x3f803f80")
    def read_frags(s):
        b = s & 1
        for sm in range(2):
            a(f"ds_read_b128 {vr(XF[b][sm],4)}, v{aX[s][sm]}")
        for sn in range(2):
            for jh in range(2):
                a(f"ds_read_b64_tr_b16 {vr(WF[b][sn]+2*jh,2)}, v{aW[sn]} offset:{s*4096 + jh*1024}")
    def mfmas(b, vmode):
        k = 0
        for sn in range(2):
            for sm in range(2):
                if os.environ.get("NOMFMA"): pass
                elif vmode:
                    a(f"v_mfma_f32_32x32x16_bf16 {vr(ACC[sn][sm],16)}, {vr(XF[b][sm],4)}, {vr(WF[b][sn],4)}, {vr(ACC[sn][sm],16)}")
                else:
                    a(f"v_mfma_f32_32x32x16_bf16 {vr(ACC[sn][sm],16)}, {vr(WF[b][sn],4)}, {vr(XF[b][sm],4)}, {vr(ACC[sn][sm],16)}")
                if k in (1, 3) and not os.environ.get("NOCS"):
                    h_ = k >> 1
                    a(f"v_mfma_f32_4x4x4_16b_bf16 {vr(CSA,4)}, {vr(WF[b][0]+2*h_,2)}, {vr(ONE,2)}, {vr(CSA,4)}")
                k += 1
    def mainloop(vmode, lab):
        a("s_mov_b32 s49, 0\ns_mov_b32 s45, 0")
        a("; STAMP 0")
        a.label(lab)
        a("s_waitcnt lgkmcnt(0)")
        a("s_barrier")
        for s in range(4):
            for sm in range(2):
                a(f"v_add_u32 v{aX[s][sm]}, s45, v{lX[s][sm]}")
        for sn in range(2):
            a(f"v_add_u32 v{aW[sn]}, s45, v{lW[sn]}")
        read_frags(0)
        mfmas(1, vmode)
        for s in range(3):
            a("s_waitcnt lgkmcnt(0)")
            read_frags(s + 1)
            mfmas(s & 1, vmode)
        a(f"""
        s_add_u32 s45, s45, {STG}
        s_and_b32 s45, s45, {D*STG-1}
        s_add_u32 s49, s49, 1
        s_cmp_lt_u32 s49, {NST}
        s_cbranch_scc1 {lab}
        s_waitcnt lgkmcnt(0)
        """)
        mfmas(1, vmode)
        a("; STAMP 2")
    def cs_publish():
        a(f"""
        s_nop 7
        v_and_b32 v{t0}, 3, v2
        v_cmp_eq_u32 vcc, 1, v{t0}
        v_cmp_eq_u32 s[30:31], 2, v{t0}
        v_cmp_eq_u32 s[32:33], 3, v{t0}
        s_nop 1
        v_cndmask_b32 v{t1}, v{CSA}, v{CSA+1}, vcc
        v_cndmask_b32 v{t1}, v{t1}, v{CSA+2}, s[30:31]
        v_cndmask_b32 v{t1}, v{t1}, v{CSA+3}, s[32:33]
        v_mov_b32 v{t2}, v{t1}
        s_nop 1
        v_permlane32_swap_b32 v{t2}, v{t1}
        s_nop 1
        v_add_f32 v{t1}, v{t1}, v{t2}
        v_and_b32 v{t0}, 31, v2
        s_lshl_b32 s30, s20, 6
        s_lshl_b32 s31, s19, 5
        s_add_u32 s30, s30, s31
        v_add_lshl_u32 v{t2}, v{t0}, s30, 2
        v_add_u32 v{t2}, {STATS}, v{t2}
        ds_write_b32 v{t2}, v{t1} offset:1024
        s_waitcnt lgkmcnt(0)
        s_barrier
        """)
        a("; STAMP 3")
    a("s_waitcnt lgkmcnt(0)")
    srd(a, 12, P['ws'], 3*REG)
    a(f"s_cmp_ge_u32 s17, 10\ns_cbranch_scc1 {name}_vpath")
    mainloop(False, f"{name}_lq")
    cs_publish()
    mk = V.mark()
    am = [V.get(), V.get()]; bm = [V.get(), V.get()]
    csr = [V.get(4, 4), V.get(4, 4)]; pk = [V.get(2, 2), V.get(2,2)]; vo = V.get(); vca = V.get(); w = [V.get() for _ in range(4)]
    th = V.get()
    a(f"""
    v_and_b32 v{t0}, 31, v2
    s_lshl_b32 s30, s19, 6
    s_lshl_b32 s31, s20, 5
    s_add_u32 s30, s30, s31
    v_add_lshl_u32 v{t1}, v{t0}, s30, 2
    v_add_u32 v{t1}, {STATS}, v{t1}
    v_xor_b32 v{t2}, 128, v{t1}
    ds_read_b32 v{am[0]}, v{t1}
    ds_read_b32 v{bm[0]}, v{t1} offset:512
    ds_read_b32 v{am[1]}, v{t2}
    ds_read_b32 v{bm[1]}, v{t2} offset:512
    v_lshrrev_b32 v{th}, 5, v2        ; hh
    v_lshlrev_b32 v{vca}, 4, v{th}
    s_lshl_b32 s30, s20, 8
    s_add_u32 s30, s30, {STATS}
    v_add_u32 v{vca}, s30, v{vca}
    s_cmp_lt_u32 s17, 5
    s_cselect_b32 s34, {f32bits(QS)}, 1.0
    s_cselect_b32 s35, {QF_OFF}, {KF_OFF}
    s_cselect_b32 s30, 0, 5
    s_sub_u32 s30, s17, s30              ; cbl
    s_lshl_b32 s31, s30, 5
    s_lshl_b32 s33, s20, 4
    s_add_u32 s31, s31, s33
    s_lshl_b32 s31, s31, 8
    s_add_u32 s35, s35, s31
    s_lshl_b32 s31, s16, 2
    s_lshl_b32 s33, s19, 1
    s_add_u32 s31, s31, s33
    s_mul_i32 s31, s31, 40960
    s_add_u32 s35, s35, s31
    v_lshlrev_b32 v{vo}, 8, v{th}
    v_lshl_add_u32 v{vo}, v{t0}, 3, v{vo}
    s_mul_i32 s46, s20, 40960
    s_sub_u32 s47, 40960, s46
    s_add_u32 s46, s46, s35
    s_add_u32 s47, s47, s35
    s_lshl_b32 s48, s19, 11
    s_sub_u32 s49, 2048, s48
    s_lshl_b32 s50, s19, 7
    s_sub_u32 s51, 128, s50
    v_add_u32 v{t1}, s50, v{vca}
    v_add_u32 v{t2}, s51, v{vca}
    ds_read_b128 {vr(csr[0],4)}, v{t1} offset:1024
    s_waitcnt lgkmcnt(1)
    v_mul_f32 v{am[0]}, s34, v{am[0]}
    v_mul_f32 v{bm[0]}, s34, v{bm[0]}
    v_mul_f32 v{am[1]}, s34, v{am[1]}
    v_mul_f32 v{bm[1]}, s34, v{bm[1]}
    """)
    items = [(sn, aa) for sn in range(2) for aa in range(4)]
    for i, (sn, aa) in enumerate(items):
        if i + 1 < len(items):
            sn2, aa2 = items[i+1]
            a(f"ds_read_b128 {vr(csr[(i+1)&1],4)}, v{t1 if sn2 == 0 else t2} offset:{1024 + aa2*32}")
            a("s_waitcnt lgkmcnt(1)")
        else:
            a("s_waitcnt lgkmcnt(0)")
        c = csr[i & 1]
        for sm in range(2):
            acc = ACC[sn][sm] + 4*aa
            for r in range(4): a(f"v_mul_f32 v{w[r]}, v{c+r}, v{bm[sm]}")
            for r in range(4): a(f"v_fmac_f32 v{w[r]}, v{acc+r}, v{am[sm]}")
            a(f"v_cvt_pk_bf16_f32 v{pk[sm]}, v{w[0]}, v{w[1]}")
            a(f"v_cvt_pk_bf16_f32 v{pk[sm]+1}, v{w[2]}, v{w[3]}")
            a(f"s_add_u32 s30, s{46+sm}, s{48+sn}")
            a(f"buffer_store_dwordx2 {vr(pk[sm],2)}, v{vo}, s[12:15], s30 offen offset:{aa*512}")
    a(f"s_branch {name}_end")
    a.label(f"{name}_vpath")
    V.reset(mk)
    mainloop(True, f"{name}_lv")
    cs_publish()
    csn = [V.get(), V.get()]
    rs4 = [V.get(4, 4), V.get(4, 4)]; nb4 = [V.get(4, 4), V.get(4, 4)]; pk4 = V.get(4, 4); vo = V.get(); vra = V.get()
    wv = [V.get() for _ in range(8)]; th = V.get()
    a(f"""
    v_and_b32 v{t0}, 31, v2
    v_lshrrev_b32 v{th}, 5, v2        ; hh
    s_lshl_b32 s30, s20, 6
    s_lshl_b32 s31, s19, 5
    s_add_u32 s30, s30, s31
    v_add_lshl_u32 v{t1}, v{t0}, s30, 2
    v_add_u32 v{t1}, {STATS}, v{t1}
    v_xor_b32 v{t2}, 128, v{t1}
    ds_read_b32 v{csn[0]}, v{t1} offset:1024
    ds_read_b32 v{csn[1]}, v{t2} offset:1024
    v_lshlrev_b32 v{vra}, 4, v{th}
    s_lshl_b32 s30, s19, 8
    s_add_u32 s30, s30, {STATS}
    v_add_u32 v{vra}, s30, v{vra}
    s_lshl_b32 s30, s16, 3
    s_lshl_b32 s31, s19, 2
    s_add_u32 s30, s30, s31
    s_mul_i32 s30, s30, 20480
    s_sub_u32 s31, s17, 10
    s_lshl_b32 s31, s31, 7
    s_lshl_b32 s33, s20, 6
    s_add_u32 s31, s31, s33
    s_lshl_b32 s31, s31, 4
    s_add_u32 s35, s30, s31
    s_add_u32 s35, s35, {VT_OFF}
    v_mul_u32_u24 v{vo}, 10240, v{th}
    v_lshl_add_u32 v{vo}, v{t0}, 4, v{vo}
    s_mul_i32 s46, s20, 40960
    s_sub_u32 s47, 40960, s46
    s_add_u32 s46, s46, s35
    s_add_u32 s47, s47, s35
    s_lshl_b32 s48, s19, 9
    s_sub_u32 s49, 512, s48
    s_lshl_b32 s50, s20, 7
    s_sub_u32 s51, 128, s50
    v_add_u32 v{t1}, s50, v{vra}
    v_add_u32 v{t2}, s51, v{vra}
    s_waitcnt lgkmcnt(0)
    """)
    for sm in range(2):
        ad = t1 if sm == 0 else t2
        for g in range(2):
            for ah in range(2):
                aa = 2*g + ah
                a(f"ds_read_b128 {vr(rs4[ah],4)}, v{ad} offset:{aa*32}")
                a(f"ds_read_b128 {vr(nb4[ah],4)}, v{ad} offset:{512 + aa*32}")
            a("s_waitcnt lgkmcnt(0)")
            for sn in range(2):
                for ah in range(2):
                    acc = ACC[sn][sm] + 4*(2*g + ah)
                    for i in range(4): a(f"v_mul_f32 v{wv[4*ah+i]}, v{nb4[ah]+i}, v{csn[sn]}")
                    for i in range(4): a(f"v_fmac_f32 v{wv[4*ah+i]}, v{acc+i}, v{rs4[ah]+i}")
                for i in range(4):
                    a(f"v_cvt_pk_bf16_f32 v{pk4+i}, v{wv[2*i]}, v{wv[2*i+1]}")
                a(f"s_add_u32 s30, s{46+sm}, s{48+sn}")
                a(f"s_add_u32 s30, s30, {g*20480}")
                a(f"buffer_store_dwordx4 {vr(pk4,4)}, v{vo}, s[12:15], s30 offen")
                a("s_nop 1")
    a(f"s_branch {name}_end")
    a.label(f"{name}_loader")
    L = VAlloc(3)
    t0 = L.get(); t1 = L.get(); t2 = L.get(); t3 = L.get()
    vXd = [L.get(), L.get()]; vWd = L.get()
    a(f"""
    s_sub_u32 s18, s18, 4
    s_mul_i32 s21, s16, {128*1280}
    s_mul_i32 s30, s18, {32*1280}
    s_add_u32 s21, s21, s30
    s_mul_i32 s22, s18, {16*3840}
    s_lshl_b32 s30, s17, 8
    s_add_u32 s22, s22, s30
    s_lshl_b32 s23, s18, 12
    s_add_u32 s24, s23, 16384
    v_lshrrev_b32 v{t0}, 3, v2
    v_and_b32 v{t1}, 7, v2
    v_lshrrev_b32 v{t2}, 1, v{t0}
    v_xor_b32 v{t3}, v{t1}, v{t2}
    v_mul_u32_u24 v{t0}, 1280, v{t0}
    v_lshl_add_u32 v{vXd[0]}, v{t3}, 4, v{t0}
    v_xor_b32 v{t3}, 4, v{t3}
    v_lshl_add_u32 v{vXd[1]}, v{t3}, 4, v{t0}
    v_lshrrev_b32 v{t0}, 4, v2
    v_and_b32 v{t1}, 15, v2
    v_lshlrev_b32 v{t2}, 2, v{t0}
    v_xor_b32 v{t1}, v{t1}, v{t2}
    v_mul_u32_u24 v{t0}, 3840, v{t0}
    v_lshl_add_u32 v{vWd}, v{t1}, 4, v{t0}
    s_waitcnt lgkmcnt(0)
    """)
    srd(a, 4, P['x'], REG)
    srd(a, 8, P['wqkv'], DM*3*DM*2)
    def dma(i):
        if i == 0:
            a(f"s_lshl_b32 s47, s44, 7\ns_mul_i32 s48, s44, {64*3840}")
        if i < 4:
            a(f"s_add_u32 s30, s24, s46\ns_add_u32 m0, s30, {i*1024}")
            a(f"s_add_u32 s31, s22, s48\ns_add_u32 s31, s31, {i*4*3840}")
            if not os.environ.get("NODMAW"): a(f"buffer_load_dwordx4 v{vWd}, s[8:11], s31 offen lds")
        else:
            i -= 4
            a(f"s_add_u32 s30, s23, s46\ns_add_u32 m0, s30, {i*1024}")
            a(f"s_add_u32 s31, s21, s47\ns_add_u32 s31, s31, {i*8*1280}")
            if not os.environ.get("NODMAX"): a(f"buffer_load_dwordx4 v{vXd[i&1]}, s[4:7], s31 offen lds")
    def adv():
        a(f"""
        s_add_u32 s44, s44, 1
        s_cmp_ge_u32 s44, {NST}
        s_cselect_b32 s30, {NST}, 0
        s_sub_u32 s44, s44, s30
        s_add_u32 s46, s46, {STG}
        s_and_b32 s46, s46, {D*STG-1}
        """)
    a("; STAMP 4")
    RA, RB = [int(x) for x in os.environ.get("QROT", "0,0").split(",")]
    a(f"""
    s_and_b32 s30, s16, 3
    s_mul_i32 s30, s30, {RA}
    s_mul_i32 s31, s17, {RB}
    s_add_u32 s44, s30, s31
    s_mul_i32 s30, s44, 6554
    s_lshr_b32 s30, s30, 16
    s_mul_i32 s30, s30, 10
    s_sub_u32 s44, s44, s30
    s_mov_b32 s46, 0
    """)
    if os.environ.get("NOROT"): a("s_mov_b32 s44, 0")
    for st in range(2):
        for i in range(8): dma(i)
        adv()
    def lbody(n_wait, n_issue, stamp=None):
        a(f"s_waitcnt vmcnt({n_wait})")
        if stamp is not None: a(f"; STAMP {stamp}")
        a("s_barrier")
        for _ in range(n_issue):
            for i in range(8): dma(i)
            adv()
    lbody(8, 2, 5)
    a("s_mov_b32 s49, 1")
    a.label(f"{name}_lloop")
    lbody(8*(D-2), 1)
    a(f"s_add_u32 s49, s49, 1\ns_cmp_le_u32 s49, {NST-D}\ns_cbranch_scc1 {name}_lloop")
    for j in range(NST-D+1, NST):
        lbody(8*(NST-1-j), 0, 6 if j == NST-1 else None)
    a("s_barrier")
    a(f"s_branch {name}_end")
    a.label(f"{name}_stats")
    T = VAlloc(3)
    t0 = T.get(); t1 = T.get(); t2 = T.get()
    lS = [T.get() for _ in range(4)]; aS = [T.get() for _ in range(4)]
    XS = [T.get(4, 4) for _ in range(4)]
    su = [T.get(), T.get()]; sq = [T.get(), T.get()]; u0 = T.get(); u1 = T.get(); u2 = T.get(); u3 = T.get()
    a(f"""
    s_sub_u32 s18, s18, 8
    s_lshl_b32 s23, s18, 12
    v_and_b32 v{t0}, 31, v2
    v_lshrrev_b32 v{t1}, 5, v2
    v_lshlrev_b32 v{t1}, 2, v{t1}
    v_bfe_u32 v{t2}, v{t0}, 1, 3
    v_xor_b32 v{t2}, v{t2}, v{t1}
    v_lshlrev_b32 v{t2}, 4, v{t2}
    v_lshl_add_u32 v{t2}, v{t0}, 7, v{t2}
    v_add_u32 v{t2}, s23, v{t2}
    """)
    for c in range(4):
        a(f"v_xor_b32 v{lS[c]}, {c*16}, v{t2}")
    for r in su + sq: a(f"v_mov_b32 v{r}, 0")
    a("s_mov_b32 s49, 0\ns_mov_b32 s45, 0")
    a.label(f"{name}_sloop")
    a("s_barrier")
    for c in range(4):
        a(f"v_add_u32 v{aS[c]}, s45, v{lS[c]}")
    for c in range(4):
        a(f"ds_read_b128 {vr(XS[c],4)}, v{aS[c]}")
    for c in range(4):
        a(f"s_waitcnt lgkmcnt({3-c})")
        if os.environ.get("NOSTATS"): continue
        for r in range(0, 4, 2):
            x = XS[c] + r
            a(f"""
            v_lshlrev_b32 v{u0}, 16, v{x}
            v_and_b32 v{u1}, 0xffff0000, v{x}
            v_lshlrev_b32 v{u2}, 16, v{x+1}
            v_and_b32 v{u3}, 0xffff0000, v{x+1}
            v_add_f32 v{su[0]}, v{su[0]}, v{u0}
            v_fmac_f32 v{sq[0]}, v{u0}, v{u0}
            v_add_f32 v{su[1]}, v{su[1]}, v{u1}
            v_fmac_f32 v{sq[1]}, v{u1}, v{u1}
            v_add_f32 v{su[0]}, v{su[0]}, v{u2}
            v_fmac_f32 v{sq[0]}, v{u2}, v{u2}
            v_add_f32 v{su[1]}, v{su[1]}, v{u3}
            v_fmac_f32 v{sq[1]}, v{u3}, v{u3}
            """)
    a(f"""
    s_add_u32 s45, s45, {STG}
    s_and_b32 s45, s45, {D*STG-1}
    s_add_u32 s49, s49, 1
    s_cmp_lt_u32 s49, {NST}
    s_cbranch_scc1 {name}_sloop
    v_add_f32 v{su[0]}, v{su[0]}, v{su[1]}
    v_add_f32 v{sq[0]}, v{sq[0]}, v{sq[1]}
    v_mov_b32 v{u0}, v{su[0]}
    v_mov_b32 v{u1}, v{sq[0]}
    s_nop 1
    v_permlane32_swap_b32 v{u0}, v{su[0]}
    v_permlane32_swap_b32 v{u1}, v{sq[0]}
    s_nop 1
    v_add_f32 v{su[0]}, v{su[0]}, v{u0}
    v_add_f32 v{sq[0]}, v{sq[0]}, v{u1}
    s_mov_b32 s30, {f32bits(1.0/DM)}
    v_mul_f32 v{su[0]}, s30, v{su[0]}
    v_mul_f32 v{sq[0]}, s30, v{sq[0]}
    v_fma_f32 v{sq[0]}, -v{su[0]}, v{su[0]}, v{sq[0]}
    v_max_f32 v{sq[0]}, 0, v{sq[0]}
    v_add_f32 v{sq[0]}, {f32bits(1e-5)}, v{sq[0]}
    v_rsq_f32 v{sq[0]}, v{sq[0]}
    s_nop 0
    v_mul_f32 v{su[0]}, v{su[0]}, v{sq[0]}
    v_sub_f32 v{su[0]}, 0, v{su[0]}
    v_and_b32 v{t0}, 31, v2
    s_lshl_b32 s30, s18, 7
    s_add_u32 s30, s30, {STATS}
    v_lshlrev_b32 v{t0}, 2, v{t0}
    v_add_u32 v{t0}, s30, v{t0}
    ds_write_b32 v{t0}, v{sq[0]}
    ds_write_b32 v{t0}, v{su[0]} offset:512
    s_waitcnt lgkmcnt(0)
    s_barrier
    s_branch {name}_end
    """)
    a.label(f"{name}_colsum")
    a(f"""
    s_cmp_ge_u32 s18, 8
    s_cbranch_scc1 {name}_csb
    s_sub_u32 s30, s2, 240
    s_lshr_b32 s31, s30, 3
    s_and_b32 s32, s30, 7
    s_waitcnt lgkmcnt(0)
    s_cmp_eq_u32 s31, 0
    s_cselect_b32 s4, s{P['wg']}, s{P['wu']}
    s_cselect_b32 s5, s{P['wg']+1}, s{P['wu']+1}
    s_mov_b32 s6, {DM*FF*2}
    s_mov_b32 s7, 0x00020000
    """)
    srd(a, 12, P['ws'], CS_BYTES, CS_OFF)
    C = VAlloc(3)
    c0 = C.get(); c1 = C.get(); vo = C.get()
    acc = C.get(8, 4)
    buf = C.get(80, 4)
    a(f"""
    v_and_b32 v{c0}, 31, v0              ; chunk c
    v_lshrrev_b32 v{c1}, 5, v0
    v_mul_u32_u24 v{vo}, {40*FF*2}, v{c1}
    v_lshl_add_u32 v{vo}, v{c0}, 4, v{vo}
    s_mul_i32 s33, s32, 432
    s_mov_b32 s46, 0x00003f80
    s_mov_b32 s47, 0x3f800000
    s_mov_b32 s49, 0
    """)
    for i in range(8):
        a(f"v_mov_b32 v{acc+i}, 0")
    a.label(f"{name}_csl")
    for i in range(20):
        a(f"s_add_u32 s30, s33, {i*FF*2}")
        a(f"buffer_load_dwordx4 {vr(buf+4*i,4)}, v{vo}, s[4:7], s30 offen")
    for i in range(20):
        a(f"s_waitcnt vmcnt({19-i})")
        for r in range(4):
            a(f"v_dot2c_f32_bf16 v{acc+2*r}, s46, v{buf+4*i+r}")
            a(f"v_dot2c_f32_bf16 v{acc+2*r+1}, s47, v{buf+4*i+r}")
    a(f"""
    s_add_u32 s33, s33, {20*FF*2}
    s_add_u32 s49, s49, 1
    s_cmp_lt_u32 s49, 2
    s_cbranch_scc1 {name}_csl
    s_nop 3
    v_lshlrev_b32 v{c1}, 5, v0
    ds_write_b128 v{c1}, {vr(acc,4)}
    ds_write_b128 v{c1}, {vr(acc+4,4)} offset:16
    s_waitcnt lgkmcnt(0)
    s_barrier
    v_lshlrev_b32 v{c1}, 2, v0
    """)
    for rg in range(16):
        a(f"ds_read_b32 v{buf+rg}, v{c1} offset:{rg*1024}")
    a("s_waitcnt lgkmcnt(0)")
    for rg in range(1, 16):
        a(f"v_add_f32 v{buf}, v{buf}, v{buf+rg}")
    a(f"""
    s_mul_i32 s30, s31, {FF*4}
    s_mul_i32 s33, s32, {216*4}
    s_add_u32 s30, s30, s33
    v_cmp_gt_u32 vcc, 216, v0
    s_and_saveexec_b64 s[34:35], vcc
    s_cbranch_execz {name}_end
    buffer_store_dword v{buf}, v{c1}, s[12:15], s30 offen
    """)
    a(f"s_branch {name}_end")
    a.label(f"{name}_csb")
    a("s_barrier")
    a.label(f"{name}_end")
    a("s_endpgm")
    return a.text(), max(V.hi, L.hi, C.hi, T.hi), D*STG + 2048
```

```python
from common import *
import os

def k_attn(name="attn_kernel"):
    a = Asm()
    KH = 8192; VOFF = 10240
    CH = VOFF + 33*336
    NCH = 8; NB = 3
    FLAG = NB*CH + 256
    RPK = (FLAG + 64 + 255)//256*256
    CSTR = 327680
    entry(a, name)
    a(f"""
    s_and_b32 s30, s2, 7                 ; xcd
    s_lshr_b32 s31, s2, 3                ; idx 0..31
    s_lshr_b32 s32, s31, 3
    s_lshl_b32 s16, s30, 2
    s_add_u32 s16, s16, s32              ; head
    s_and_b32 s17, s31, 7                ; qblock
    s_cmp_ge_u32 s18, 8
    s_cbranch_scc1 {name}_svc
    """)
    V = VAlloc(3)
    t0 = V.get(); t1 = V.get(); t2 = V.get(); t3 = V.get(); t4 = V.get()
    Q1 = V.get(4, 4); Q2 = V.get(4, 4)
    SS = [V.get(16, 4), V.get(16, 4)]
    PP = [V.get(4, 4), V.get(4, 4)]
    OO = V.get(16, 4)
    K1 = [V.get(4, 4), V.get(4, 4)]; K2 = [V.get(4, 4), V.get(4, 4)]
    V1 = [V.get(4, 4), V.get(4, 4)]; V2 = [V.get(4, 4), V.get(4, 4)]
    lk = V.get(); lk2 = V.get(); lv = V.get()
    ck = V.get(); ck2 = V.get(); cv = V.get()
    nk = V.get(); nk2 = V.get(); nv = V.get()
    vm = V.get(); vq = V.get(); vhh = V.get()
    a(f"""
    s_lshl_b32 s30, s17, 3
    s_add_u32 s30, s30, s18              ; q tile
    s_mul_i32 s30, s30, 40960
    s_mul_i32 s31, s16, 1280
    s_add_u32 s24, s30, s31
    v_and_b32 v{vq}, 31, v2
    v_lshrrev_b32 v{vhh}, 5, v2
    v_lshlrev_b32 v{lk2}, 3, v{vq}
    v_lshl_add_u32 v{lk}, v{vhh}, 9, v{lk2}
    v_mul_u32_u24 v{t4}, 336, v{vhh}
    v_lshl_add_u32 v{lv}, v{vq}, 4, v{t4}
    v_add_u32 v{lv}, {VOFF}, v{lv}
    ; ones rows: thread t<96: buffer = t/32, piece = t%32
    v_lshrrev_b32 v{t0}, 5, v0
    v_mul_u32_u24 v{t0}, {CH}, v{t0}
    v_and_b32 v{t1}, 31, v0
    v_mul_u32_u24 v{t1}, 336, v{t1}
    v_add_u32 v{t0}, v{t0}, v{t1}
    v_add_u32 v{t0}, {VOFF+320}, v{t0}
    v_mov_b32 v{SS[0]}, 0x3f803f80
    v_mov_b32 v{SS[0]+1}, 0x3f803f80
    v_mov_b32 v{SS[0]+2}, 0x3f803f80
    v_mov_b32 v{SS[0]+3}, 0x3f803f80
    v_cmp_gt_u32 vcc, 96, v0
    s_and_saveexec_b64 s[30:31], vcc
    s_cbranch_execz {name}_no1
    ds_write_b128 v{t0}, {vr(SS[0],4)}
    """)
    a.label(f"{name}_no1")
    a(f"""
    s_mov_b64 exec, -1
    v_mov_b32 v{t0}, {FLAG}
    v_mov_b32 v{t1}, 0
    ds_write_b32 v{t0}, v{t1}
    v_cmp_gt_u32 s[28:29], 32, v2
    v_mov_b32 v{Q2+2}, 0
    v_mov_b32 v{Q2+3}, 0
    s_waitcnt lgkmcnt(0)
    """)
    srd(a, 8, P['ws'], REG, QF_OFF)
    srd(a, 12, P['ws'], REG, O_OFF)
    a(f"""
    buffer_load_dwordx2 {vr(Q1,2)}, v{lk}, s[8:11], s24 offen
    buffer_load_dwordx2 {vr(Q1+2,2)}, v{lk}, s[8:11], s24 offen offset:256
    buffer_load_dwordx2 {vr(Q2,2)}, v{lk2}, s[8:11], s24 offen offset:1024
    v_add_u32 v{lk2}, {KH}, v{lk2}
    """)
    for b in range(2):
        a(f"v_mov_b32 v{K2[b]+2}, 0x3f803f80")
        a(f"v_mov_b32 v{K2[b]+3}, 0x00003f80")
    def readK(buf, t, nxt):
        ak, ak2 = (nk, nk2) if nxt else (ck, ck2)
        a(f"ds_read_b64 {vr(K1[buf],2)}, v{ak} offset:{t*1024}")
        a(f"ds_read_b64 {vr(K1[buf]+2,2)}, v{ak} offset:{t*1024 + 256}")
        a(f"ds_read_b64 {vr(K2[buf],2)}, v{ak2} offset:{t*256}")
    def readV(buf, t, nxt):
        av = nv if nxt else cv
        a(f"ds_read_b128 {vr(V1[buf],4)}, v{av} offset:{t*4*336}")
        a(f"ds_read_b128 {vr(V2[buf],4)}, v{av} offset:{(t*4+2)*336}")
    def mf(d, A, B, C):
        a(f"v_mfma_f32_32x32x16_bf16 {vr(d,16)}, {vr(A,4)}, {vr(B,4)}, {C}")
    def smfma(sb, kb):
        mf(SS[sb], K1[kb], Q1, "0"); mf(SS[sb], K2[kb], Q2, vr(SS[sb],16))
    def set_m():
        a(f"""
        v_sub_f32 v{t0}, 0, v{vm}
        v_and_b32 v{t1}, 0xffff0000, v{t0}
        v_sub_f32 v{t0}, v{t0}, v{t1}
        v_and_b32 v{t3}, 0xffff0000, v{t0}
        v_sub_f32 v{t0}, v{t0}, v{t3}
        v_lshrrev_b32 v{t1}, 16, v{t1}
        v_or_b32 v{t1}, v{t1}, v{t3}
        v_lshrrev_b32 v{t0}, 16, v{t0}
        v_cndmask_b32 v{Q2+2}, 0, v{t1}, s[28:29]
        v_cndmask_b32 v{Q2+3}, 0, v{t0}, s[28:29]
        s_nop 1
        """)
    def max16(sb, first):
        s = SS[sb]
        if first: a(f"v_max_f32 v{vm}, v{s}, v{s+1}")
        else: a(f"v_max3_f32 v{vm}, v{s}, v{s+1}, v{vm}")
        for r in range(2, 16, 2):
            a(f"v_max3_f32 v{vm}, v{s+r}, v{s+r+1}, v{vm}")
    def xhalf_max():
        a(f"""
        v_mov_b32 v{t0}, v{vm}
        s_nop 1
        v_permlane32_swap_b32 v{t0}, v{vm}
        s_nop 1
        v_max_f32 v{vm}, v{vm}, v{t0}
        """)
    def set_addrs(cur, nxt):
        a(f"""
        v_add_u32 v{ck}, s{cur}, v{lk}
        v_add_u32 v{ck2}, s{cur}, v{lk2}
        v_add_u32 v{cv}, s{cur}, v{lv}
        v_add_u32 v{nk}, s{nxt}, v{lk}
        v_add_u32 v{nk2}, s{nxt}, v{lk2}
        v_add_u32 v{nv}, s{nxt}, v{lv}
        """)
    a(f"s_mov_b32 s33, 0\ns_mov_b32 s34, {CH}")
    set_addrs(33, 34)
    a(f"""
    ; STAMP 4
    s_waitcnt vmcnt(0)
    ; STAMP 5
    v_cndmask_b32 v{Q2}, 0, v{Q2}, s[28:29]
    v_cndmask_b32 v{Q2+1}, 0, v{Q2+1}, s[28:29]
    s_barrier
    """)
    a("; STAMP 0")
    readK(0, 0, False)
    a("s_waitcnt lgkmcnt(0)")
    smfma(0, 0)
    readK(1, 1, False)
    readV(0, 0, False)
    a("s_nop 15\ns_nop 1")
    max16(0, True)
    xhalf_max()
    set_m()
    a("s_mov_b32 s23, 0")
    a(f"s_branch {name}_main2")
    a.label(f"{name}_main")
    a(f"s_mov_b32 s33, 0\ns_mov_b32 s34, {CH}")
    set_addrs(33, 34)
    readK(0, 0, False)
    a("s_waitcnt lgkmcnt(0)")
    readK(1, 1, False)
    readV(0, 0, False)
    a.label(f"{name}_main2")
    a("; STAMP 1")
    if os.environ.get("PRIO"): a("s_setprio 2")
    smfma(0, 0)
    for r in range(16):
        a(f"v_mov_b32 v{OO+r}, 0")
    for r in range(4):
        a(f"v_mov_b32 v{PP[1]+r}, 0\nv_mov_b32 v{V2[1]+r}, 0")
    a(f"""
    s_mov_b32 s22, 0
    s_mov_b32 s20, {2*CH}
    """)
    a.label(f"{name}_loop")
    for t in range(8):
        sb = t & 1; s = SS[sb]; n = SS[sb ^ 1]
        def E(lo):
            for r in range(lo, lo+4): a(f"v_exp_f32 v{s+r}, v{s+r}")
        def C(lo):
            for r in range(lo, lo+4, 2): a(f"v_cvt_pk_bf16_f32 v{PP[r//8]+(r%8)//2}, v{s+r}, v{s+r+1}")
        if t == 6:
            a("s_barrier")
        a("s_waitcnt lgkmcnt(2)")
        mf(n, K1[sb^1], Q1, "0")
        E(0)
        mf(OO, V2[sb^1], PP[1], vr(OO,16))
        E(4); C(0); C(4)
        mf(n, K2[sb^1], Q2, vr(n,16))
        readK(sb, (t + 2) % 8, t + 2 >= 8)
        E(8)
        a("s_waitcnt lgkmcnt(3)")
        mf(OO, V1[sb], PP[0], vr(OO,16))
        readV(sb ^ 1, (t + 1) % 8, t + 1 >= 8)
        E(12); C(8); C(12)
    a(f"""
    s_add_u32 s22, s22, 1
    s_mov_b32 s30, s33
    s_mov_b32 s33, s34
    s_mov_b32 s34, s20
    s_mov_b32 s20, s30
    """)
    set_addrs(33, 34)
    a(f"s_cmp_lt_u32 s22, {NCH}\ns_cbranch_scc1 {name}_loop")
    mf(OO, V2[1], PP[1], vr(OO,16))
    a("s_waitcnt lgkmcnt(0)\ns_nop 15")
    a("; STAMP 2")
    vl = V.get(); vz = V.get()
    a(f"""
    v_mov_b32 v{t0}, v{OO+8}
    v_mov_b32 v{vl}, v{OO+8}
    s_nop 1
    v_permlane32_swap_b32 v{t0}, v{vl}
    v_mov_b32 v{vz}, 0
    """)
    for r in range(12):
        a(f"v_fma_f32 v{vz}, v{OO+r}, 0, v{vz}")
    a(f"""
    s_cmp_lg_u32 s23, 0
    s_cbranch_scc1 {name}_fin
    s_mov_b32 s30, {f32bits(2.0**60)}
    v_add_f32 v{t1}, v{vz}, v{vl}
    v_cmp_nlt_f32 vcc, v{t1}, s30
    s_cmp_eq_u64 vcc, 0
    s_cbranch_scc1 {name}_noflag
    v_mov_b32 v{t0}, {FLAG}
    v_mov_b32 v{t1}, 1
    ds_write_b32 v{t0}, v{t1}
    s_waitcnt lgkmcnt(0)
    """)
    a.label(f"{name}_noflag")
    a(f"""
    s_barrier
    v_mov_b32 v{t0}, {FLAG}
    ds_read_b32 v{t1}, v{t0}
    s_waitcnt lgkmcnt(0)
    v_readfirstlane_b32 s30, v{t1}
    s_nop 3
    s_cmp_eq_u32 s30, 0
    s_cbranch_scc1 {name}_fin
    v_mov_b32 v{Q2+2}, 0
    v_mov_b32 v{Q2+3}, 0
    v_mov_b32 v{vm}, 0xff7fffff
    s_mov_b32 s22, 0
    s_mov_b32 s33, 0
    """)
    set_addrs(33, 33)
    a.label(f"{name}_maxloop")
    a("s_barrier\ns_barrier")
    for t in range(8):
        readK(0, t, False)
        a("s_waitcnt lgkmcnt(0)")
        smfma(0, 0)
        a("s_nop 15\ns_nop 3")
        max16(0, False)
    a(f"""
    s_add_u32 s22, s22, 1
    s_cmp_lt_u32 s22, {NCH}
    s_cbranch_scc1 {name}_maxloop
    """)
    xhalf_max()
    set_m()
    a("s_mov_b32 s23, 1")
    a("s_barrier\ns_barrier")
    a(f"s_branch {name}_main")
    a.label(f"{name}_fin")
    a("; STAMP 3")
    pk = V.get(2, 2); vo = V.get()
    a(f"""
    v_rcp_f32 v{vl}, v{vl}
    s_lshl_b32 s30, s17, 2
    s_lshr_b32 s31, s18, 1
    s_add_u32 s30, s30, s31
    s_mul_i32 s30, s30, 81920
    s_and_b32 s31, s18, 1
    s_lshl_b32 s31, s31, 9
    s_add_u32 s30, s30, s31
    v_lshlrev_b32 v{vo}, 4, v{vq}
    v_add_u32 v{vo}, s30, v{vo}
    s_mul_i32 s31, s16, 5
    """)
    for grp in range(3):
        a(f"""
        v_add_u32 v{t0}, s31, v{vhh}
        v_add_u32 v{t0}, {2*grp}, v{t0}
        v_lshrrev_b32 v{t1}, 1, v{t0}
        v_lshlrev_b32 v{t1}, 10, v{t1}
        v_and_b32 v{t0}, 1, v{t0}
        v_lshl_add_u32 v{t1}, v{t0}, 3, v{t1}
        v_add_u32 v{t1}, v{t1}, v{vo}
        v_mul_f32 v{t0}, v{OO+4*grp}, v{vl}
        v_mul_f32 v{t2}, v{OO+4*grp+1}, v{vl}
        v_mul_f32 v{t3}, v{OO+4*grp+2}, v{vl}
        v_mul_f32 v{t4}, v{OO+4*grp+3}, v{vl}
        v_cvt_pk_bf16_f32 v{pk}, v{t0}, v{t2}
        v_cvt_pk_bf16_f32 v{pk+1}, v{t3}, v{t4}
        """)
        if grp == 2:
            a("s_mov_b64 exec, s[28:29]")
        a(f"buffer_store_dwordx2 {vr(pk,2)}, v{t1}, s[12:15], 0 offen")
        a("s_nop 1")
    a(f"s_branch {name}_end")
    a.label(f"{name}_svc")
    S = VAlloc(3)
    vKlo = S.get(); vKhi = S.get(); vV = S.get(); u0 = S.get(); u1 = S.get(); u2 = S.get()
    a(f"""
    v_lshlrev_b32 v{vKlo}, 4, v2
    v_lshrrev_b32 v{u0}, 4, v2
    v_mul_u32_u24 v{u0}, 40960, v{u0}
    v_and_b32 v{u1}, 15, v2
    v_lshl_add_u32 v{vKhi}, v{u1}, 4, v{u0}
    v_add_u32 v{vKhi}, 1024, v{vKhi}
    v_mul_u32_u24 v{u0}, 49, v2
    v_lshrrev_b32 v{u0}, 10, v{u0}
    v_mul_u32_u24 v{u1}, 21, v{u0}
    v_sub_u32 v{u1}, v2, v{u1}           ; row
    v_cmp_gt_u32 vcc, 20, v{u1}
    v_cmp_gt_u32 s[30:31], 63, v2
    v_mul_u32_u24 v{u0}, 10240, v{u0}
    v_lshl_add_u32 v{vV}, v{u1}, 4, v{u0}
    s_and_b64 s[56:57], vcc, s[30:31]
    s_mul_i32 s50, s16, 1280
    s_mul_i32 s51, s16, 320
    s_add_u32 s51, s51, {REG}
    s_waitcnt lgkmcnt(0)
    """)
    a("; STAMP 4")
    srd(a, 4, P['ws'], 2*REG, KF_OFF)
    a("s_sub_u32 s19, s18, 8")
    def issue_chunk(buf_sg, cidx):
        lv_ = a.newlabel(name + "_iv"); le_ = a.newlabel(name + "_ie"); l5 = a.newlabel(name + "_i5")
        a(f"s_mul_i32 s21, {cidx}, {CSTR}" if not cidx.isdigit() else f"s_mov_b32 s21, {int(cidx)*CSTR}")
        a(f"s_cmp_ge_u32 s19, 2\ns_cbranch_scc1 {lv_}")
        a(f"""
        s_mul_i32 s30, s19, {4*40960}
        s_add_u32 s30, s30, s21
        s_add_u32 s30, s30, s50
        s_lshl_b32 s32, s19, 12
        s_add_u32 s32, s32, s{buf_sg}
        """)
        for t in range(4):
            a(f"s_add_u32 m0, s32, {t*1024}")
            a(f"s_add_u32 s31, s30, {t*40960}")
            a(f"buffer_load_dwordx4 v{vKlo}, s[4:7], s31 offen lds")
        a(f"s_lshl_b32 s32, s19, 10\ns_add_u32 s32, s32, s{buf_sg}\ns_add_u32 m0, s32, {KH}\ns_nop 0")
        a(f"buffer_load_dwordx4 v{vKhi}, s[4:7], s30 offen lds")
        a(f"s_branch {le_}")
        a.label(lv_)
        a(f"""
        s_sub_u32 s32, s19, 2
        s_mul_i32 s30, s32, {6*3*10240}
        s_add_u32 s30, s30, s21
        s_add_u32 s30, s30, s51
        s_mul_i32 s32, s32, {6*1008}
        s_add_u32 s32, s32, s{buf_sg}
        s_mov_b64 exec, s[56:57]
        """)
        for jv in range(6):
            if jv == 5:
                a(f"s_cmp_eq_u32 s19, 3\ns_cbranch_scc1 {l5}")
            a(f"s_add_u32 m0, s32, {VOFF + jv*1008}")
            a(f"s_add_u32 s31, s30, {jv*3*10240}")
            a(f"buffer_load_dwordx4 v{vV}, s[4:7], s31 offen lds")
        a.label(l5)
        a("s_mov_b64 exec, -1")
        a.label(le_)
    a("s_mov_b32 s20, 0")
    issue_chunk(20, "0")
    a("; STAMP 5")
    rp_v = [S.get(), S.get()]; rp_c = [S.get(), S.get()]
    rp_row = S.get(); rp_ra = S.get(); rp_f = S.get(); rp_t = S.get(); rp_o = S.get()
    RF = S.get(28, 4)
    a(f"""
    v_lshrrev_b32 v{rp_row}, 4, v2
    v_and_b32 v{rp_t}, 15, v2
    v_lshlrev_b32 v{rp_c[0]}, 1, v{rp_row}
    v_xor_b32 v{rp_c[0]}, v{rp_c[0]}, v{rp_t}
    v_xor_b32 v{rp_c[1]}, 8, v{rp_c[0]}
    v_lshrrev_b32 v{rp_t}, 4, v2
    v_bfe_u32 v{rp_f}, v2, 2, 2
    v_lshl_add_u32 v{rp_ra}, v{rp_t}, 3, v{rp_f}
    v_lshlrev_b32 v{rp_ra}, 8, v{rp_ra}
    v_and_b32 v{rp_o}, 3, v2
    v_lshl_add_u32 v{rp_ra}, v{rp_o}, 3, v{rp_ra}
    s_lshl_b32 s48, s19, 13
    s_add_u32 s48, s48, {RPK}
    v_add_u32 v{rp_ra}, s48, v{rp_ra}
    v_and_b32 v{rp_t}, 1, v{rp_t}
    v_lshl_or_b32 v{rp_f}, v{rp_t}, 2, v{rp_f}
    v_lshlrev_b32 v{rp_f}, 5, v{rp_f}
    v_lshlrev_b32 v{rp_o}, 4, v2
    """)
    srd(a, 40, P['ws'], WPX, WP_OFF)
    def rp_decode(usg):
        l_gu = a.newlabel(name + "_rg"); l_wd = a.newlabel(name + "_rd"); l_e = a.newlabel(name + "_re")
        a(f"""
        s_cmp_ge_u32 s{usg}, 800
        s_cbranch_scc1 {l_wd}
        s_cmp_ge_u32 s{usg}, 160
        s_cbranch_scc1 {l_gu}
        s_mul_i32 s30, s{usg}, 3277
        s_lshr_b32 s30, s30, 16
        s_mul_i32 s31, s30, 20
        s_sub_u32 s31, s{usg}, s31
        s_mul_i32 s32, s30, 160
        s_mul_i32 s44, s31, {32*1280}
        s_add_u32 s44, s44, s32
        s_mov_b32 s45, 1280
        s_mul_i32 s46, s{usg}, 5120
        s_add_u32 s46, s46, {WP_WO}
        s_mov_b32 s47, 5
        s_mov_b32 s36, s{P['wo']}
        s_mov_b32 s37, s{P['wo']+1}
        s_mov_b32 s38, {DM*DM*2}
        s_branch {l_e}
        """)
        a.label(l_gu)
        a(f"""
        s_sub_u32 s49, s{usg}, 160
        s_mul_i32 s30, s49, 1639
        s_lshr_b32 s30, s30, 16
        s_mul_i32 s31, s30, 40
        s_sub_u32 s31, s49, s31
        s_mul_i32 s32, s30, 224
        s_lshr_b32 s49, s31, 1
        s_mul_i32 s44, s49, {32*3456}
        s_add_u32 s44, s44, s32
        s_mov_b32 s45, 3456
        s_mul_i32 s46, s30, 20
        s_add_u32 s46, s46, s49
        s_mul_i32 s46, s46, 14
        s_and_b32 s31, s31, 1
        s_mul_i32 s30, s31, 7
        s_add_u32 s46, s46, s30
        s_lshl_b32 s46, s46, 10
        s_add_u32 s46, s46, {WP_GU}
        s_mov_b32 s47, 7
        s_cmp_eq_u32 s31, 0
        s_cselect_b32 s36, s{P['wg']}, s{P['wu']}
        s_cselect_b32 s37, s{P['wg']+1}, s{P['wu']+1}
        s_mov_b32 s38, {DM*FF*2}
        s_branch {l_e}
        """)
        a.label(l_wd)
        a(f"""
        s_sub_u32 s49, s{usg}, 800
        s_mul_i32 s30, s49, 1214
        s_lshr_b32 s30, s30, 16
        s_mul_i32 s31, s30, 54
        s_sub_u32 s31, s49, s31
        s_mul_i32 s32, s30, 160
        s_mul_i32 s44, s31, {32*1280}
        s_add_u32 s44, s44, s32
        s_mov_b32 s45, 1280
        s_mul_i32 s46, s49, 5120
        s_add_u32 s46, s46, {WP_WD}
        s_mov_b32 s47, 5
        s_mov_b32 s36, s{P['wd']}
        s_mov_b32 s37, s{P['wd']+1}
        s_mov_b32 s38, {FF*DM*2}
        """)
        a.label(l_e)
        a("s_mov_b32 s39, 0x00020000")
    def rp_A(usg):
        rp_decode(usg)
        a(f"""
        s_lshl_b32 s49, s47, 1
        v_mul_lo_u32 v{rp_t}, v{rp_row}, s45
        v_lshl_add_u32 v{rp_v[0]}, v{rp_c[0]}, 4, v{rp_t}
        v_lshl_add_u32 v{rp_v[1]}, v{rp_c[1]}, 4, v{rp_t}
        v_cmp_gt_u32 s[54:55], s49, v{rp_c[0]}
        v_cmp_gt_u32 s[26:27], s49, v{rp_c[1]}
        s_lshl_b32 s31, s45, 2
        s_nop 1
        """)
        for i in range(8):
            var = (i >> 1) & 1
            a(f"s_add_u32 m0, s48, {i*1024}")
            a(f"s_mov_b64 exec, {['s[54:55]', 's[26:27]'][var]}")
            a(f"buffer_load_dwordx4 v{rp_v[var]}, s[36:39], s44 offen lds")
            a(f"s_add_u32 s44, s44, s31")
        a("s_mov_b64 exec, -1")
    def rp_B():
        for nt in range(7):
            a(f"v_xor_b32 v{rp_t}, {nt*32}, v{rp_f}")
            a(f"v_add_u32 v{rp_t}, v{rp_t}, v{rp_ra}")
            a(f"ds_read_b64_tr_b16 {vr(RF+4*nt,2)}, v{rp_t}")
            a(f"ds_read_b64_tr_b16 {vr(RF+4*nt+2,2)}, v{rp_t} offset:1024")
        a("s_waitcnt lgkmcnt(0)")
        lab = a.newlabel(name + "_r5")
        for nt in range(7):
            if nt == 5:
                a(f"s_cmp_lt_u32 s47, 7\ns_cbranch_scc1 {lab}")
            a(f"s_add_u32 s30, s46, {nt*1024}")
            a(f"buffer_store_dwordx4 {vr(RF+4*nt,4)}, v{rp_o}, s[40:43], s30 offen sc1")
        a.label(lab)
    a(f"""
    s_mov_b32 s23, 0                     ; mode
    s_lshl_b32 s53, s2, 2
    s_add_u32 s53, s53, s19
    s_mov_b32 s52, 0
    s_waitcnt vmcnt(0)
    ; STAMP 6
    s_barrier
    s_mov_b32 s20, {CH}
    """)
    issue_chunk(20, "1")
    a.label(f"{name}_smain")
    a(f"s_mov_b32 s22, 0\ns_mov_b32 s20, {2*CH}")
    a.label(f"{name}_sloop")
    lplain = a.newlabel(name + "_pl"); lbar = a.newlabel(name + "_br"); l1 = a.newlabel(name + "_c1"); l2 = a.newlabel(name + "_c2"); l1b = a.newlabel(name + "_c1b")
    if os.environ.get("NOREPACK"): a(f"s_branch {lplain}")
    a(f"""
    s_cmp_lg_u32 s23, 0
    s_cbranch_scc1 {lplain}
    s_cmp_gt_u32 s22, 2
    s_cbranch_scc1 {lplain}
    s_cmp_eq_u32 s22, 1
    s_cbranch_scc1 {l1}
    s_cmp_eq_u32 s22, 2
    s_cbranch_scc1 {l2}
    """)
    rp_A(53)
    a(f"s_add_u32 s53, s53, 1024\ns_waitcnt vmcnt(8)\ns_branch {lbar}")
    a.label(l1)
    a("s_waitcnt vmcnt(5)")
    rp_B()
    a(f"s_cmp_ge_u32 s53, 1232\ns_cbranch_scc1 {l1b}")
    rp_A(53)
    a(f"s_waitcnt vmcnt(13)\ns_branch {lbar}")
    a.label(l1b)
    a(f"s_waitcnt vmcnt(5)\ns_branch {lbar}")
    a.label(l2)
    a(f"s_cmp_ge_u32 s53, 1232\ns_cbranch_scc1 {lplain}")
    a("s_waitcnt vmcnt(5)")
    rp_B()
    a(f"s_waitcnt vmcnt(5)\ns_branch {lbar}")
    a.label(lplain)
    a("s_waitcnt vmcnt(0)")
    a.label(lbar)
    a("s_barrier")
    lnd = a.newlabel(name + "_sk")
    a(f"s_cmp_ge_u32 s22, {NCH-2}\ns_cbranch_scc1 {lnd}")
    a("s_add_u32 s25, s22, 2")
    issue_chunk(20, "s25")
    a.label(lnd)
    a(f"""
    s_add_u32 s20, s20, {CH}
    s_cmp_ge_u32 s20, {3*CH}
    s_cselect_b32 s30, {3*CH}, 0
    s_sub_u32 s20, s20, s30
    s_add_u32 s22, s22, 1
    s_cmp_lt_u32 s22, {NCH}
    s_cbranch_scc1 {name}_sloop
    s_cmp_lg_u32 s23, 0
    s_cbranch_scc1 {name}_end
    s_barrier
    v_mov_b32 v{u0}, {FLAG}
    ds_read_b32 v{u1}, v{u0}
    s_waitcnt lgkmcnt(0)
    v_readfirstlane_b32 s30, v{u1}
    s_nop 3
    s_cmp_eq_u32 s30, 0
    s_cbranch_scc1 {name}_end
    s_mov_b32 s22, 0
    s_mov_b32 s20, 0
    """)
    a.label(f"{name}_smax")
    a("s_barrier")
    a("s_mov_b32 s25, s22")
    issue_chunk(20, "s25")
    a("s_waitcnt vmcnt(0)\ns_barrier")
    a(f"s_add_u32 s22, s22, 1\ns_cmp_lt_u32 s22, {NCH}\ns_cbranch_scc1 {name}_smax")
    a("s_barrier")
    a("s_mov_b32 s20, 0")
    issue_chunk(20, "0")
    a(f"s_mov_b32 s20, {CH}")
    issue_chunk(20, "1")
    a("s_waitcnt vmcnt(0)\ns_barrier\ns_mov_b32 s23, 1")
    a(f"s_branch {name}_smain")
    a.label(f"{name}_end")
    a("s_endpgm")
    return a.text(), max(V.hi, S.hi), RPK + 4*8192
```

```python
from common import *
import os

def k_gemm(name, kind):
    a = Asm()
    if kind == 'wo':
        BM, NT, NREG, K, D, G, wsec = 64, 5, 1, 640, 8, 2, WP_WO
        xoff, xbytes = O_OFF, REG
    elif kind == 'down':
        BM, NT, NREG, K, D, G, wsec = 64, 5, 1, 1728, 8, 2, WP_WD
        xoff, xbytes = ACT_OFF, ACT_BYTES
    else:
        BM, NT, NREG, K, D, G, wsec = 128, 7, 2, 640, 7, 1, WP_GU
        xoff, xbytes = H_OFF, REG
    NC = NT*16
    XTBS = (K//8)*1024
    HTBS = 81920; ATBS = 221184
    MT = BM // 64; NTT = NT * NREG
    XB = G * 4 * BM * 16; WB = G * NTT * 1024
    STG = XB + WB
    NST = K // (32*G)
    NXT = XB // 1024
    NXI = NXT // 4
    NWT = G * NTT
    WIN = 4 if kind == 'gu' else 5
    entry(a, name)
    sh = 2 if kind == 'gu' else 1
    a(f"""
    s_and_b32 s35, s2, 7                 ; xcd
    s_lshr_b32 s31, s2, 3                ; idx
    s_and_b32 s32, s31, 7
    s_lshr_b32 s33, s31, 3
    s_lshr_b32 s34, s35, {sh}
    s_lshl_b32 s34, s34, 3
    s_add_u32 s16, s34, s32              ; rb
    s_and_b32 s34, s35, {(1<<sh)-1}
    s_lshl_b32 s34, s34, 2
    s_add_u32 s17, s34, s33              ; cb
    s_mul_i32 s28, s17, {NC*2}
    s_cmp_ge_u32 s18, 4
    s_cbranch_scc1 {name}_loader
    """)
    V = VAlloc(3)
    t0 = V.get(); t1 = V.get(); t2 = V.get(); t3 = V.get()
    vXl = V.get(); vWl = V.get(); vXa = V.get(); vWa = V.get()
    a(f"""
    v_and_b32 v{t0}, 15, v2              ; tok
    v_lshrrev_b32 v{t1}, 4, v2           ; g
    v_mul_u32_u24 v{vXl}, {BM*16}, v{t1}
    v_lshl_add_u32 v{vXl}, v{t0}, 4, v{vXl}
    s_mul_i32 s30, s18, {16*MT*16}
    v_add_u32 v{vXl}, s30, v{vXl}
    v_lshlrev_b32 v{vWl}, 4, v2
    v_add_u32 v{vWl}, {XB}, v{vWl}
    """)
    XF = [[V.get(4, 4) for mt in range(MT)] for b in range(2)]
    WF = [V.get(4, 4) for _ in range(WIN)]
    ACC = [[V.get(4, 4) for mt in range(MT)] for nt in range(NTT)]
    for nt in range(NTT):
        for mt in range(MT):
            for r in range(4):
                a(f"v_mov_b32 v{ACC[nt][mt]+r}, 0")
    vq = V.get(); vtok = V.get(); vcm = V.get()
    a(f"""
    v_lshrrev_b32 v{vq}, 4, v2           ; q
    v_and_b32 v{vtok}, 15, v2
    s_mul_i32 s30, s16, {BM}
    s_mul_i32 s31, s18, {16*MT}
    s_add_u32 s30, s30, s31
    v_add_u32 v{vtok}, s30, v{vtok}
    s_lshr_b32 s29, s30, 6
    v_and_b32 v{t0}, 63, v{vtok}
    v_lshlrev_b32 v{t0}, 4, v{t0}
    v_lshrrev_b32 v{t1}, 1, v{vq}
    v_lshl_add_u32 v{t0}, v{t1}, 10, v{t0}
    v_and_b32 v{t1}, 1, v{vq}
    v_lshl_add_u32 v{vcm}, v{t1}, 3, v{t0}
    s_waitcnt lgkmcnt(0)
    """)
    if kind in ('wo', 'down'):
        RES = [V.get(2, 2) for _ in range(NT)]
    else:
        CS = [V.get(4, 4) for _ in range(NTT)]
    if kind in ('gu', 'down'):
        STT = [V.get(4, 4) for _ in range(MT)]
    def epi_loads():
        if kind == 'wo':
            srd(a, 12, P['ws'], REG, H_OFF); srd(a, 36, P['x'], REG); srd(a, 40, P['ws'], ST_BYTES, ST_OFF)
            a(f"v_mul_u32_u24 v{t0}, 1280, v{vtok}\nv_lshl_add_u32 v{t0}, v{vq}, 3, v{t0}")
            for nt in range(NT):
                a(f"buffer_load_dwordx2 {vr(RES[nt],2)}, v{t0}, s[36:39], s28 offen offset:{nt*32}")
        elif kind == 'down':
            srd(a, 12, P['out'], REG); srd(a, 36, P['ws'], REG, H_OFF); srd(a, 40, P['ws'], ST_BYTES, ST_OFF)
            a(f"""
            s_mul_i32 s30, s17, {10*1024}
            s_mul_i32 s31, s29, {HTBS}
            s_add_u32 s30, s30, s31
            """)
            for nt in range(NT):
                a(f"buffer_load_dwordx2 {vr(RES[nt],2)}, v{vcm}, s[36:39], s30 offen offset:{nt*2048 if nt < 2 else 0}") if nt < 2 else (a(f"s_add_u32 s31, s30, {nt*2048}"), a(f"buffer_load_dwordx2 {vr(RES[nt],2)}, v{vcm}, s[36:39], s31 offen"))
        else:
            srd(a, 12, P['ws'], ACT_BYTES, ACT_OFF); srd(a, 36, P['ws'], CS_BYTES, CS_OFF); srd(a, 40, P['ws'], ST_BYTES, ST_OFF)
            a(f"v_lshlrev_b32 v{t0}, 4, v{vq}\ns_mul_i32 s30, s17, {112*4}")
            for rg in range(2):
                for nt in range(NT):
                    a(f"s_add_u32 s31, s30, {rg*FF*4 + nt*64}")
                    a(f"buffer_load_dwordx4 {vr(CS[rg*NT+nt],4)}, v{t0}, s[36:39], s31 offen")
        if kind in ('gu', 'down'):
            a(f"v_lshlrev_b32 v{t1}, 6, v{vtok}\nv_lshl_add_u32 v{t1}, v{vq}, 4, v{t1}")
            for mt in range(MT):
                a(f"buffer_load_dwordx4 {vr(STT[mt],4)}, v{t1}, s[40:43], 0 offen offset:{mt*16*64}")
    q = LdsQ(a)
    JOBS = 2 * NTT
    assert JOBS % WIN == 0
    def xread(ks):
        off = (ks*4*BM*16) if G == 2 else 0
        for mt in range(MT):
            q.issue(('x', ks & 1), f"ds_read_b128 {vr(XF[ks&1][mt],4)}, v{vXa} offset:{off + mt*256}")
    def wread(u):
        off = u*1024 if G == 2 else (u % NTT)*1024
        q.issue(('w', u), f"ds_read_b128 {vr(WF[u % WIN],4)}, v{vWa} offset:{off}")
    def set_read_addr():
        a(f"v_add_u32 v{vXa}, s45, v{vXl}\nv_add_u32 v{vWa}, s45, v{vWl}")
    def job_mfma(u):
        ks, nt = divmod(u, NTT)
        slot = u % WIN
        q.need({('w', u), ('x', ks & 1)})
        for mt in range(MT):
            if os.environ.get("NOMFMA"): continue
            a(f"v_mfma_f32_16x16x32_bf16 {vr(ACC[nt][mt],4)}, {vr(WF[slot],4)}, {vr(XF[ks&1][mt],4)}, {vr(ACC[nt][mt],4)}")
    def enter(check_exit):
        if check_exit:
            a(f"s_add_u32 s49, s49, 1")
            a(f"s_cmp_ge_u32 s49, {K//64}\ns_cbranch_scc1 {name}_tail")
        a(f"""
        s_add_u32 s45, s45, {STG}
        s_cmp_ge_u32 s45, {D*STG}
        s_cselect_b32 s30, {D*STG}, 0
        s_sub_u32 s45, s45, s30
        s_barrier
        """)
        set_read_addr()
    a("s_mov_b32 s49, 0\ns_mov_b32 s45, 0")
    a("; STAMP 0")
    a("s_barrier")
    a("; STAMP 1")
    set_read_addr()
    xread(0)
    for u in range(WIN): wread(u)
    epi_loads()
    a.label(f"{name}_loop")
    qstate = list(q.q)
    for u in range(JOBS):
        if u == JOBS - WIN:
            enter(True)
            xread(0)
        if u == NTT - WIN:
            if G == 1: enter(False)
            xread(1)
        job_mfma(u)
        wread((u + WIN) % JOBS)
    assert q.q == qstate, (q.q, qstate)
    a(f"s_branch {name}_loop")
    a.label(f"{name}_tail")
    a("; STAMP 2")
    a("s_waitcnt lgkmcnt(0)")
    q.drain()
    for u in range(JOBS - WIN, JOBS):
        job_mfma(u)
    a("s_waitcnt vmcnt(0)")
    def red_q(reg):
        a(f"""
        v_mov_b32 v{t0}, v{reg}
        s_nop 1
        v_permlane32_swap_b32 v{t0}, v{reg}
        s_nop 1
        v_add_f32 v{reg}, v{reg}, v{t0}
        v_mov_b32 v{t0}, v{reg}
        s_nop 1
        v_permlane16_swap_b32 v{t0}, v{reg}
        s_nop 1
        v_add_f32 v{reg}, v{reg}, v{t0}
        """)
    if kind in ('gu', 'down'):
        mu = [V.get(2, 2) for _ in range(MT)]; rs_ = [V.get() for _ in range(MT)]
        for mt in range(MT):
            s_ = STT[mt]
            a(f"v_add_f32 v{s_}, v{s_}, v{s_+2}\nv_add_f32 v{s_+1}, v{s_+1}, v{s_+3}")
            red_q(s_); red_q(s_+1)
            a(f"""
            s_mov_b32 s30, {f32bits(1.0/DM)}
            v_mul_f32 v{mu[mt]}, s30, v{s_}
            v_mul_f32 v{s_+1}, s30, v{s_+1}
            v_fma_f32 v{s_+1}, -v{mu[mt]}, v{mu[mt]}, v{s_+1}
            v_max_f32 v{s_+1}, 0, v{s_+1}
            v_add_f32 v{s_+1}, {f32bits(1e-5)}, v{s_+1}
            v_rsq_f32 v{rs_[mt]}, v{s_+1}
            v_sub_f32 v{mu[mt]}, 0, v{mu[mt]}
            """)
    a("; STAMP 3")
    if kind in ('wo', 'down'):
        pk = V.get(2, 2)
        if kind == 'wo':
            ssum = V.get(); ssq = V.get()
            a(f"""
            v_mov_b32 v{t3}, v{vcm}
            s_mul_i32 s30, s17, {10*1024}
            s_mul_i32 s31, s29, {HTBS}
            s_add_u32 s30, s30, s31
            v_mov_b32 v{ssum}, 0
            v_mov_b32 v{ssq}, 0
            """)
        else:
            a(f"""
            v_mul_u32_u24 v{t3}, 1280, v{vtok}
            v_lshl_add_u32 v{t3}, v{vq}, 3, v{t3}
            v_mul_f32 v{rs_[0]}, {f32bits(-math.log(2.0))}, v{rs_[0]}
            """)
        for nt in range(NT):
            acc = ACC[nt][0]; r = RES[nt]
            a(f"v_lshlrev_b32 v{t1}, 16, v{r}\nv_and_b32 v{t2}, 0xffff0000, v{r}")
            if kind == 'wo':
                a(f"v_add_f32 v{acc}, v{acc}, v{t1}\nv_add_f32 v{acc+1}, v{acc+1}, v{t2}")
            else:
                a(f"v_fma_f32 v{acc}, v{acc}, v{rs_[0]}, v{t1}\nv_fma_f32 v{acc+1}, v{acc+1}, v{rs_[0]}, v{t2}")
            a(f"v_lshlrev_b32 v{t1}, 16, v{r+1}\nv_and_b32 v{t2}, 0xffff0000, v{r+1}")
            if kind == 'wo':
                a(f"v_add_f32 v{acc+2}, v{acc+2}, v{t1}\nv_add_f32 v{acc+3}, v{acc+3}, v{t2}")
            else:
                a(f"v_fma_f32 v{acc+2}, v{acc+2}, v{rs_[0]}, v{t1}\nv_fma_f32 v{acc+3}, v{acc+3}, v{rs_[0]}, v{t2}")
            a(f"v_cvt_pk_bf16_f32 v{pk}, v{acc}, v{acc+1}\nv_cvt_pk_bf16_f32 v{pk+1}, v{acc+2}, v{acc+3}")
            if kind == 'wo':
                a(f"s_add_u32 s31, s30, {nt*2048}")
                a(f"buffer_store_dwordx2 {vr(pk,2)}, v{t3}, s[12:15], s31 offen")
                for h_ in range(2):
                    a(f"""
                    v_lshlrev_b32 v{t1}, 16, v{pk+h_}
                    v_and_b32 v{t2}, 0xffff0000, v{pk+h_}
                    v_add_f32 v{ssum}, v{ssum}, v{t1}
                    v_fmac_f32 v{ssq}, v{t1}, v{t1}
                    v_add_f32 v{ssum}, v{ssum}, v{t2}
                    v_fmac_f32 v{ssq}, v{t2}, v{t2}
                    """)
            else:
                a(f"buffer_store_dwordx2 {vr(pk,2)}, v{t3}, s[12:15], s28 offen offset:{nt*32}")
        if kind == 'wo':
            red_q(ssum); red_q(ssq)
            st2 = V.get(2, 2)
            a(f"""
            v_mov_b32 v{st2}, v{ssum}
            v_mov_b32 v{st2+1}, v{ssq}
            v_lshlrev_b32 v{t0}, 6, v{vtok}
            s_lshl_b32 s30, s17, 3
            s_mov_b64 exec, 0xffff
            buffer_store_dwordx2 {vr(st2,2)}, v{t0}, s[40:43], s30 offen
            """)
    else:
        ag = [V.get(2, 2) for _ in range(MT)]
        for mt in range(MT):
            a(f"v_mul_f32 v{ag[mt]}, {f32bits(-math.log2(math.e))}, v{rs_[mt]}")
        pk = V.get(2, 2); vo = V.get(); w = V.get(4, 2); e = V.get(4, 2); one2 = V.get(2, 2)
        a(f"v_mov_b32 v{one2}, 1.0\nv_mov_b32 v{one2+1}, 1.0")
        a(f"""
        v_mov_b32 v{vo}, v{vcm}
        s_mul_i32 s30, s17, {14*1024}
        s_mul_i32 s31, s29, {ATBS}
        s_add_u32 s30, s30, s31
        """)
        for nt in range(NT):
            if nt == 3:
                a(f"s_cmp_eq_u32 s17, 15\ns_cbranch_scc1 {name}_end")
            for mt in range(MT):
                g = ACC[nt][mt]; u_ = ACC[NT+nt][mt]; cg = CS[nt]; cu = CS[NT+nt]
                for r in (0, 2): a(f"v_pk_fma_f32 {vr(g+r,2)}, {vr(cg+r,2)}, {vr(mu[mt],2)}, {vr(g+r,2)} op_sel_hi:[1,0,1]")
                for r in (0, 2): a(f"v_pk_mul_f32 {vr(w+r,2)}, {vr(g+r,2)}, {vr(ag[mt],2)} op_sel_hi:[1,0]")
                for r in range(4): a(f"v_exp_f32 v{e+r}, v{w+r}")
                for r in (0, 2): a(f"v_pk_fma_f32 {vr(u_+r,2)}, {vr(cu+r,2)}, {vr(mu[mt],2)}, {vr(u_+r,2)} op_sel_hi:[1,0,1]")
                for r in (0, 2): a(f"v_pk_add_f32 {vr(e+r,2)}, {vr(e+r,2)}, {vr(one2,2)}")
                for r in range(4): a(f"v_rcp_f32 v{e+r}, v{e+r}")
                for r in (0, 2): a(f"v_pk_mul_f32 {vr(w+r,2)}, {vr(w+r,2)}, {vr(u_+r,2)}")
                for r in (0, 2): a(f"v_pk_mul_f32 {vr(w+r,2)}, {vr(w+r,2)}, {vr(e+r,2)}")
                a(f"v_cvt_pk_bf16_f32 v{pk}, v{w}, v{w+1}")
                a(f"v_cvt_pk_bf16_f32 v{pk+1}, v{w+2}, v{w+3}")
                a(f"s_add_u32 s31, s30, {nt*2048}")
                a(f"buffer_store_dwordx2 {vr(pk,2)}, v{vo}, s[12:15], s31 offen offset:{mt*256}")
                a("s_nop 0")
    a(f"s_branch {name}_end")
    a.label(f"{name}_loader")
    L = VAlloc(3)
    vd = L.get()
    ra, rb_ = (3, 7) if NST == 27 else ((1, 3) if NST == 10 else (2, 5))
    if os.environ.get('NOROT'): ra, rb_ = 0, 0
    a(f"""
    s_sub_u32 s18, s18, 4
    v_lshlrev_b32 v{vd}, 4, v2
    s_mul_i32 s50, s18, {NXI // (BM//64) * 1024}
    s_mul_i32 s30, s16, {(BM//64)*XTBS}
    s_add_u32 s50, s50, s30
    s_mul_i32 s25, s18, {NXI*1024}
    s_lshl_b32 s27, s18, 10
    s_add_u32 s27, s27, {XB}
    s_mul_i32 s51, s17, {(K//32)*NTT*1024}
    s_lshl_b32 s30, s18, 10
    s_add_u32 s51, s51, s30
    s_add_u32 s51, s51, {wsec}
    s_mul_i32 s30, s32, {ra}
    s_mul_i32 s31, s33, {rb_}
    s_add_u32 s44, s30, s31
    s_cmp_ge_u32 s44, {NST}
    s_cselect_b32 s30, {NST}, 0
    s_sub_u32 s44, s44, s30
    s_cmp_ge_u32 s44, {NST}
    s_cselect_b32 s30, {NST}, 0
    s_sub_u32 s44, s44, s30
    s_mov_b32 s46, 0
    s_waitcnt lgkmcnt(0)
    """)
    srd(a, 4, P['ws'], xbytes, xoff)
    srd(a, 8, P['ws'], WPX, WP_OFF)
    NWI = (NWT + 3)//4
    uneven = NWT % 4 != 0
    per_hi = NXI + NWI
    per_lo = NXI + NWI - (1 if uneven else 0)
    def issue_stage():
        a(f"s_mul_i32 s47, s44, {G*4*1024}\ns_add_u32 s47, s47, s50")
        a(f"s_mul_i32 s48, s44, {WB}\ns_add_u32 s48, s48, s51")
        a(f"s_add_u32 s52, s27, s46\ns_add_u32 s53, s25, s46")
        for i in range(NWI):
            lab = None
            if uneven and i == NWI - 1:
                lab = a.newlabel(name + "_sk")
                a(f"s_cmp_ge_u32 s18, {NWT % 4}\ns_cbranch_scc1 {lab}")
            a(f"s_add_u32 m0, s52, {i*4096}")
            a(f"s_add_u32 s31, s48, {i*4096}")
            if not os.environ.get("NODMAW"): a(f"buffer_load_dwordx4 v{vd}, s[8:11], s31 offen lds")
            if lab: a.label(lab)
        for i in range(NXI):
            c, tg = divmod(i, BM//64)
            a(f"s_add_u32 m0, s53, {i*1024}")
            a(f"s_add_u32 s31, s47, {c*1024 + tg*XTBS}")
            if not os.environ.get("NODMAX"): a(f"buffer_load_dwordx4 v{vd}, s[4:7], s31 offen lds")
        a(f"""
        s_add_u32 s44, s44, 1
        s_cmp_ge_u32 s44, {NST}
        s_cselect_b32 s30, {NST}, 0
        s_sub_u32 s44, s44, s30
        s_add_u32 s46, s46, {STG}
        s_cmp_ge_u32 s46, {D*STG}
        s_cselect_b32 s30, {D*STG}, 0
        s_sub_u32 s46, s46, s30
        """)
    def vmw(n_st, extra=0):
        if extra:
            if per_hi != per_lo:
                l1 = a.newlabel(name + "_w"); le = a.newlabel(name + "_w")
                a(f"s_cmp_ge_u32 s18, {NWT % 4}\ns_cbranch_scc1 {l1}")
                a(f"s_waitcnt vmcnt({per_hi*n_st + extra})\ns_branch {le}")
                a.label(l1)
                a(f"s_waitcnt vmcnt({per_lo*n_st + extra})")
                a.label(le)
            else:
                a(f"s_waitcnt vmcnt({per_hi*n_st + extra})")
            return
        if per_hi != per_lo:
            l1 = a.newlabel(name + "_w"); le = a.newlabel(name + "_w")
            a(f"s_cmp_ge_u32 s18, {NWT % 4}\ns_cbranch_scc1 {l1}")
            a(f"s_waitcnt vmcnt({per_hi*n_st})\ns_branch {le}")
            a.label(l1)
            a(f"s_waitcnt vmcnt({per_lo*n_st})")
            a.label(le)
        else:
            a(f"s_waitcnt vmcnt({per_hi*n_st})")
    if kind in ('wo', 'gu') and not os.environ.get("NOPF"):
        nlines = 8960 if kind == 'wo' else 8640
        base = WP_GU if kind == 'wo' else WP_WD
        msk = 3 if kind == 'wo' else 1
        pf = L.get(); pfd = L.get()
        PFTXT = f"""
        s_lshr_b32 s30, s2, 3
        s_lshl_b32 s30, s30, 2
        s_add_u32 s30, s30, s18
        s_mul_i32 s30, s30, {70*128}
        s_and_b32 s31, s35, {msk}
        s_mul_i32 s31, s31, {nlines*128}
        s_add_u32 s30, s30, s31
        s_add_u32 s30, s30, {base}
        v_lshlrev_b32 v{pf}, 7, v2
        buffer_load_dword v{pfd}, v{pf}, s[8:11], s30 offen
        s_add_u32 s30, s30, {64*128}
        s_mov_b64 exec, 0x3f
        buffer_load_dword v{pfd}, v{pf}, s[8:11], s30 offen
        s_mov_b64 exec, -1
        """
    do_pf = kind in ('wo', 'gu') and not os.environ.get("NOPF")
    a("; STAMP 4")
    issued = min(2, D)
    plan = []
    for j in range(NST):
        ow = issued - 1 - j
        lim = min(NST, max(D, j - 1 + D))
        n_new = max(0, min(2, lim - issued))
        plan.append((ow, n_new)); issued += n_new
    assert issued == NST
    runs = []
    for p in plan:
        if runs and runs[-1][0] == p: runs[-1][1] += 1
        else: runs.append([p, 1])
    for _ in range(min(2, D)): issue_stage()
    tot = min(2, D); extra = 0
    for (ow, nn), cnt in runs:
        if cnt > 1:
            lab = a.newlabel(name + "_ll")
            a(f"s_mov_b32 s49, 0")
            a.label(lab)
            vmw(ow, extra); a("s_barrier")
            for _ in range(nn): issue_stage()
            a(f"s_add_u32 s49, s49, 1\ns_cmp_lt_u32 s49, {cnt}\ns_cbranch_scc1 {lab}")
        else:
            vmw(ow, extra); a("s_barrier")
            for _ in range(nn): issue_stage()
        tot += nn*cnt
        if tot == NST and do_pf and not extra:
            a(PFTXT); extra = 2
    a.label(f"{name}_end")
    a("s_endpgm")
    return a.text(), max(V.hi, L.hi), D*STG
```

```python
from common import *

import os
def k_qkv(name="qkv_kernel"):
    a = Asm()
    D = 4; NST = 10; STG = 32768
    STATS = D*STG
    QS = (DH ** -0.5) * math.log2(math.e)
    entry(a, name)
    a(f"""
    s_cmp_ge_u32 s2, 240
    s_cbranch_scc1 {name}_colsum
    s_and_b32 s30, s2, 7          ; xcd
    s_lshr_b32 s31, s2, 3         ; idx 0..29
    s_and_b32 s32, s30, 1
    s_mul_i32 s32, s32, 30
    s_add_u32 s32, s32, s31       ; t 0..59
    s_lshr_b32 s17, s32, 2        ; cb
    s_and_b32 s33, s32, 3
    s_lshr_b32 s30, s30, 1
    s_lshl_b32 s30, s30, 2
    s_add_u32 s16, s30, s33       ; rb
    s_cmp_ge_u32 s18, 8
    s_cbranch_scc1 {name}_stats
    s_cmp_ge_u32 s18, 4
    s_cbranch_scc1 {name}_loader
    s_lshr_b32 s19, s18, 1        ; wm
    s_and_b32 s20, s18, 1         ; wn
    """)
    V = VAlloc(3)
    t0 = V.get(); t1 = V.get(); t2 = V.get(); t3 = V.get()
    dead0 = V.n
    lX = [[V.get() for sm in range(2)] for s in range(4)]
    lW = [V.get() for sn in range(2)]
    aX = [[V.get() for sm in range(2)] for s in range(4)]
    aW = [V.get() for sn in range(2)]
    a(f"""
    v_and_b32 v{t0}, 31, v2               ; r
    v_lshrrev_b32 v{t1}, 5, v2            ; hh
    v_bfe_u32 v{t2}, v{t0}, 1, 3          ; f
    v_xor_b32 v{t2}, v{t2}, v{t1}
    v_lshlrev_b32 v{t2}, 4, v{t2}
    v_lshl_add_u32 v{t2}, v{t0}, 7, v{t2}
    s_lshl_b32 s30, s19, 13
    s_lshl_b32 s31, s20, 12
    s_add_u32 s30, s30, s31
    v_add_u32 v{t2}, s30, v{t2}
    """)
    for s in range(4):
        a(f"v_xor_b32 v{lX[s][0]}, {s*32}, v{t2}")
        a(f"v_xor_b32 v{lX[s][1]}, 0x1000, v{lX[s][0]}")
    a(f"""
    v_lshrrev_b32 v{t0}, 5, v2            ; g>>1
    v_bfe_u32 v{t1}, v2, 2, 2             ; rr
    v_lshl_add_u32 v{t0}, v{t0}, 3, v{t1}
    v_lshlrev_b32 v{t0}, 8, v{t0}
    v_bfe_u32 v{t2}, v2, 4, 1
    v_lshlrev_b32 v{t2}, 1, v{t2}
    v_bfe_u32 v{t3}, v2, 1, 1
    v_add_u32 v{t2}, v{t2}, v{t3}
    s_lshl_b32 s30, s20, 3
    s_lshl_b32 s31, s19, 2
    s_add_u32 s30, s30, s31
    v_add_u32 v{t2}, s30, v{t2}
    v_lshlrev_b32 v{t1}, 2, v{t1}
    v_xor_b32 v{t2}, v{t2}, v{t1}
    v_lshl_add_u32 v{t0}, v{t2}, 4, v{t0}
    v_and_b32 v{t3}, 1, v2
    v_lshl_add_u32 v{lW[0]}, v{t3}, 3, v{t0}
    v_add_u32 v{lW[0]}, 16384, v{lW[0]}
    v_xor_b32 v{lW[1]}, 64, v{lW[0]}
    """)
    XF = [[V.get(4, 4) for sm in range(2)] for b in range(2)]
    WF = [[V.get(4, 4) for sn in range(2)] for b in range(2)]
    dead1 = V.n
    ACC = [[V.get(16, 4) for j in range(2)] for i in range(2)]
    CSA = V.get(16, 4); ONE = V.get(4, 4)
    for i in range(2):
        for j in range(2):
            for r in range(16):
                a(f"v_mov_b32 v{ACC[i][j]+r}, 0")
    for r in range(16):
        a(f"v_mov_b32 v{CSA+r}, 0")
    for r in range(4):
        for j in range(2):
            a(f"v_mov_b32 v{XF[1][j]+r}, 0\nv_mov_b32 v{WF[1][j]+r}, 0")
    for r in range(4): a(f"v_mov_b32 v{ONE+r}, 0x3f803f80")
    def read_frags(s):
        b = s & 1
        for sm in range(2):
            a(f"ds_read_b128 {vr(XF[b][sm],4)}, v{aX[s][sm]}")
        for sn in range(2):
            for jh in range(2):
                a(f"ds_read_b64_tr_b16 {vr(WF[b][sn]+2*jh,2)}, v{aW[sn]} offset:{s*4096 + jh*1024}")
    def mfmas(b, vmode):
        k = 0
        for sn in range(2):
            for sm in range(2):
                if os.environ.get("NOMFMA"): pass
                elif vmode:
                    a(f"v_mfma_f32_32x32x16_bf16 {vr(ACC[sn][sm],16)}, {vr(XF[b][sm],4)}, {vr(WF[b][sn],4)}, {vr(ACC[sn][sm],16)}")
                else:
                    a(f"v_mfma_f32_32x32x16_bf16 {vr(ACC[sn][sm],16)}, {vr(WF[b][sn],4)}, {vr(XF[b][sm],4)}, {vr(ACC[sn][sm],16)}")
                if k == 1 and not os.environ.get("NOCS"):
                    a(f"v_mfma_f32_32x32x16_bf16 {vr(CSA,16)}, {vr(WF[b][0],4)}, {vr(ONE,4)}, {vr(CSA,16)}")
                k += 1
    def mainloop(vmode, lab):
        a("s_mov_b32 s49, 0\ns_mov_b32 s45, 0")
        a("; STAMP 0")
        a.label(lab)
        a("s_waitcnt lgkmcnt(0)")
        a("s_barrier")
        for s in range(4):
            for sm in range(2):
                a(f"v_add_u32 v{aX[s][sm]}, s45, v{lX[s][sm]}")
        for sn in range(2):
            a(f"v_add_u32 v{aW[sn]}, s45, v{lW[sn]}")
        read_frags(0)
        mfmas(1, vmode)
        for s in range(3):
            a("s_waitcnt lgkmcnt(0)")
            read_frags(s + 1)
            mfmas(s & 1, vmode)
        a(f"""
        s_add_u32 s45, s45, {STG}
        s_and_b32 s45, s45, {D*STG-1}
        s_add_u32 s49, s49, 1
        s_cmp_lt_u32 s49, {NST}
        s_cbranch_scc1 {lab}
        s_waitcnt lgkmcnt(0)
        """)
        mfmas(1, vmode)
        a("; STAMP 2")
    def cs_publish():
        a(f"""
        s_nop 7
        s_nop 7
        v_lshrrev_b32 v{t0}, 5, v2           ; hh
        v_lshlrev_b32 v{t0}, 4, v{t0}
        s_lshl_b32 s30, s20, 6
        s_lshl_b32 s31, s19, 5
        s_add_u32 s30, s30, s31
        s_lshl_b32 s30, s30, 2
        s_add_u32 s30, s30, {STATS+1024}
        v_add_u32 v{t0}, s30, v{t0}
        s_mov_b32 s30, 1
        s_mov_b32 s31, 1
        s_mov_b64 exec, s[30:31]
        """)
        for aa in range(4):
            a(f"ds_write_b128 v{t0}, {vr(CSA+4*aa,4)} offset:{aa*32}")
        a("s_mov_b64 exec, -1\ns_waitcnt lgkmcnt(0)\ns_barrier")
        a("; STAMP 3")
    a("s_waitcnt lgkmcnt(0)")
    srd(a, 12, P['ws'], 3*REG)
    a(f"s_cmp_ge_u32 s17, 10\ns_cbranch_scc1 {name}_vpath")
    mainloop(False, f"{name}_lq")
    cs_publish()
    VM = V
    V = VAlloc(dead0, dead1)
    am = [V.get(), V.get()]; bm = [V.get(), V.get()]
    csr = [V.get(4, 4), V.get(4, 4)]; pk = [V.get(2, 2), V.get(2,2)]; vo = V.get(); vca = V.get(); w = [V.get() for _ in range(4)]
    th = V.get()
    a(f"""
    v_and_b32 v{t0}, 31, v2
    s_lshl_b32 s30, s19, 6
    s_lshl_b32 s31, s20, 5
    s_add_u32 s30, s30, s31
    v_add_lshl_u32 v{t1}, v{t0}, s30, 2
    v_add_u32 v{t1}, {STATS}, v{t1}
    v_xor_b32 v{t2}, 128, v{t1}
    ds_read_b32 v{am[0]}, v{t1}
    ds_read_b32 v{bm[0]}, v{t1} offset:512
    ds_read_b32 v{am[1]}, v{t2}
    ds_read_b32 v{bm[1]}, v{t2} offset:512
    v_lshrrev_b32 v{th}, 5, v2        ; hh
    v_lshlrev_b32 v{vca}, 4, v{th}
    s_lshl_b32 s30, s20, 8
    s_add_u32 s30, s30, {STATS}
    v_add_u32 v{vca}, s30, v{vca}
    s_cmp_lt_u32 s17, 5
    s_cselect_b32 s34, {f32bits(QS)}, 1.0
    s_cselect_b32 s35, {QF_OFF}, {KF_OFF}
    s_cselect_b32 s30, 0, 5
    s_sub_u32 s30, s17, s30              ; cbl
    s_lshl_b32 s31, s30, 5
    s_lshl_b32 s33, s20, 4
    s_add_u32 s31, s31, s33
    s_lshl_b32 s31, s31, 8
    s_add_u32 s35, s35, s31
    s_lshl_b32 s31, s16, 2
    s_lshl_b32 s33, s19, 1
    s_add_u32 s31, s31, s33
    s_mul_i32 s31, s31, 40960
    s_add_u32 s35, s35, s31
    v_lshlrev_b32 v{vo}, 8, v{th}
    v_lshl_add_u32 v{vo}, v{t0}, 3, v{vo}
    s_mul_i32 s46, s20, 40960
    s_sub_u32 s47, 40960, s46
    s_add_u32 s46, s46, s35
    s_add_u32 s47, s47, s35
    s_lshl_b32 s48, s19, 11
    s_sub_u32 s49, 2048, s48
    s_lshl_b32 s50, s19, 7
    s_sub_u32 s51, 128, s50
    v_add_u32 v{t1}, s50, v{vca}
    v_add_u32 v{t2}, s51, v{vca}
    ds_read_b128 {vr(csr[0],4)}, v{t1} offset:1024
    s_waitcnt lgkmcnt(1)
    v_mul_f32 v{am[0]}, s34, v{am[0]}
    v_mul_f32 v{bm[0]}, s34, v{bm[0]}
    v_mul_f32 v{am[1]}, s34, v{am[1]}
    v_mul_f32 v{bm[1]}, s34, v{bm[1]}
    """)
    items = [(sn, aa) for sn in range(2) for aa in range(4)]
    for i, (sn, aa) in enumerate(items):
        if i + 1 < len(items):
            sn2, aa2 = items[i+1]
            a(f"ds_read_b128 {vr(csr[(i+1)&1],4)}, v{t1 if sn2 == 0 else t2} offset:{1024 + aa2*32}")
            a("s_waitcnt lgkmcnt(1)")
        else:
            a("s_waitcnt lgkmcnt(0)")
        c = csr[i & 1]
        for sm in range(2):
            acc = ACC[sn][sm] + 4*aa
            for r in range(4): a(f"v_mul_f32 v{w[r]}, v{c+r}, v{bm[sm]}")
            for r in range(4): a(f"v_fmac_f32 v{w[r]}, v{acc+r}, v{am[sm]}")
            a(f"v_cvt_pk_bf16_f32 v{pk[sm]}, v{w[0]}, v{w[1]}")
            a(f"v_cvt_pk_bf16_f32 v{pk[sm]+1}, v{w[2]}, v{w[3]}")
            a(f"s_add_u32 s30, s{46+sm}, s{48+sn}")
            a(f"buffer_store_dwordx2 {vr(pk[sm],2)}, v{vo}, s[12:15], s30 offen offset:{aa*512}")
    a(f"s_branch {name}_end")
    a.label(f"{name}_vpath")
    V = VAlloc(dead0, dead1)
    mainloop(True, f"{name}_lv")
    cs_publish()
    csn = [V.get(), V.get()]
    rs4 = [V.get(4, 4), V.get(4, 4)]; nb4 = [V.get(4, 4), V.get(4, 4)]; pk4 = V.get(4, 4); vo = V.get(); vra = V.get()
    wv = [V.get() for _ in range(8)]; th = V.get()
    a(f"""
    v_and_b32 v{t0}, 31, v2
    v_lshrrev_b32 v{th}, 5, v2        ; hh
    s_lshl_b32 s30, s20, 6
    s_lshl_b32 s31, s19, 5
    s_add_u32 s30, s30, s31
    v_add_lshl_u32 v{t1}, v{t0}, s30, 2
    v_add_u32 v{t1}, {STATS}, v{t1}
    v_xor_b32 v{t2}, 128, v{t1}
    ds_read_b32 v{csn[0]}, v{t1} offset:1024
    ds_read_b32 v{csn[1]}, v{t2} offset:1024
    v_lshlrev_b32 v{vra}, 4, v{th}
    s_lshl_b32 s30, s19, 8
    s_add_u32 s30, s30, {STATS}
    v_add_u32 v{vra}, s30, v{vra}
    s_lshl_b32 s30, s16, 3
    s_lshl_b32 s31, s19, 2
    s_add_u32 s30, s30, s31
    s_mul_i32 s30, s30, 20480
    s_sub_u32 s31, s17, 10
    s_lshl_b32 s31, s31, 7
    s_lshl_b32 s33, s20, 6
    s_add_u32 s31, s31, s33
    s_lshl_b32 s31, s31, 4
    s_add_u32 s35, s30, s31
    s_add_u32 s35, s35, {VT_OFF}
    v_mul_u32_u24 v{vo}, 10240, v{th}
    v_lshl_add_u32 v{vo}, v{t0}, 4, v{vo}
    s_mul_i32 s46, s20, 40960
    s_sub_u32 s47, 40960, s46
    s_add_u32 s46, s46, s35
    s_add_u32 s47, s47, s35
    s_lshl_b32 s48, s19, 9
    s_sub_u32 s49, 512, s48
    s_lshl_b32 s50, s20, 7
    s_sub_u32 s51, 128, s50
    v_add_u32 v{t1}, s50, v{vra}
    v_add_u32 v{t2}, s51, v{vra}
    s_waitcnt lgkmcnt(0)
    """)
    for sm in range(2):
        ad = t1 if sm == 0 else t2
        for g in range(2):
            for ah in range(2):
                aa = 2*g + ah
                a(f"ds_read_b128 {vr(rs4[ah],4)}, v{ad} offset:{aa*32}")
                a(f"ds_read_b128 {vr(nb4[ah],4)}, v{ad} offset:{512 + aa*32}")
            a("s_waitcnt lgkmcnt(0)")
            for sn in range(2):
                for ah in range(2):
                    acc = ACC[sn][sm] + 4*(2*g + ah)
                    for i in range(4): a(f"v_mul_f32 v{wv[4*ah+i]}, v{nb4[ah]+i}, v{csn[sn]}")
                    for i in range(4): a(f"v_fmac_f32 v{wv[4*ah+i]}, v{acc+i}, v{rs4[ah]+i}")
                for i in range(4):
                    a(f"v_cvt_pk_bf16_f32 v{pk4+i}, v{wv[2*i]}, v{wv[2*i+1]}")
                a(f"s_add_u32 s30, s{46+sm}, s{48+sn}")
                a(f"s_add_u32 s30, s30, {g*20480}")
                a(f"buffer_store_dwordx4 {vr(pk4,4)}, v{vo}, s[12:15], s30 offen")
                a("s_nop 1")
    a(f"s_branch {name}_end")
    a.label(f"{name}_loader")
    L = VAlloc(3)
    t0 = L.get(); t1 = L.get(); t2 = L.get(); t3 = L.get()
    vXd = [L.get(), L.get()]; vWd = L.get()
    a(f"""
    s_sub_u32 s18, s18, 4
    s_mul_i32 s21, s16, {128*1280}
    s_mul_i32 s30, s18, {32*1280}
    s_add_u32 s21, s21, s30
    s_mul_i32 s22, s18, {16*3840}
    s_lshl_b32 s30, s17, 8
    s_add_u32 s22, s22, s30
    s_lshl_b32 s23, s18, 12
    s_add_u32 s24, s23, 16384
    v_lshrrev_b32 v{t0}, 3, v2
    v_and_b32 v{t1}, 7, v2
    v_lshrrev_b32 v{t2}, 1, v{t0}
    v_xor_b32 v{t3}, v{t1}, v{t2}
    v_mul_u32_u24 v{t0}, 1280, v{t0}
    v_lshl_add_u32 v{vXd[0]}, v{t3}, 4, v{t0}
    v_xor_b32 v{t3}, 4, v{t3}
    v_lshl_add_u32 v{vXd[1]}, v{t3}, 4, v{t0}
    v_lshrrev_b32 v{t0}, 4, v2
    v_and_b32 v{t1}, 15, v2
    v_lshlrev_b32 v{t2}, 2, v{t0}
    v_xor_b32 v{t1}, v{t1}, v{t2}
    v_mul_u32_u24 v{t0}, 3840, v{t0}
    v_lshl_add_u32 v{vWd}, v{t1}, 4, v{t0}
    s_waitcnt lgkmcnt(0)
    """)
    srd(a, 4, P['x'], REG)
    srd(a, 8, P['wqkv'], DM*3*DM*2)
    def dma(i):
        if i == 0:
            a(f"s_lshl_b32 s47, s44, 7\ns_mul_i32 s48, s44, {64*3840}")
        if i < 4:
            a(f"s_add_u32 s30, s24, s46\ns_add_u32 m0, s30, {i*1024}")
            a(f"s_add_u32 s31, s22, s48\ns_add_u32 s31, s31, {i*4*3840}")
            if not os.environ.get("NODMAW"): a(f"buffer_load_dwordx4 v{vWd}, s[8:11], s31 offen lds")
        else:
            i -= 4
            a(f"s_add_u32 s30, s23, s46\ns_add_u32 m0, s30, {i*1024}")
            a(f"s_add_u32 s31, s21, s47\ns_add_u32 s31, s31, {i*8*1280}")
            if not os.environ.get("NODMAX"): a(f"buffer_load_dwordx4 v{vXd[i&1]}, s[4:7], s31 offen lds")
    def adv():
        a(f"""
        s_add_u32 s44, s44, 1
        s_cmp_ge_u32 s44, {NST}
        s_cselect_b32 s30, {NST}, 0
        s_sub_u32 s44, s44, s30
        s_add_u32 s46, s46, {STG}
        s_and_b32 s46, s46, {D*STG-1}
        """)
    a("; STAMP 4")
    RA, RB = [int(x) for x in os.environ.get("QROT", "0,0").split(",")]
    a(f"""
    s_and_b32 s30, s16, 3
    s_mul_i32 s30, s30, {RA}
    s_mul_i32 s31, s17, {RB}
    s_add_u32 s44, s30, s31
    s_mul_i32 s30, s44, 6554
    s_lshr_b32 s30, s30, 16
    s_mul_i32 s30, s30, 10
    s_sub_u32 s44, s44, s30
    s_mov_b32 s46, 0
    """)
    if os.environ.get("NOROT"): a("s_mov_b32 s44, 0")
    for st in range(2):
        for i in range(8): dma(i)
        adv()
    def lbody(n_wait, n_issue, stamp=None):
        a(f"s_waitcnt vmcnt({n_wait})")
        if stamp is not None: a(f"; STAMP {stamp}")
        a("s_barrier")
        for _ in range(n_issue):
            for i in range(8): dma(i)
            adv()
    lbody(8, 2, 5)
    a("s_mov_b32 s49, 1")
    a.label(f"{name}_lloop")
    lbody(8*(D-2), 1)
    a(f"s_add_u32 s49, s49, 1\ns_cmp_le_u32 s49, {NST-D}\ns_cbranch_scc1 {name}_lloop")
    for j in range(NST-D+1, NST):
        lbody(8*(NST-1-j), 0, 6 if j == NST-1 else None)
    a("s_barrier")
    a(f"s_branch {name}_end")
    a.label(f"{name}_stats")
    T = VAlloc(3)
    t0 = T.get(); t1 = T.get(); t2 = T.get()
    lS = [T.get() for _ in range(4)]; aS = [T.get() for _ in range(4)]
    XS = [T.get(4, 4) for _ in range(4)]
    su = [T.get(), T.get()]; sq = [T.get(), T.get()]; u0 = T.get(); u1 = T.get(); u2 = T.get(); u3 = T.get()
    a(f"""
    s_sub_u32 s18, s18, 8
    s_lshl_b32 s23, s18, 12
    v_and_b32 v{t0}, 31, v2
    v_lshrrev_b32 v{t1}, 5, v2
    v_lshlrev_b32 v{t1}, 2, v{t1}
    v_bfe_u32 v{t2}, v{t0}, 1, 3
    v_xor_b32 v{t2}, v{t2}, v{t1}
    v_lshlrev_b32 v{t2}, 4, v{t2}
    v_lshl_add_u32 v{t2}, v{t0}, 7, v{t2}
    v_add_u32 v{t2}, s23, v{t2}
    """)
    for c in range(4):
        a(f"v_xor_b32 v{lS[c]}, {c*16}, v{t2}")
    for r in su + sq: a(f"v_mov_b32 v{r}, 0")
    a("s_mov_b32 s49, 0\ns_mov_b32 s45, 0")
    a.label(f"{name}_sloop")
    a("s_barrier")
    for c in range(4):
        a(f"v_add_u32 v{aS[c]}, s45, v{lS[c]}")
    for c in range(4):
        a(f"ds_read_b128 {vr(XS[c],4)}, v{aS[c]}")
    for c in range(4):
        a(f"s_waitcnt lgkmcnt({3-c})")
        if os.environ.get("NOSTATS"): continue
        for r in range(0, 4, 2):
            x = XS[c] + r
            a(f"""
            v_lshlrev_b32 v{u0}, 16, v{x}
            v_and_b32 v{u1}, 0xffff0000, v{x}
            v_lshlrev_b32 v{u2}, 16, v{x+1}
            v_and_b32 v{u3}, 0xffff0000, v{x+1}
            v_add_f32 v{su[0]}, v{su[0]}, v{u0}
            v_fmac_f32 v{sq[0]}, v{u0}, v{u0}
            v_add_f32 v{su[1]}, v{su[1]}, v{u1}
            v_fmac_f32 v{sq[1]}, v{u1}, v{u1}
            v_add_f32 v{su[0]}, v{su[0]}, v{u2}
            v_fmac_f32 v{sq[0]}, v{u2}, v{u2}
            v_add_f32 v{su[1]}, v{su[1]}, v{u3}
            v_fmac_f32 v{sq[1]}, v{u3}, v{u3}
            """)
    a(f"""
    s_add_u32 s45, s45, {STG}
    s_and_b32 s45, s45, {D*STG-1}
    s_add_u32 s49, s49, 1
    s_cmp_lt_u32 s49, {NST}
    s_cbranch_scc1 {name}_sloop
    v_add_f32 v{su[0]}, v{su[0]}, v{su[1]}
    v_add_f32 v{sq[0]}, v{sq[0]}, v{sq[1]}
    v_mov_b32 v{u0}, v{su[0]}
    v_mov_b32 v{u1}, v{sq[0]}
    s_nop 1
    v_permlane32_swap_b32 v{u0}, v{su[0]}
    v_permlane32_swap_b32 v{u1}, v{sq[0]}
    s_nop 1
    v_add_f32 v{su[0]}, v{su[0]}, v{u0}
    v_add_f32 v{sq[0]}, v{sq[0]}, v{u1}
    s_mov_b32 s30, {f32bits(1.0/DM)}
    v_mul_f32 v{su[0]}, s30, v{su[0]}
    v_mul_f32 v{sq[0]}, s30, v{sq[0]}
    v_fma_f32 v{sq[0]}, -v{su[0]}, v{su[0]}, v{sq[0]}
    v_max_f32 v{sq[0]}, 0, v{sq[0]}
    v_add_f32 v{sq[0]}, {f32bits(1e-5)}, v{sq[0]}
    v_rsq_f32 v{sq[0]}, v{sq[0]}
    s_nop 0
    v_mul_f32 v{su[0]}, v{su[0]}, v{sq[0]}
    v_sub_f32 v{su[0]}, 0, v{su[0]}
    v_and_b32 v{t0}, 31, v2
    s_lshl_b32 s30, s18, 7
    s_add_u32 s30, s30, {STATS}
    v_lshlrev_b32 v{t0}, 2, v{t0}
    v_add_u32 v{t0}, s30, v{t0}
    ds_write_b32 v{t0}, v{sq[0]}
    ds_write_b32 v{t0}, v{su[0]} offset:512
    s_waitcnt lgkmcnt(0)
    s_barrier
    s_branch {name}_end
    """)
    a.label(f"{name}_colsum")
    a(f"""
    s_cmp_ge_u32 s18, 8
    s_cbranch_scc1 {name}_csb
    s_sub_u32 s30, s2, 240
    s_lshr_b32 s31, s30, 3
    s_and_b32 s32, s30, 7
    s_waitcnt lgkmcnt(0)
    s_cmp_eq_u32 s31, 0
    s_cselect_b32 s4, s{P['wg']}, s{P['wu']}
    s_cselect_b32 s5, s{P['wg']+1}, s{P['wu']+1}
    s_mov_b32 s6, {DM*FF*2}
    s_mov_b32 s7, 0x00020000
    """)
    srd(a, 12, P['ws'], CS_BYTES, CS_OFF)
    C = VAlloc(3)
    c0 = C.get(); c1 = C.get(); vo = C.get()
    acc = C.get(8, 4)
    buf = C.get(80, 4)
    a(f"""
    v_and_b32 v{c0}, 31, v0              ; chunk c
    v_lshrrev_b32 v{c1}, 5, v0
    v_mul_u32_u24 v{vo}, {40*FF*2}, v{c1}
    v_lshl_add_u32 v{vo}, v{c0}, 4, v{vo}
    s_mul_i32 s33, s32, 432
    s_mov_b32 s46, 0x00003f80
    s_mov_b32 s47, 0x3f800000
    s_mov_b32 s49, 0
    """)
    for i in range(8):
        a(f"v_mov_b32 v{acc+i}, 0")
    a.label(f"{name}_csl")
    for i in range(20):
        a(f"s_add_u32 s30, s33, {i*FF*2}")
        a(f"buffer_load_dwordx4 {vr(buf+4*i,4)}, v{vo}, s[4:7], s30 offen")
    for i in range(20):
        a(f"s_waitcnt vmcnt({19-i})")
        for r in range(4):
            a(f"v_dot2c_f32_bf16 v{acc+2*r}, s46, v{buf+4*i+r}")
            a(f"v_dot2c_f32_bf16 v{acc+2*r+1}, s47, v{buf+4*i+r}")
    a(f"""
    s_add_u32 s33, s33, {20*FF*2}
    s_add_u32 s49, s49, 1
    s_cmp_lt_u32 s49, 2
    s_cbranch_scc1 {name}_csl
    s_nop 3
    v_lshlrev_b32 v{c1}, 5, v0
    ds_write_b128 v{c1}, {vr(acc,4)}
    ds_write_b128 v{c1}, {vr(acc+4,4)} offset:16
    s_waitcnt lgkmcnt(0)
    s_barrier
    v_lshlrev_b32 v{c1}, 2, v0
    """)
    for rg in range(16):
        a(f"ds_read_b32 v{buf+rg}, v{c1} offset:{rg*1024}")
    a("s_waitcnt lgkmcnt(0)")
    for rg in range(1, 16):
        a(f"v_add_f32 v{buf}, v{buf}, v{buf+rg}")
    a(f"""
    s_mul_i32 s30, s31, {FF*4}
    s_mul_i32 s33, s32, {216*4}
    s_add_u32 s30, s30, s33
    v_cmp_gt_u32 vcc, 216, v0
    s_and_saveexec_b64 s[34:35], vcc
    s_cbranch_execz {name}_end
    buffer_store_dword v{buf}, v{c1}, s[12:15], s30 offen
    """)
    a(f"s_branch {name}_end")
    a.label(f"{name}_csb")
    a("s_barrier")
    a.label(f"{name}_end")
    a("s_endpgm")
    return a.text(), max(VM.hi, L.hi, C.hi, T.hi), D*STG + 2048
```

```python
from common import *
import os
SCX = '' if os.environ.get('NOSC1') else ' sc1'
SCX2 = ' sc1' if os.environ.get('SC1X2') else ''
import os

def k_attn(name="attn_kernel"):
    a = Asm()
    KH = 8192; VOFF = 10240
    CH = VOFF + 33*336
    NCH = 8; NB = 3
    FLAG = NB*CH + 256
    RPK = (FLAG + 64 + 255)//256*256
    CSTR = 327680
    entry(a, name)
    a(f"""
    s_and_b32 s30, s2, 7                 ; xcd
    s_lshr_b32 s31, s2, 3                ; idx 0..31
    s_lshr_b32 s32, s31, 3
    s_lshl_b32 s16, s30, 2
    s_add_u32 s16, s16, s32              ; head
    s_and_b32 s17, s31, 7                ; qblock
    s_cmp_ge_u32 s18, 8
    s_cbranch_scc1 {name}_svc
    """)
    V = VAlloc(3)
    t0 = V.get(); t1 = V.get(); t2 = V.get(); t3 = V.get(); t4 = V.get()
    Q1 = V.get(4, 4); Q2 = V.get(4, 4)
    SS = [V.get(16, 4), V.get(16, 4)]
    PP = [V.get(4, 4), V.get(4, 4)]
    OO = V.get(16, 4)
    K1 = [V.get(4, 4), V.get(4, 4)]; K2 = [V.get(4, 4), V.get(4, 4)]
    V1 = [V.get(4, 4), V.get(4, 4)]; V2 = [V.get(4, 4), V.get(4, 4)]
    lk = V.get(); lk2 = V.get(); lv = V.get()
    ck = V.get(); ck2 = V.get(); cv = V.get()
    nk = V.get(); nk2 = V.get(); nv = V.get()
    vm = V.get(); vq = V.get(); vhh = V.get()
    a(f"""
    s_lshl_b32 s30, s17, 3
    s_add_u32 s30, s30, s18              ; q tile
    s_mul_i32 s30, s30, 40960
    s_mul_i32 s31, s16, 1280
    s_add_u32 s24, s30, s31
    v_and_b32 v{vq}, 31, v2
    v_lshrrev_b32 v{vhh}, 5, v2
    v_lshlrev_b32 v{lk2}, 3, v{vq}
    v_lshl_add_u32 v{lk}, v{vhh}, 9, v{lk2}
    v_mul_u32_u24 v{t4}, 336, v{vhh}
    v_lshl_add_u32 v{lv}, v{vq}, 4, v{t4}
    v_add_u32 v{lv}, {VOFF}, v{lv}
    ; ones rows: thread t<96: buffer = t/32, piece = t%32
    v_lshrrev_b32 v{t0}, 5, v0
    v_mul_u32_u24 v{t0}, {CH}, v{t0}
    v_and_b32 v{t1}, 31, v0
    v_mul_u32_u24 v{t1}, 336, v{t1}
    v_add_u32 v{t0}, v{t0}, v{t1}
    v_add_u32 v{t0}, {VOFF+320}, v{t0}
    v_mov_b32 v{SS[0]}, 0x3f803f80
    v_mov_b32 v{SS[0]+1}, 0x3f803f80
    v_mov_b32 v{SS[0]+2}, 0x3f803f80
    v_mov_b32 v{SS[0]+3}, 0x3f803f80
    v_cmp_gt_u32 vcc, 96, v0
    s_and_saveexec_b64 s[30:31], vcc
    s_cbranch_execz {name}_no1
    ds_write_b128 v{t0}, {vr(SS[0],4)}
    """)
    a.label(f"{name}_no1")
    a(f"""
    s_mov_b64 exec, -1
    v_mov_b32 v{t0}, {FLAG}
    v_mov_b32 v{t1}, 0
    ds_write_b32 v{t0}, v{t1}
    v_cmp_gt_u32 s[28:29], 32, v2
    v_mov_b32 v{Q2+2}, 0
    v_mov_b32 v{Q2+3}, 0
    s_waitcnt lgkmcnt(0)
    """)
    srd(a, 8, P['ws'], REG, QF_OFF)
    srd(a, 12, P['ws'], REG, O_OFF)
    a(f"""
    buffer_load_dwordx2 {vr(Q1,2)}, v{lk}, s[8:11], s24 offen
    buffer_load_dwordx2 {vr(Q1+2,2)}, v{lk}, s[8:11], s24 offen offset:256
    buffer_load_dwordx2 {vr(Q2,2)}, v{lk2}, s[8:11], s24 offen offset:1024
    v_add_u32 v{lk2}, {KH}, v{lk2}
    """)
    for b in range(2):
        a(f"v_mov_b32 v{K2[b]+2}, 0x3f803f80")
        a(f"v_mov_b32 v{K2[b]+3}, 0x00003f80")
    def readK(buf, t, nxt):
        ak, ak2 = (nk, nk2) if nxt else (ck, ck2)
        a(f"ds_read_b64 {vr(K1[buf],2)}, v{ak} offset:{t*1024}")
        a(f"ds_read_b64 {vr(K1[buf]+2,2)}, v{ak} offset:{t*1024 + 256}")
        a(f"ds_read_b64 {vr(K2[buf],2)}, v{ak2} offset:{t*256}")
    def readV(buf, t, nxt):
        av = nv if nxt else cv
        a(f"ds_read_b128 {vr(V1[buf],4)}, v{av} offset:{t*4*336}")
        a(f"ds_read_b128 {vr(V2[buf],4)}, v{av} offset:{(t*4+2)*336}")
    def mf(d, A, B, C):
        a(f"v_mfma_f32_32x32x16_bf16 {vr(d,16)}, {vr(A,4)}, {vr(B,4)}, {C}")
    def smfma(sb, kb):
        mf(SS[sb], K1[kb], Q1, "0"); mf(SS[sb], K2[kb], Q2, vr(SS[sb],16))
    def set_m():
        a(f"""
        v_sub_f32 v{t0}, 0, v{vm}
        v_and_b32 v{t1}, 0xffff0000, v{t0}
        v_sub_f32 v{t0}, v{t0}, v{t1}
        v_and_b32 v{t3}, 0xffff0000, v{t0}
        v_sub_f32 v{t0}, v{t0}, v{t3}
        v_lshrrev_b32 v{t1}, 16, v{t1}
        v_or_b32 v{t1}, v{t1}, v{t3}
        v_lshrrev_b32 v{t0}, 16, v{t0}
        v_cndmask_b32 v{Q2+2}, 0, v{t1}, s[28:29]
        v_cndmask_b32 v{Q2+3}, 0, v{t0}, s[28:29]
        s_nop 1
        """)
    def max16(sb, first):
        s = SS[sb]
        if first: a(f"v_max_f32 v{vm}, v{s}, v{s+1}")
        else: a(f"v_max3_f32 v{vm}, v{s}, v{s+1}, v{vm}")
        for r in range(2, 16, 2):
            a(f"v_max3_f32 v{vm}, v{s+r}, v{s+r+1}, v{vm}")
    def xhalf_max():
        a(f"""
        v_mov_b32 v{t0}, v{vm}
        s_nop 1
        v_permlane32_swap_b32 v{t0}, v{vm}
        s_nop 1
        v_max_f32 v{vm}, v{vm}, v{t0}
        """)
    def set_addrs(cur, nxt):
        a(f"""
        v_add_u32 v{ck}, s{cur}, v{lk}
        v_add_u32 v{ck2}, s{cur}, v{lk2}
        v_add_u32 v{cv}, s{cur}, v{lv}
        v_add_u32 v{nk}, s{nxt}, v{lk}
        v_add_u32 v{nk2}, s{nxt}, v{lk2}
        v_add_u32 v{nv}, s{nxt}, v{lv}
        """)
    a(f"s_mov_b32 s33, 0\ns_mov_b32 s34, {CH}")
    set_addrs(33, 34)
    a(f"""
    ; STAMP 4
    s_waitcnt vmcnt(0)
    ; STAMP 5
    v_cndmask_b32 v{Q2}, 0, v{Q2}, s[28:29]
    v_cndmask_b32 v{Q2+1}, 0, v{Q2+1}, s[28:29]
    s_barrier
    """)
    a("; STAMP 0")
    readK(0, 0, False)
    a("s_waitcnt lgkmcnt(0)")
    smfma(0, 0)
    readK(1, 1, False)
    readV(0, 0, False)
    a("s_nop 15\ns_nop 1")
    max16(0, True)
    xhalf_max()
    set_m()
    a("s_mov_b32 s23, 0")
    a(f"s_branch {name}_main2")
    a.label(f"{name}_main")
    a(f"s_mov_b32 s33, 0\ns_mov_b32 s34, {CH}")
    set_addrs(33, 34)
    readK(0, 0, False)
    a("s_waitcnt lgkmcnt(0)")
    readK(1, 1, False)
    readV(0, 0, False)
    a.label(f"{name}_main2")
    a("; STAMP 1")
    if os.environ.get("PRIO"): a("s_setprio 2")
    smfma(0, 0)
    for r in range(16):
        a(f"v_mov_b32 v{OO+r}, 0")
    for r in range(4):
        a(f"v_mov_b32 v{PP[1]+r}, 0\nv_mov_b32 v{V2[1]+r}, 0")
    a(f"""
    s_mov_b32 s22, 0
    s_mov_b32 s20, {2*CH}
    """)
    a.label(f"{name}_loop")
    for t in range(8):
        sb = t & 1; s = SS[sb]; n = SS[sb ^ 1]
        def E(lo):
            for r in range(lo, lo+4): a(f"v_exp_f32 v{s+r}, v{s+r}")
        def C(lo):
            for r in range(lo, lo+4, 2): a(f"v_cvt_pk_bf16_f32 v{PP[r//8]+(r%8)//2}, v{s+r}, v{s+r+1}")
        if t == 6:
            a("s_barrier")
        a("s_waitcnt lgkmcnt(2)")
        mf(n, K1[sb^1], Q1, "0")
        E(0)
        mf(OO, V2[sb^1], PP[1], vr(OO,16))
        E(4); C(0); C(4)
        mf(n, K2[sb^1], Q2, vr(n,16))
        readK(sb, (t + 2) % 8, t + 2 >= 8)
        E(8)
        a("s_waitcnt lgkmcnt(3)")
        mf(OO, V1[sb], PP[0], vr(OO,16))
        readV(sb ^ 1, (t + 1) % 8, t + 1 >= 8)
        E(12); C(8); C(12)
    a(f"""
    s_add_u32 s22, s22, 1
    s_mov_b32 s30, s33
    s_mov_b32 s33, s34
    s_mov_b32 s34, s20
    s_mov_b32 s20, s30
    """)
    set_addrs(33, 34)
    a(f"s_cmp_lt_u32 s22, {NCH}\ns_cbranch_scc1 {name}_loop")
    mf(OO, V2[1], PP[1], vr(OO,16))
    a("s_waitcnt lgkmcnt(0)\ns_nop 15")
    a("; STAMP 2")
    vl = V.get(); vz = V.get()
    a(f"""
    v_mov_b32 v{t0}, v{OO+8}
    v_mov_b32 v{vl}, v{OO+8}
    s_nop 1
    v_permlane32_swap_b32 v{t0}, v{vl}
    v_mov_b32 v{vz}, 0
    """)
    for r in range(12):
        a(f"v_fma_f32 v{vz}, v{OO+r}, 0, v{vz}")
    a(f"""
    s_cmp_lg_u32 s23, 0
    s_cbranch_scc1 {name}_fin
    s_mov_b32 s30, {f32bits(2.0**60)}
    v_add_f32 v{t1}, v{vz}, v{vl}
    v_cmp_nlt_f32 vcc, v{t1}, s30
    s_cmp_eq_u64 vcc, 0
    s_cbranch_scc1 {name}_noflag
    v_mov_b32 v{t0}, {FLAG}
    v_mov_b32 v{t1}, 1
    ds_write_b32 v{t0}, v{t1}
    s_waitcnt lgkmcnt(0)
    """)
    a.label(f"{name}_noflag")
    a(f"""
    s_barrier
    v_mov_b32 v{t0}, {FLAG}
    ds_read_b32 v{t1}, v{t0}
    s_waitcnt lgkmcnt(0)
    v_readfirstlane_b32 s30, v{t1}
    s_nop 3
    s_cmp_eq_u32 s30, 0
    s_cbranch_scc1 {name}_fin
    v_mov_b32 v{Q2+2}, 0
    v_mov_b32 v{Q2+3}, 0
    v_mov_b32 v{vm}, 0xff7fffff
    s_mov_b32 s22, 0
    s_mov_b32 s33, 0
    """)
    set_addrs(33, 33)
    a.label(f"{name}_maxloop")
    a("s_barrier\ns_barrier")
    for t in range(8):
        readK(0, t, False)
        a("s_waitcnt lgkmcnt(0)")
        smfma(0, 0)
        a("s_nop 15\ns_nop 3")
        max16(0, False)
    a(f"""
    s_add_u32 s22, s22, 1
    s_cmp_lt_u32 s22, {NCH}
    s_cbranch_scc1 {name}_maxloop
    """)
    xhalf_max()
    set_m()
    a("s_mov_b32 s23, 1")
    a("s_barrier\ns_barrier")
    a(f"s_branch {name}_main")
    a.label(f"{name}_fin")
    a("; STAMP 3")
    pk = V.get(2, 2); vo = V.get()
    a(f"""
    v_rcp_f32 v{vl}, v{vl}
    s_lshl_b32 s30, s17, 2
    s_lshr_b32 s31, s18, 1
    s_add_u32 s30, s30, s31
    s_mul_i32 s30, s30, 81920
    s_and_b32 s31, s18, 1
    s_lshl_b32 s31, s31, 9
    s_add_u32 s30, s30, s31
    v_lshlrev_b32 v{vo}, 4, v{vq}
    v_add_u32 v{vo}, s30, v{vo}
    s_mul_i32 s31, s16, 5
    """)
    for grp in range(3):
        a(f"""
        v_add_u32 v{t0}, s31, v{vhh}
        v_add_u32 v{t0}, {2*grp}, v{t0}
        v_lshrrev_b32 v{t1}, 1, v{t0}
        v_lshlrev_b32 v{t1}, 10, v{t1}
        v_and_b32 v{t0}, 1, v{t0}
        v_lshl_add_u32 v{t1}, v{t0}, 3, v{t1}
        v_add_u32 v{t1}, v{t1}, v{vo}
        v_mul_f32 v{t0}, v{OO+4*grp}, v{vl}
        v_mul_f32 v{t2}, v{OO+4*grp+1}, v{vl}
        v_mul_f32 v{t3}, v{OO+4*grp+2}, v{vl}
        v_mul_f32 v{t4}, v{OO+4*grp+3}, v{vl}
        v_cvt_pk_bf16_f32 v{pk}, v{t0}, v{t2}
        v_cvt_pk_bf16_f32 v{pk+1}, v{t3}, v{t4}
        """)
        if grp == 2:
            a("s_mov_b64 exec, s[28:29]")
        a(f"buffer_store_dwordx2 {vr(pk,2)}, v{t1}, s[12:15], 0 offen{SCX2}")
        a("s_nop 1")
    a(f"s_branch {name}_end")
    a.label(f"{name}_svc")
    S = VAlloc(3)
    vKlo = S.get(); vKhi = S.get(); vV = S.get(); u0 = S.get(); u1 = S.get(); u2 = S.get()
    a(f"""
    v_lshlrev_b32 v{vKlo}, 4, v2
    v_lshrrev_b32 v{u0}, 4, v2
    v_mul_u32_u24 v{u0}, 40960, v{u0}
    v_and_b32 v{u1}, 15, v2
    v_lshl_add_u32 v{vKhi}, v{u1}, 4, v{u0}
    v_add_u32 v{vKhi}, 1024, v{vKhi}
    v_mul_u32_u24 v{u0}, 49, v2
    v_lshrrev_b32 v{u0}, 10, v{u0}
    v_mul_u32_u24 v{u1}, 21, v{u0}
    v_sub_u32 v{u1}, v2, v{u1}           ; row
    v_cmp_gt_u32 vcc, 20, v{u1}
    v_cmp_gt_u32 s[30:31], 63, v2
    v_mul_u32_u24 v{u0}, 10240, v{u0}
    v_lshl_add_u32 v{vV}, v{u1}, 4, v{u0}
    s_and_b64 s[56:57], vcc, s[30:31]
    s_mul_i32 s50, s16, 1280
    s_mul_i32 s51, s16, 320
    s_add_u32 s51, s51, {REG}
    s_waitcnt lgkmcnt(0)
    """)
    a("; STAMP 4")
    srd(a, 4, P['ws'], 2*REG, KF_OFF)
    a("s_sub_u32 s19, s18, 8")
    def issue_chunk(buf_sg, cidx):
        lv_ = a.newlabel(name + "_iv"); le_ = a.newlabel(name + "_ie"); l5 = a.newlabel(name + "_i5")
        a(f"s_mul_i32 s21, {cidx}, {CSTR}" if not cidx.isdigit() else f"s_mov_b32 s21, {int(cidx)*CSTR}")
        a(f"s_cmp_ge_u32 s19, 2\ns_cbranch_scc1 {lv_}")
        a(f"""
        s_mul_i32 s30, s19, {4*40960}
        s_add_u32 s30, s30, s21
        s_add_u32 s30, s30, s50
        s_lshl_b32 s32, s19, 12
        s_add_u32 s32, s32, s{buf_sg}
        """)
        for t in range(4):
            a(f"s_add_u32 m0, s32, {t*1024}")
            a(f"s_add_u32 s31, s30, {t*40960}")
            a(f"buffer_load_dwordx4 v{vKlo}, s[4:7], s31 offen lds")
        a(f"s_lshl_b32 s32, s19, 10\ns_add_u32 s32, s32, s{buf_sg}\ns_add_u32 m0, s32, {KH}\ns_nop 0")
        a(f"buffer_load_dwordx4 v{vKhi}, s[4:7], s30 offen lds")
        a(f"s_branch {le_}")
        a.label(lv_)
        a(f"""
        s_sub_u32 s32, s19, 2
        s_mul_i32 s30, s32, {6*3*10240}
        s_add_u32 s30, s30, s21
        s_add_u32 s30, s30, s51
        s_mul_i32 s32, s32, {6*1008}
        s_add_u32 s32, s32, s{buf_sg}
        s_mov_b64 exec, s[56:57]
        """)
        for jv in range(6):
            if jv == 5:
                a(f"s_cmp_eq_u32 s19, 3\ns_cbranch_scc1 {l5}")
            a(f"s_add_u32 m0, s32, {VOFF + jv*1008}")
            a(f"s_add_u32 s31, s30, {jv*3*10240}")
            a(f"buffer_load_dwordx4 v{vV}, s[4:7], s31 offen lds")
        a.label(l5)
        a("s_mov_b64 exec, -1")
        a.label(le_)
    a("s_mov_b32 s20, 0")
    issue_chunk(20, "0")
    a("; STAMP 5")
    rp_v = [S.get(), S.get()]; rp_c = [S.get(), S.get()]
    rp_row = S.get(); rp_ra = S.get(); rp_f = S.get(); rp_t = S.get(); rp_o = S.get()
    RF = S.get(28, 4)
    a(f"""
    v_lshrrev_b32 v{rp_row}, 4, v2
    v_and_b32 v{rp_t}, 15, v2
    v_lshlrev_b32 v{rp_c[0]}, 1, v{rp_row}
    v_xor_b32 v{rp_c[0]}, v{rp_c[0]}, v{rp_t}
    v_xor_b32 v{rp_c[1]}, 8, v{rp_c[0]}
    v_lshrrev_b32 v{rp_t}, 4, v2
    v_bfe_u32 v{rp_f}, v2, 2, 2
    v_lshl_add_u32 v{rp_ra}, v{rp_t}, 3, v{rp_f}
    v_lshlrev_b32 v{rp_ra}, 8, v{rp_ra}
    v_and_b32 v{rp_o}, 3, v2
    v_lshl_add_u32 v{rp_ra}, v{rp_o}, 3, v{rp_ra}
    s_lshl_b32 s48, s19, 13
    s_add_u32 s48, s48, {RPK}
    v_add_u32 v{rp_ra}, s48, v{rp_ra}
    v_and_b32 v{rp_t}, 1, v{rp_t}
    v_lshl_or_b32 v{rp_f}, v{rp_t}, 2, v{rp_f}
    v_lshlrev_b32 v{rp_f}, 5, v{rp_f}
    v_lshlrev_b32 v{rp_o}, 4, v2
    """)
    srd(a, 40, P['ws'], WPX, WP_OFF)
    def rp_decode(usg):
        l_gu = a.newlabel(name + "_rg"); l_wd = a.newlabel(name + "_rd"); l_e = a.newlabel(name + "_re")
        a(f"""
        s_cmp_ge_u32 s{usg}, 800
        s_cbranch_scc1 {l_wd}
        s_cmp_ge_u32 s{usg}, 160
        s_cbranch_scc1 {l_gu}
        s_mul_i32 s30, s{usg}, 3277
        s_lshr_b32 s30, s30, 16
        s_mul_i32 s31, s30, 20
        s_sub_u32 s31, s{usg}, s31
        s_mul_i32 s32, s30, 160
        s_mul_i32 s44, s31, {32*1280}
        s_add_u32 s44, s44, s32
        s_mov_b32 s45, 1280
        s_mul_i32 s46, s{usg}, 5120
        s_add_u32 s46, s46, {WP_WO}
        s_mov_b32 s47, 5
        s_mov_b32 s36, s{P['wo']}
        s_mov_b32 s37, s{P['wo']+1}
        s_mov_b32 s38, {DM*DM*2}
        s_branch {l_e}
        """)
        a.label(l_gu)
        a(f"""
        s_sub_u32 s49, s{usg}, 160
        s_mul_i32 s30, s49, 1639
        s_lshr_b32 s30, s30, 16
        s_mul_i32 s31, s30, 40
        s_sub_u32 s31, s49, s31
        s_mul_i32 s32, s30, 224
        s_lshr_b32 s49, s31, 1
        s_mul_i32 s44, s49, {32*3456}
        s_add_u32 s44, s44, s32
        s_mov_b32 s45, 3456
        s_mul_i32 s46, s30, 20
        s_add_u32 s46, s46, s49
        s_mul_i32 s46, s46, 14
        s_and_b32 s31, s31, 1
        s_mul_i32 s30, s31, 7
        s_add_u32 s46, s46, s30
        s_lshl_b32 s46, s46, 10
        s_add_u32 s46, s46, {WP_GU}
        s_mov_b32 s47, 7
        s_cmp_eq_u32 s31, 0
        s_cselect_b32 s36, s{P['wg']}, s{P['wu']}
        s_cselect_b32 s37, s{P['wg']+1}, s{P['wu']+1}
        s_mov_b32 s38, {DM*FF*2}
        s_branch {l_e}
        """)
        a.label(l_wd)
        a(f"""
        s_sub_u32 s49, s{usg}, 800
        s_mul_i32 s30, s49, 1214
        s_lshr_b32 s30, s30, 16
        s_mul_i32 s31, s30, 54
        s_sub_u32 s31, s49, s31
        s_mul_i32 s32, s30, 160
        s_mul_i32 s44, s31, {32*1280}
        s_add_u32 s44, s44, s32
        s_mov_b32 s45, 1280
        s_mul_i32 s46, s49, 5120
        s_add_u32 s46, s46, {WP_WD}
        s_mov_b32 s47, 5
        s_mov_b32 s36, s{P['wd']}
        s_mov_b32 s37, s{P['wd']+1}
        s_mov_b32 s38, {FF*DM*2}
        """)
        a.label(l_e)
        a("s_mov_b32 s39, 0x00020000")
    def rp_A(usg):
        rp_decode(usg)
        a(f"""
        s_lshl_b32 s49, s47, 1
        v_mul_lo_u32 v{rp_t}, v{rp_row}, s45
        v_lshl_add_u32 v{rp_v[0]}, v{rp_c[0]}, 4, v{rp_t}
        v_lshl_add_u32 v{rp_v[1]}, v{rp_c[1]}, 4, v{rp_t}
        v_cmp_gt_u32 s[54:55], s49, v{rp_c[0]}
        v_cmp_gt_u32 s[26:27], s49, v{rp_c[1]}
        s_lshl_b32 s31, s45, 2
        s_nop 1
        """)
        for i in range(8):
            var = (i >> 1) & 1
            a(f"s_add_u32 m0, s48, {i*1024}")
            a(f"s_mov_b64 exec, {['s[54:55]', 's[26:27]'][var]}")
            a(f"buffer_load_dwordx4 v{rp_v[var]}, s[36:39], s44 offen lds")
            a(f"s_add_u32 s44, s44, s31")
        a("s_mov_b64 exec, -1")
    def rp_B():
        for nt in range(7):
            a(f"v_xor_b32 v{rp_t}, {nt*32}, v{rp_f}")
            a(f"v_add_u32 v{rp_t}, v{rp_t}, v{rp_ra}")
            a(f"ds_read_b64_tr_b16 {vr(RF+4*nt,2)}, v{rp_t}")
            a(f"ds_read_b64_tr_b16 {vr(RF+4*nt+2,2)}, v{rp_t} offset:1024")
        a("s_waitcnt lgkmcnt(0)")
        lab = a.newlabel(name + "_r5")
        for nt in range(7):
            if nt == 5:
                a(f"s_cmp_lt_u32 s47, 7\ns_cbranch_scc1 {lab}")
            a(f"s_add_u32 s30, s46, {nt*1024}")
            a(f"buffer_store_dwordx4 {vr(RF+4*nt,4)}, v{rp_o}, s[40:43], s30 offen sc1")
        a.label(lab)
    a(f"""
    s_mov_b32 s23, 0                     ; mode
    s_lshl_b32 s53, s2, 2
    s_add_u32 s53, s53, s19
    s_mov_b32 s52, 0
    s_waitcnt vmcnt(0)
    ; STAMP 6
    s_barrier
    s_mov_b32 s20, {CH}
    """)
    issue_chunk(20, "1")
    a.label(f"{name}_smain")
    a(f"s_mov_b32 s22, 0\ns_mov_b32 s20, {2*CH}")
    a.label(f"{name}_sloop")
    lplain = a.newlabel(name + "_pl"); lbar = a.newlabel(name + "_br"); l1 = a.newlabel(name + "_c1"); l2 = a.newlabel(name + "_c2"); l1b = a.newlabel(name + "_c1b")
    if os.environ.get("NOREPACK"): a(f"s_branch {lplain}")
    a(f"""
    s_cmp_lg_u32 s23, 0
    s_cbranch_scc1 {lplain}
    s_cmp_gt_u32 s22, 2
    s_cbranch_scc1 {lplain}
    s_cmp_eq_u32 s22, 1
    s_cbranch_scc1 {l1}
    s_cmp_eq_u32 s22, 2
    s_cbranch_scc1 {l2}
    """)
    rp_A(53)
    a(f"s_add_u32 s53, s53, 1024\ns_waitcnt vmcnt(8)\ns_branch {lbar}")
    a.label(l1)
    a("s_waitcnt vmcnt(5)")
    rp_B()
    a(f"s_cmp_ge_u32 s53, 1232\ns_cbranch_scc1 {l1b}")
    rp_A(53)
    a(f"s_waitcnt vmcnt(13)\ns_branch {lbar}")
    a.label(l1b)
    a(f"s_waitcnt vmcnt(5)\ns_branch {lbar}")
    a.label(l2)
    a(f"s_cmp_ge_u32 s53, 1232\ns_cbranch_scc1 {lplain}")
    a("s_waitcnt vmcnt(5)")
    rp_B()
    a(f"s_waitcnt vmcnt(5)\ns_branch {lbar}")
    a.label(lplain)
    a("s_waitcnt vmcnt(0)")
    a.label(lbar)
    a("s_barrier")
    lnd = a.newlabel(name + "_sk")
    a(f"s_cmp_ge_u32 s22, {NCH-2}\ns_cbranch_scc1 {lnd}")
    a("s_add_u32 s25, s22, 2")
    issue_chunk(20, "s25")
    a.label(lnd)
    a(f"""
    s_add_u32 s20, s20, {CH}
    s_cmp_ge_u32 s20, {3*CH}
    s_cselect_b32 s30, {3*CH}, 0
    s_sub_u32 s20, s20, s30
    s_add_u32 s22, s22, 1
    s_cmp_lt_u32 s22, {NCH}
    s_cbranch_scc1 {name}_sloop
    s_cmp_lg_u32 s23, 0
    s_cbranch_scc1 {name}_end
    s_barrier
    v_mov_b32 v{u0}, {FLAG}
    ds_read_b32 v{u1}, v{u0}
    s_waitcnt lgkmcnt(0)
    v_readfirstlane_b32 s30, v{u1}
    s_nop 3
    s_cmp_eq_u32 s30, 0
    s_cbranch_scc1 {name}_end
    s_mov_b32 s22, 0
    s_mov_b32 s20, 0
    """)
    a.label(f"{name}_smax")
    a("s_barrier")
    a("s_mov_b32 s25, s22")
    issue_chunk(20, "s25")
    a("s_waitcnt vmcnt(0)\ns_barrier")
    a(f"s_add_u32 s22, s22, 1\ns_cmp_lt_u32 s22, {NCH}\ns_cbranch_scc1 {name}_smax")
    a("s_barrier")
    a("s_mov_b32 s20, 0")
    issue_chunk(20, "0")
    a(f"s_mov_b32 s20, {CH}")
    issue_chunk(20, "1")
    a("s_waitcnt vmcnt(0)\ns_barrier\ns_mov_b32 s23, 1")
    a(f"s_branch {name}_smain")
    a.label(f"{name}_end")
    a("s_endpgm")
    return a.text(), max(V.hi, S.hi), RPK + 4*8192
```

```python
from common import *
import os
SCX = '' if os.environ.get('NOSC1') else ' sc1'
SCX2 = ' sc1' if os.environ.get('SC1X2') else ''
import os

def k_gemm(name, kind):
    a = Asm()
    if kind == 'wo':
        BM, NT, NREG, K, D, G, wsec = 64, 5, 1, 640, 8, 2, WP_WO
        xoff, xbytes = O_OFF, REG
    elif kind == 'down':
        BM, NT, NREG, K, D, G, wsec = 64, 5, 1, 1728, 8, 2, WP_WD
        xoff, xbytes = ACT_OFF, ACT_BYTES
    else:
        BM, NT, NREG, K, D, G, wsec = 128, 7, 2, 640, 7, 1, WP_GU
        xoff, xbytes = H_OFF, REG
    NC = NT*16
    XTBS = (K//8)*1024
    HTBS = 81920; ATBS = 221184
    MT = BM // 64; NTT = NT * NREG
    XB = G * 4 * BM * 16; WB = G * NTT * 1024
    STG = XB + WB
    NST = K // (32*G)
    NXT = XB // 1024
    NXI = NXT // 4
    NWT = G * NTT
    WIN = 4 if kind == 'gu' else 5
    entry(a, name)
    sh = 2 if kind == 'gu' else 1
    a(f"""
    s_and_b32 s35, s2, 7                 ; xcd
    s_lshr_b32 s31, s2, 3                ; idx
    s_and_b32 s32, s31, 7
    s_lshr_b32 s33, s31, 3
    s_lshr_b32 s34, s35, {sh}
    s_lshl_b32 s34, s34, 3
    s_add_u32 s16, s34, s32              ; rb
    s_and_b32 s34, s35, {(1<<sh)-1}
    s_lshl_b32 s34, s34, 2
    s_add_u32 s17, s34, s33              ; cb
    s_mul_i32 s28, s17, {NC*2}
    s_cmp_ge_u32 s18, 4
    s_cbranch_scc1 {name}_loader
    """)
    V = VAlloc(3)
    t0 = V.get(); t1 = V.get(); t2 = V.get(); t3 = V.get()
    vXl = V.get(); vWl = V.get(); vXa = V.get(); vWa = V.get()
    a(f"""
    v_and_b32 v{t0}, 15, v2              ; tok
    v_lshrrev_b32 v{t1}, 4, v2           ; g
    v_mul_u32_u24 v{vXl}, {BM*16}, v{t1}
    v_lshl_add_u32 v{vXl}, v{t0}, 4, v{vXl}
    s_mul_i32 s30, s18, {16*MT*16}
    v_add_u32 v{vXl}, s30, v{vXl}
    v_lshlrev_b32 v{vWl}, 4, v2
    v_add_u32 v{vWl}, {XB}, v{vWl}
    """)
    XF = [[V.get(4, 4) for mt in range(MT)] for b in range(2)]
    WF = [V.get(4, 4) for _ in range(WIN)]
    ACC = [[V.get(4, 4) for mt in range(MT)] for nt in range(NTT)]
    for nt in range(NTT):
        for mt in range(MT):
            for r in range(4):
                a(f"v_mov_b32 v{ACC[nt][mt]+r}, 0")
    vq = V.get(); vtok = V.get(); vcm = V.get()
    a(f"""
    v_lshrrev_b32 v{vq}, 4, v2           ; q
    v_and_b32 v{vtok}, 15, v2
    s_mul_i32 s30, s16, {BM}
    s_mul_i32 s31, s18, {16*MT}
    s_add_u32 s30, s30, s31
    v_add_u32 v{vtok}, s30, v{vtok}
    s_lshr_b32 s29, s30, 6
    v_and_b32 v{t0}, 63, v{vtok}
    v_lshlrev_b32 v{t0}, 4, v{t0}
    v_lshrrev_b32 v{t1}, 1, v{vq}
    v_lshl_add_u32 v{t0}, v{t1}, 10, v{t0}
    v_and_b32 v{t1}, 1, v{vq}
    v_lshl_add_u32 v{vcm}, v{t1}, 3, v{t0}
    s_waitcnt lgkmcnt(0)
    """)
    if kind in ('wo', 'down'):
        RES = [V.get(2, 2) for _ in range(NT)]
    else:
        CS = [V.get(4, 4) for _ in range(NTT)]
    if kind in ('gu', 'down'):
        STT = [V.get(4, 4) for _ in range(MT)]
    def epi_loads():
        if kind == 'wo':
            srd(a, 12, P['ws'], REG, H_OFF); srd(a, 36, P['x'], REG); srd(a, 40, P['ws'], ST_BYTES, ST_OFF)
            a(f"v_mul_u32_u24 v{t0}, 1280, v{vtok}\nv_lshl_add_u32 v{t0}, v{vq}, 3, v{t0}")
            for nt in range(NT):
                a(f"buffer_load_dwordx2 {vr(RES[nt],2)}, v{t0}, s[36:39], s28 offen offset:{nt*32}")
        elif kind == 'down':
            srd(a, 12, P['out'], REG); srd(a, 36, P['ws'], REG, H_OFF); srd(a, 40, P['ws'], ST_BYTES, ST_OFF)
            a(f"""
            s_mul_i32 s30, s17, {10*1024}
            s_mul_i32 s31, s29, {HTBS}
            s_add_u32 s30, s30, s31
            """)
            for nt in range(NT):
                a(f"buffer_load_dwordx2 {vr(RES[nt],2)}, v{vcm}, s[36:39], s30 offen offset:{nt*2048 if nt < 2 else 0}") if nt < 2 else (a(f"s_add_u32 s31, s30, {nt*2048}"), a(f"buffer_load_dwordx2 {vr(RES[nt],2)}, v{vcm}, s[36:39], s31 offen"))
        else:
            srd(a, 12, P['ws'], ACT_BYTES, ACT_OFF); srd(a, 36, P['ws'], CS_BYTES, CS_OFF); srd(a, 40, P['ws'], ST_BYTES, ST_OFF)
            a(f"v_lshlrev_b32 v{t0}, 4, v{vq}\ns_mul_i32 s30, s17, {112*4}")
            for rg in range(2):
                for nt in range(NT):
                    a(f"s_add_u32 s31, s30, {rg*FF*4 + nt*64}")
                    a(f"buffer_load_dwordx4 {vr(CS[rg*NT+nt],4)}, v{t0}, s[36:39], s31 offen")
        if kind in ('gu', 'down'):
            a(f"v_lshlrev_b32 v{t1}, 6, v{vtok}\nv_lshl_add_u32 v{t1}, v{vq}, 4, v{t1}")
            for mt in range(MT):
                a(f"buffer_load_dwordx4 {vr(STT[mt],4)}, v{t1}, s[40:43], 0 offen offset:{mt*16*64}")
    q = LdsQ(a)
    JOBS = 2 * NTT
    assert JOBS % WIN == 0
    def xread(ks):
        off = (ks*4*BM*16) if G == 2 else 0
        for mt in range(MT):
            q.issue(('x', ks & 1), f"ds_read_b128 {vr(XF[ks&1][mt],4)}, v{vXa} offset:{off + mt*256}")
    def wread(u):
        off = u*1024 if G == 2 else (u % NTT)*1024
        q.issue(('w', u), f"ds_read_b128 {vr(WF[u % WIN],4)}, v{vWa} offset:{off}")
    def set_read_addr():
        a(f"v_add_u32 v{vXa}, s45, v{vXl}\nv_add_u32 v{vWa}, s45, v{vWl}")
    def job_mfma(u):
        ks, nt = divmod(u, NTT)
        slot = u % WIN
        q.need({('w', u), ('x', ks & 1)})
        for mt in range(MT):
            if os.environ.get("NOMFMA"): continue
            a(f"v_mfma_f32_16x16x32_bf16 {vr(ACC[nt][mt],4)}, {vr(WF[slot],4)}, {vr(XF[ks&1][mt],4)}, {vr(ACC[nt][mt],4)}")
    def enter(check_exit):
        if check_exit:
            a(f"s_add_u32 s49, s49, 1")
            a(f"s_cmp_ge_u32 s49, {K//64}\ns_cbranch_scc1 {name}_tail")
        a(f"""
        s_add_u32 s45, s45, {STG}
        s_cmp_ge_u32 s45, {D*STG}
        s_cselect_b32 s30, {D*STG}, 0
        s_sub_u32 s45, s45, s30
        s_barrier
        """)
        set_read_addr()
    a("s_mov_b32 s49, 0\ns_mov_b32 s45, 0")
    a("; STAMP 0")
    a("s_barrier")
    a("; STAMP 1")
    set_read_addr()
    xread(0)
    for u in range(WIN): wread(u)
    epi_loads()
    a.label(f"{name}_loop")
    qstate = list(q.q)
    for u in range(JOBS):
        if u == JOBS - WIN:
            enter(True)
            xread(0)
        if u == NTT - WIN:
            if G == 1: enter(False)
            xread(1)
        job_mfma(u)
        wread((u + WIN) % JOBS)
    assert q.q == qstate, (q.q, qstate)
    a(f"s_branch {name}_loop")
    a.label(f"{name}_tail")
    a("; STAMP 2")
    a("s_waitcnt lgkmcnt(0)")
    q.drain()
    for u in range(JOBS - WIN, JOBS):
        job_mfma(u)
    a("s_waitcnt vmcnt(0)")
    def red_q(reg):
        a(f"""
        v_mov_b32 v{t0}, v{reg}
        s_nop 1
        v_permlane32_swap_b32 v{t0}, v{reg}
        s_nop 1
        v_add_f32 v{reg}, v{reg}, v{t0}
        v_mov_b32 v{t0}, v{reg}
        s_nop 1
        v_permlane16_swap_b32 v{t0}, v{reg}
        s_nop 1
        v_add_f32 v{reg}, v{reg}, v{t0}
        """)
    if kind in ('gu', 'down'):
        mu = [V.get(2, 2) for _ in range(MT)]; rs_ = [V.get() for _ in range(MT)]
        for mt in range(MT):
            s_ = STT[mt]
            a(f"v_add_f32 v{s_}, v{s_}, v{s_+2}\nv_add_f32 v{s_+1}, v{s_+1}, v{s_+3}")
            red_q(s_); red_q(s_+1)
            a(f"""
            s_mov_b32 s30, {f32bits(1.0/DM)}
            v_mul_f32 v{mu[mt]}, s30, v{s_}
            v_mul_f32 v{s_+1}, s30, v{s_+1}
            v_fma_f32 v{s_+1}, -v{mu[mt]}, v{mu[mt]}, v{s_+1}
            v_max_f32 v{s_+1}, 0, v{s_+1}
            v_add_f32 v{s_+1}, {f32bits(1e-5)}, v{s_+1}
            v_rsq_f32 v{rs_[mt]}, v{s_+1}
            v_sub_f32 v{mu[mt]}, 0, v{mu[mt]}
            """)
    a("; STAMP 3")
    if kind in ('wo', 'down'):
        pk = V.get(2, 2)
        if kind == 'wo':
            ssum = V.get(); ssq = V.get()
            a(f"""
            v_mov_b32 v{t3}, v{vcm}
            s_mul_i32 s30, s17, {10*1024}
            s_mul_i32 s31, s29, {HTBS}
            s_add_u32 s30, s30, s31
            v_mov_b32 v{ssum}, 0
            v_mov_b32 v{ssq}, 0
            """)
        else:
            a(f"""
            v_mul_u32_u24 v{t3}, 1280, v{vtok}
            v_lshl_add_u32 v{t3}, v{vq}, 3, v{t3}
            v_mul_f32 v{rs_[0]}, {f32bits(-math.log(2.0))}, v{rs_[0]}
            """)
        for nt in range(NT):
            acc = ACC[nt][0]; r = RES[nt]
            a(f"v_lshlrev_b32 v{t1}, 16, v{r}\nv_and_b32 v{t2}, 0xffff0000, v{r}")
            if kind == 'wo':
                a(f"v_add_f32 v{acc}, v{acc}, v{t1}\nv_add_f32 v{acc+1}, v{acc+1}, v{t2}")
            else:
                a(f"v_fma_f32 v{acc}, v{acc}, v{rs_[0]}, v{t1}\nv_fma_f32 v{acc+1}, v{acc+1}, v{rs_[0]}, v{t2}")
            a(f"v_lshlrev_b32 v{t1}, 16, v{r+1}\nv_and_b32 v{t2}, 0xffff0000, v{r+1}")
            if kind == 'wo':
                a(f"v_add_f32 v{acc+2}, v{acc+2}, v{t1}\nv_add_f32 v{acc+3}, v{acc+3}, v{t2}")
            else:
                a(f"v_fma_f32 v{acc+2}, v{acc+2}, v{rs_[0]}, v{t1}\nv_fma_f32 v{acc+3}, v{acc+3}, v{rs_[0]}, v{t2}")
            a(f"v_cvt_pk_bf16_f32 v{pk}, v{acc}, v{acc+1}\nv_cvt_pk_bf16_f32 v{pk+1}, v{acc+2}, v{acc+3}")
            if kind == 'wo':
                a(f"s_add_u32 s31, s30, {nt*2048}")
                a(f"buffer_store_dwordx2 {vr(pk,2)}, v{t3}, s[12:15], s31 offen{SCX2}")
                for h_ in range(2):
                    a(f"""
                    v_lshlrev_b32 v{t1}, 16, v{pk+h_}
                    v_and_b32 v{t2}, 0xffff0000, v{pk+h_}
                    v_add_f32 v{ssum}, v{ssum}, v{t1}
                    v_fmac_f32 v{ssq}, v{t1}, v{t1}
                    v_add_f32 v{ssum}, v{ssum}, v{t2}
                    v_fmac_f32 v{ssq}, v{t2}, v{t2}
                    """)
            else:
                a(f"buffer_store_dwordx2 {vr(pk,2)}, v{t3}, s[12:15], s28 offen offset:{nt*32}{SCX2}")
        if kind == 'wo':
            red_q(ssum); red_q(ssq)
            st2 = V.get(2, 2)
            a(f"""
            v_mov_b32 v{st2}, v{ssum}
            v_mov_b32 v{st2+1}, v{ssq}
            v_lshlrev_b32 v{t0}, 6, v{vtok}
            s_lshl_b32 s30, s17, 3
            s_mov_b64 exec, 0xffff
            buffer_store_dwordx2 {vr(st2,2)}, v{t0}, s[40:43], s30 offen
            """)
    else:
        ag = [V.get(2, 2) for _ in range(MT)]
        for mt in range(MT):
            a(f"v_mul_f32 v{ag[mt]}, {f32bits(-math.log2(math.e))}, v{rs_[mt]}")
        pk = V.get(4, 4); vo = V.get(); w = V.get(4, 2); e = V.get(4, 2); one2 = V.get(2, 2)
        a(f"v_mov_b32 v{one2}, 1.0\nv_mov_b32 v{one2+1}, 1.0")
        a(f"""
        v_and_b32 v{t0}, 63, v{vtok}
        v_and_b32 v{t1}, 1, v{vq}
        v_lshl_add_u32 v{t0}, v{t1}, 4, v{t0}
        v_lshlrev_b32 v{t0}, 4, v{t0}
        v_lshrrev_b32 v{t1}, 1, v{vq}
        v_lshl_add_u32 v{vo}, v{t1}, 10, v{t0}
        s_mul_i32 s30, s17, {14*1024}
        s_mul_i32 s31, s29, {ATBS}
        s_add_u32 s30, s30, s31
        """)
        for nt in range(NT):
            if nt == 3:
                a(f"s_cmp_eq_u32 s17, 15\ns_cbranch_scc1 {name}_end")
            for mt in range(MT):
                g = ACC[nt][mt]; u_ = ACC[NT+nt][mt]; cg = CS[nt]; cu = CS[NT+nt]
                for r in (0, 2): a(f"v_pk_fma_f32 {vr(g+r,2)}, {vr(cg+r,2)}, {vr(mu[mt],2)}, {vr(g+r,2)} op_sel_hi:[1,0,1]")
                for r in (0, 2): a(f"v_pk_mul_f32 {vr(w+r,2)}, {vr(g+r,2)}, {vr(ag[mt],2)} op_sel_hi:[1,0]")
                for r in range(4): a(f"v_exp_f32 v{e+r}, v{w+r}")
                for r in (0, 2): a(f"v_pk_fma_f32 {vr(u_+r,2)}, {vr(cu+r,2)}, {vr(mu[mt],2)}, {vr(u_+r,2)} op_sel_hi:[1,0,1]")
                for r in (0, 2): a(f"v_pk_add_f32 {vr(e+r,2)}, {vr(e+r,2)}, {vr(one2,2)}")
                for r in range(4): a(f"v_rcp_f32 v{e+r}, v{e+r}")
                for r in (0, 2): a(f"v_pk_mul_f32 {vr(w+r,2)}, {vr(w+r,2)}, {vr(u_+r,2)}")
                for r in (0, 2): a(f"v_pk_mul_f32 {vr(w+r,2)}, {vr(w+r,2)}, {vr(e+r,2)}")
                a(f"v_cvt_pk_bf16_f32 v{pk+2*mt}, v{w}, v{w+1}")
                a(f"v_cvt_pk_bf16_f32 v{pk+2*mt+1}, v{w+2}, v{w+3}")
            a("s_nop 1")
            a(f"v_permlane16_swap_b32 v{pk}, v{pk+2}")
            a(f"v_permlane16_swap_b32 v{pk+1}, v{pk+3}")
            a(f"s_add_u32 s31, s30, {nt*2048}")
            a(f"buffer_store_dwordx4 {vr(pk,4)}, v{vo}, s[12:15], s31 offen{SCX}")
            a("s_nop 1")
    a(f"s_branch {name}_end")
    a.label(f"{name}_loader")
    L = VAlloc(3)
    vd = L.get()
    ra, rb_ = (3, 7) if NST == 27 else ((1, 3) if NST == 10 else (2, 5))
    if os.environ.get('NOROT'): ra, rb_ = 0, 0
    a(f"""
    s_sub_u32 s18, s18, 4
    v_lshlrev_b32 v{vd}, 4, v2
    s_mul_i32 s50, s18, {NXI // (BM//64) * 1024}
    s_mul_i32 s30, s16, {(BM//64)*XTBS}
    s_add_u32 s50, s50, s30
    s_mul_i32 s25, s18, {NXI*1024}
    s_lshl_b32 s27, s18, 10
    s_add_u32 s27, s27, {XB}
    s_mul_i32 s51, s17, {(K//32)*NTT*1024}
    s_lshl_b32 s30, s18, 10
    s_add_u32 s51, s51, s30
    s_add_u32 s51, s51, {wsec}
    s_mul_i32 s30, s32, {ra}
    s_mul_i32 s31, s33, {rb_}
    s_add_u32 s44, s30, s31
    s_cmp_ge_u32 s44, {NST}
    s_cselect_b32 s30, {NST}, 0
    s_sub_u32 s44, s44, s30
    s_cmp_ge_u32 s44, {NST}
    s_cselect_b32 s30, {NST}, 0
    s_sub_u32 s44, s44, s30
    s_mov_b32 s46, 0
    s_waitcnt lgkmcnt(0)
    """)
    srd(a, 4, P['ws'], xbytes, xoff)
    srd(a, 8, P['ws'], WPX, WP_OFF)
    NWI = (NWT + 3)//4
    uneven = NWT % 4 != 0
    per_hi = NXI + NWI
    per_lo = NXI + NWI - (1 if uneven else 0)
    def issue_stage():
        a(f"s_mul_i32 s47, s44, {G*4*1024}\ns_add_u32 s47, s47, s50")
        a(f"s_mul_i32 s48, s44, {WB}\ns_add_u32 s48, s48, s51")
        a(f"s_add_u32 s52, s27, s46\ns_add_u32 s53, s25, s46")
        for i in range(NWI):
            lab = None
            if uneven and i == NWI - 1:
                lab = a.newlabel(name + "_sk")
                a(f"s_cmp_ge_u32 s18, {NWT % 4}\ns_cbranch_scc1 {lab}")
            a(f"s_add_u32 m0, s52, {i*4096}")
            a(f"s_add_u32 s31, s48, {i*4096}")
            if not os.environ.get("NODMAW"): a(f"buffer_load_dwordx4 v{vd}, s[8:11], s31 offen lds")
            if lab: a.label(lab)
        for i in range(NXI):
            c, tg = divmod(i, BM//64)
            a(f"s_add_u32 m0, s53, {i*1024}")
            a(f"s_add_u32 s31, s47, {c*1024 + tg*XTBS}")
            if not os.environ.get("NODMAX"): a(f"buffer_load_dwordx4 v{vd}, s[4:7], s31 offen lds")
        a(f"""
        s_add_u32 s44, s44, 1
        s_cmp_ge_u32 s44, {NST}
        s_cselect_b32 s30, {NST}, 0
        s_sub_u32 s44, s44, s30
        s_add_u32 s46, s46, {STG}
        s_cmp_ge_u32 s46, {D*STG}
        s_cselect_b32 s30, {D*STG}, 0
        s_sub_u32 s46, s46, s30
        """)
    def vmw(n_st, extra=0):
        if extra:
            if per_hi != per_lo:
                l1 = a.newlabel(name + "_w"); le = a.newlabel(name + "_w")
                a(f"s_cmp_ge_u32 s18, {NWT % 4}\ns_cbranch_scc1 {l1}")
                a(f"s_waitcnt vmcnt({per_hi*n_st + extra})\ns_branch {le}")
                a.label(l1)
                a(f"s_waitcnt vmcnt({per_lo*n_st + extra})")
                a.label(le)
            else:
                a(f"s_waitcnt vmcnt({per_hi*n_st + extra})")
            return
        if per_hi != per_lo:
            l1 = a.newlabel(name + "_w"); le = a.newlabel(name + "_w")
            a(f"s_cmp_ge_u32 s18, {NWT % 4}\ns_cbranch_scc1 {l1}")
            a(f"s_waitcnt vmcnt({per_hi*n_st})\ns_branch {le}")
            a.label(l1)
            a(f"s_waitcnt vmcnt({per_lo*n_st})")
            a.label(le)
        else:
            a(f"s_waitcnt vmcnt({per_hi*n_st})")
    if kind in ('wo', 'gu') and not os.environ.get("NOPF"):
        nlines = 8960 if kind == 'wo' else 8640
        base = WP_GU if kind == 'wo' else WP_WD
        msk = 3 if kind == 'wo' else 1
        pf = L.get(); pfd = L.get()
        PFTXT = f"""
        s_lshr_b32 s30, s2, 3
        s_lshl_b32 s30, s30, 2
        s_add_u32 s30, s30, s18
        s_mul_i32 s30, s30, {70*128}
        s_and_b32 s31, s35, {msk}
        s_mul_i32 s31, s31, {nlines*128}
        s_add_u32 s30, s30, s31
        s_add_u32 s30, s30, {base}
        v_lshlrev_b32 v{pf}, 7, v2
        buffer_load_dword v{pfd}, v{pf}, s[8:11], s30 offen
        s_add_u32 s30, s30, {64*128}
        s_mov_b64 exec, 0x3f
        buffer_load_dword v{pfd}, v{pf}, s[8:11], s30 offen
        s_mov_b64 exec, -1
        """
    do_pf = kind in ('wo', 'gu') and not os.environ.get("NOPF")
    a("; STAMP 4")
    issued = min(2, D)
    plan = []
    for j in range(NST):
        ow = issued - 1 - j
        lim = min(NST, max(D, j - 1 + D))
        n_new = max(0, min(2, lim - issued))
        plan.append((ow, n_new)); issued += n_new
    assert issued == NST
    runs = []
    for p in plan:
        if runs and runs[-1][0] == p: runs[-1][1] += 1
        else: runs.append([p, 1])
    for _ in range(min(2, D)): issue_stage()
    tot = min(2, D); extra = 0
    for (ow, nn), cnt in runs:
        if cnt > 1:
            lab = a.newlabel(name + "_ll")
            a(f"s_mov_b32 s49, 0")
            a.label(lab)
            vmw(ow, extra); a("s_barrier")
            for _ in range(nn): issue_stage()
            a(f"s_add_u32 s49, s49, 1\ns_cmp_lt_u32 s49, {cnt}\ns_cbranch_scc1 {lab}")
        else:
            vmw(ow, extra); a("s_barrier")
            for _ in range(nn): issue_stage()
        tot += nn*cnt
        if tot == NST and do_pf and not extra:
            a(PFTXT); extra = 2
    a.label(f"{name}_end")
    a("s_endpgm")
    return a.text(), max(V.hi, L.hi), D*STG
```

```python
from common import *
import os
SCX = '' if os.environ.get('NOSC1') else ' sc1'
SCX2 = ' sc1' if os.environ.get('SC1X2') else ''

import os
def k_qkv(name="qkv_kernel"):
    a = Asm()
    D = 4; NST = 10; STG = 32768
    STATS = D*STG
    QS = (DH ** -0.5) * math.log2(math.e)
    entry(a, name)
    a(f"""
    s_cmp_ge_u32 s2, 240
    s_cbranch_scc1 {name}_colsum
    s_and_b32 s30, s2, 7          ; xcd
    s_lshr_b32 s31, s2, 3         ; idx 0..29
    s_and_b32 s32, s30, 1
    s_mul_i32 s32, s32, 30
    s_add_u32 s32, s32, s31       ; t 0..59
    s_lshr_b32 s17, s32, 2        ; cb
    s_and_b32 s33, s32, 3
    s_lshr_b32 s30, s30, 1
    s_lshl_b32 s30, s30, 2
    s_add_u32 s16, s30, s33       ; rb
    s_cmp_ge_u32 s18, 8
    s_cbranch_scc1 {name}_stats
    s_cmp_ge_u32 s18, 4
    s_cbranch_scc1 {name}_loader
    s_lshr_b32 s19, s18, 1        ; wm
    s_and_b32 s20, s18, 1         ; wn
    """)
    V = VAlloc(3)
    t0 = V.get(); t1 = V.get(); t2 = V.get(); t3 = V.get()
    dead0 = V.n
    lX = [[V.get() for sm in range(2)] for s in range(4)]
    lW = [V.get() for sn in range(2)]
    aX = [[V.get() for sm in range(2)] for s in range(4)]
    aW = [V.get() for sn in range(2)]
    a(f"""
    v_and_b32 v{t0}, 31, v2               ; r
    v_lshrrev_b32 v{t1}, 5, v2            ; hh
    v_bfe_u32 v{t2}, v{t0}, 1, 3          ; f
    v_xor_b32 v{t2}, v{t2}, v{t1}
    v_lshlrev_b32 v{t2}, 4, v{t2}
    v_lshl_add_u32 v{t2}, v{t0}, 7, v{t2}
    s_lshl_b32 s30, s19, 13
    s_lshl_b32 s31, s20, 12
    s_add_u32 s30, s30, s31
    v_add_u32 v{t2}, s30, v{t2}
    """)
    for s in range(4):
        a(f"v_xor_b32 v{lX[s][0]}, {s*32}, v{t2}")
        a(f"v_xor_b32 v{lX[s][1]}, 0x1000, v{lX[s][0]}")
    a(f"""
    v_lshrrev_b32 v{t0}, 5, v2            ; g>>1
    v_bfe_u32 v{t1}, v2, 2, 2             ; rr
    v_lshl_add_u32 v{t0}, v{t0}, 3, v{t1}
    v_lshlrev_b32 v{t0}, 8, v{t0}
    v_bfe_u32 v{t2}, v2, 4, 1
    v_lshlrev_b32 v{t2}, 1, v{t2}
    v_bfe_u32 v{t3}, v2, 1, 1
    v_add_u32 v{t2}, v{t2}, v{t3}
    s_lshl_b32 s30, s20, 3
    s_lshl_b32 s31, s19, 2
    s_add_u32 s30, s30, s31
    v_add_u32 v{t2}, s30, v{t2}
    v_lshlrev_b32 v{t1}, 2, v{t1}
    v_xor_b32 v{t2}, v{t2}, v{t1}
    v_lshl_add_u32 v{t0}, v{t2}, 4, v{t0}
    v_and_b32 v{t3}, 1, v2
    v_lshl_add_u32 v{lW[0]}, v{t3}, 3, v{t0}
    v_add_u32 v{lW[0]}, 16384, v{lW[0]}
    v_xor_b32 v{lW[1]}, 64, v{lW[0]}
    """)
    XF = [[V.get(4, 4) for sm in range(2)] for b in range(2)]
    WF = [[V.get(4, 4) for sn in range(2)] for b in range(2)]
    dead1 = V.n
    ACC = [[V.get(16, 4) for j in range(2)] for i in range(2)]
    CSA = V.get(16, 4); ONE = V.get(4, 4)
    for i in range(2):
        for j in range(2):
            for r in range(16):
                a(f"v_mov_b32 v{ACC[i][j]+r}, 0")
    for r in range(16):
        a(f"v_mov_b32 v{CSA+r}, 0")
    for r in range(4):
        for j in range(2):
            a(f"v_mov_b32 v{XF[1][j]+r}, 0\nv_mov_b32 v{WF[1][j]+r}, 0")
    for r in range(4): a(f"v_mov_b32 v{ONE+r}, 0x3f803f80")
    def frag_reads(s):
        b = s & 1
        out = []
        for sm in range(2):
            out.append(f"ds_read_b128 {vr(XF[b][sm],4)}, v{aX[s][sm]}")
        for sn in range(2):
            for jh in range(2):
                out.append(f"ds_read_b64_tr_b16 {vr(WF[b][sn]+2*jh,2)}, v{aW[sn]} offset:{s*4096 + jh*1024}")
        return out
    def mfmas(b, vmode, fill=()):
        ops = []
        k = 0
        for sn in range(2):
            for sm in range(2):
                if os.environ.get("NOMFMA"): pass
                elif vmode:
                    ops.append(f"v_mfma_f32_32x32x16_bf16 {vr(ACC[sn][sm],16)}, {vr(XF[b][sm],4)}, {vr(WF[b][sn],4)}, {vr(ACC[sn][sm],16)}")
                else:
                    ops.append(f"v_mfma_f32_32x32x16_bf16 {vr(ACC[sn][sm],16)}, {vr(WF[b][sn],4)}, {vr(XF[b][sm],4)}, {vr(ACC[sn][sm],16)}")
                if k == 1 and not os.environ.get("NOCS"):
                    ops.append(f"v_mfma_f32_32x32x16_bf16 {vr(CSA,16)}, {vr(WF[b][0],4)}, {vr(ONE,4)}, {vr(CSA,16)}")
                k += 1
        fill = list(fill)
        per = (len(fill) + max(len(ops), 1) - 1) // max(len(ops), 1)
        for o in ops:
            a(o)
            for f in fill[:per]: a(f)
            fill = fill[per:]
        for f in fill: a(f)
    def mainloop(vmode, lab):
        a("s_mov_b32 s49, 0\ns_mov_b32 s45, 0")
        a("; STAMP 0")
        a.label(lab)
        a("s_waitcnt lgkmcnt(0)")
        a("s_barrier")
        adds0 = [f"v_add_u32 v{aX[0][sm]}, s45, v{lX[0][sm]}" for sm in range(2)] + [f"v_add_u32 v{aW[sn]}, s45, v{lW[sn]}" for sn in range(2)]
        adds1 = [f"v_add_u32 v{aX[s][sm]}, s45, v{lX[s][sm]}" for s in range(1, 4) for sm in range(2)]
        for x in adds0: a(x)
        mfmas(1, vmode, frag_reads(0) + adds1)
        for s in range(3):
            a("s_waitcnt lgkmcnt(0)")
            mfmas(s & 1, vmode, frag_reads(s + 1))
        a(f"""
        s_add_u32 s45, s45, {STG}
        s_and_b32 s45, s45, {D*STG-1}
        s_add_u32 s49, s49, 1
        s_cmp_lt_u32 s49, {NST}
        s_cbranch_scc1 {lab}
        s_waitcnt lgkmcnt(0)
        """)
        mfmas(1, vmode)
        a("; STAMP 2")
    def cs_publish():
        a(f"""
        s_nop 7
        s_nop 7
        v_lshrrev_b32 v{t0}, 5, v2           ; hh
        v_lshlrev_b32 v{t0}, 4, v{t0}
        s_lshl_b32 s30, s20, 6
        s_lshl_b32 s31, s19, 5
        s_add_u32 s30, s30, s31
        s_lshl_b32 s30, s30, 2
        s_add_u32 s30, s30, {STATS+1024}
        v_add_u32 v{t0}, s30, v{t0}
        s_mov_b32 s30, 1
        s_mov_b32 s31, 1
        s_mov_b64 exec, s[30:31]
        """)
        for aa in range(4):
            a(f"ds_write_b128 v{t0}, {vr(CSA+4*aa,4)} offset:{aa*32}")
        a("s_mov_b64 exec, -1\ns_waitcnt lgkmcnt(0)\ns_barrier")
        a("; STAMP 3")
    a("s_waitcnt lgkmcnt(0)")
    srd(a, 12, P['ws'], 3*REG)
    a(f"s_cmp_ge_u32 s17, 10\ns_cbranch_scc1 {name}_vpath")
    mainloop(False, f"{name}_lq")
    cs_publish()
    VM = V
    V = VAlloc(dead0, dead1)
    am = [V.get(), V.get()]; bm = [V.get(), V.get()]
    csr = [V.get(4, 4), V.get(4, 4)]; pk = [V.get(2, 2), V.get(2,2)]; vo = V.get(); vca = V.get(); w = [V.get() for _ in range(4)]
    th = V.get()
    a(f"""
    v_and_b32 v{t0}, 31, v2
    s_lshl_b32 s30, s19, 6
    s_lshl_b32 s31, s20, 5
    s_add_u32 s30, s30, s31
    v_add_lshl_u32 v{t1}, v{t0}, s30, 2
    v_add_u32 v{t1}, {STATS}, v{t1}
    v_xor_b32 v{t2}, 128, v{t1}
    ds_read_b32 v{am[0]}, v{t1}
    ds_read_b32 v{bm[0]}, v{t1} offset:512
    ds_read_b32 v{am[1]}, v{t2}
    ds_read_b32 v{bm[1]}, v{t2} offset:512
    v_lshrrev_b32 v{th}, 5, v2        ; hh
    v_lshlrev_b32 v{vca}, 4, v{th}
    s_lshl_b32 s30, s20, 8
    s_add_u32 s30, s30, {STATS}
    v_add_u32 v{vca}, s30, v{vca}
    s_cmp_lt_u32 s17, 5
    s_cselect_b32 s34, {f32bits(QS)}, 1.0
    s_cselect_b32 s35, {QF_OFF}, {KF_OFF}
    s_cselect_b32 s30, 0, 5
    s_sub_u32 s30, s17, s30              ; cbl
    s_lshl_b32 s31, s30, 5
    s_lshl_b32 s33, s20, 4
    s_add_u32 s31, s31, s33
    s_lshl_b32 s31, s31, 8
    s_add_u32 s35, s35, s31
    s_lshl_b32 s31, s16, 2
    s_lshl_b32 s33, s19, 1
    s_add_u32 s31, s31, s33
    s_mul_i32 s31, s31, 40960
    s_add_u32 s35, s35, s31
    v_lshlrev_b32 v{vo}, 8, v{th}
    v_lshl_add_u32 v{vo}, v{t0}, 3, v{vo}
    s_mul_i32 s46, s20, 40960
    s_sub_u32 s47, 40960, s46
    s_add_u32 s46, s46, s35
    s_add_u32 s47, s47, s35
    s_lshl_b32 s48, s19, 11
    s_sub_u32 s49, 2048, s48
    s_lshl_b32 s50, s19, 7
    s_sub_u32 s51, 128, s50
    v_add_u32 v{t1}, s50, v{vca}
    v_add_u32 v{t2}, s51, v{vca}
    ds_read_b128 {vr(csr[0],4)}, v{t1} offset:1024
    s_waitcnt lgkmcnt(1)
    v_mul_f32 v{am[0]}, s34, v{am[0]}
    v_mul_f32 v{bm[0]}, s34, v{bm[0]}
    v_mul_f32 v{am[1]}, s34, v{am[1]}
    v_mul_f32 v{bm[1]}, s34, v{bm[1]}
    """)
    items = [(sn, aa) for sn in range(2) for aa in range(4)]
    for i, (sn, aa) in enumerate(items):
        if i + 1 < len(items):
            sn2, aa2 = items[i+1]
            a(f"ds_read_b128 {vr(csr[(i+1)&1],4)}, v{t1 if sn2 == 0 else t2} offset:{1024 + aa2*32}")
            a("s_waitcnt lgkmcnt(1)")
        else:
            a("s_waitcnt lgkmcnt(0)")
        c = csr[i & 1]
        for sm in range(2):
            acc = ACC[sn][sm] + 4*aa
            for r in range(4): a(f"v_mul_f32 v{w[r]}, v{c+r}, v{bm[sm]}")
            for r in range(4): a(f"v_fmac_f32 v{w[r]}, v{acc+r}, v{am[sm]}")
            a(f"v_cvt_pk_bf16_f32 v{pk[sm]}, v{w[0]}, v{w[1]}")
            a(f"v_cvt_pk_bf16_f32 v{pk[sm]+1}, v{w[2]}, v{w[3]}")
            a(f"s_add_u32 s30, s{46+sm}, s{48+sn}")
            a(f"buffer_store_dwordx2 {vr(pk[sm],2)}, v{vo}, s[12:15], s30 offen offset:{aa*512}{SCX2}")
    a(f"s_branch {name}_end")
    a.label(f"{name}_vpath")
    V = VAlloc(dead0, dead1)
    mainloop(True, f"{name}_lv")
    cs_publish()
    csn = [V.get(), V.get()]
    rs4 = [V.get(4, 4), V.get(4, 4)]; nb4 = [V.get(4, 4), V.get(4, 4)]; pk4 = V.get(4, 4); vo = V.get(); vra = V.get()
    wv = [V.get() for _ in range(8)]; th = V.get()
    a(f"""
    v_and_b32 v{t0}, 31, v2
    v_lshrrev_b32 v{th}, 5, v2        ; hh
    s_lshl_b32 s30, s20, 6
    s_lshl_b32 s31, s19, 5
    s_add_u32 s30, s30, s31
    v_add_lshl_u32 v{t1}, v{t0}, s30, 2
    v_add_u32 v{t1}, {STATS}, v{t1}
    v_xor_b32 v{t2}, 128, v{t1}
    ds_read_b32 v{csn[0]}, v{t1} offset:1024
    ds_read_b32 v{csn[1]}, v{t2} offset:1024
    v_lshlrev_b32 v{vra}, 4, v{th}
    s_lshl_b32 s30, s19, 8
    s_add_u32 s30, s30, {STATS}
    v_add_u32 v{vra}, s30, v{vra}
    s_lshl_b32 s30, s16, 3
    s_lshl_b32 s31, s19, 2
    s_add_u32 s30, s30, s31
    s_mul_i32 s30, s30, 20480
    s_sub_u32 s31, s17, 10
    s_lshl_b32 s31, s31, 7
    s_lshl_b32 s33, s20, 6
    s_add_u32 s31, s31, s33
    s_lshl_b32 s31, s31, 4
    s_add_u32 s35, s30, s31
    s_add_u32 s35, s35, {VT_OFF}
    v_mul_u32_u24 v{vo}, 10240, v{th}
    v_lshl_add_u32 v{vo}, v{t0}, 4, v{vo}
    s_mul_i32 s46, s20, 40960
    s_sub_u32 s47, 40960, s46
    s_add_u32 s46, s46, s35
    s_add_u32 s47, s47, s35
    s_lshl_b32 s48, s19, 9
    s_sub_u32 s49, 512, s48
    s_lshl_b32 s50, s20, 7
    s_sub_u32 s51, 128, s50
    v_add_u32 v{t1}, s50, v{vra}
    v_add_u32 v{t2}, s51, v{vra}
    s_waitcnt lgkmcnt(0)
    """)
    for sm in range(2):
        ad = t1 if sm == 0 else t2
        for g in range(2):
            for ah in range(2):
                aa = 2*g + ah
                a(f"ds_read_b128 {vr(rs4[ah],4)}, v{ad} offset:{aa*32}")
                a(f"ds_read_b128 {vr(nb4[ah],4)}, v{ad} offset:{512 + aa*32}")
            a("s_waitcnt lgkmcnt(0)")
            for sn in range(2):
                for ah in range(2):
                    acc = ACC[sn][sm] + 4*(2*g + ah)
                    for i in range(4): a(f"v_mul_f32 v{wv[4*ah+i]}, v{nb4[ah]+i}, v{csn[sn]}")
                    for i in range(4): a(f"v_fmac_f32 v{wv[4*ah+i]}, v{acc+i}, v{rs4[ah]+i}")
                for i in range(4):
                    a(f"v_cvt_pk_bf16_f32 v{pk4+i}, v{wv[2*i]}, v{wv[2*i+1]}")
                a(f"s_add_u32 s30, s{46+sm}, s{48+sn}")
                a(f"s_add_u32 s30, s30, {g*20480}")
                a(f"buffer_store_dwordx4 {vr(pk4,4)}, v{vo}, s[12:15], s30 offen{SCX}")
                a("s_nop 1")
    a(f"s_branch {name}_end")
    a.label(f"{name}_loader")
    L = VAlloc(3)
    t0 = L.get(); t1 = L.get(); t2 = L.get(); t3 = L.get()
    vXd = [L.get(), L.get()]; vWd = L.get()
    a(f"""
    s_sub_u32 s18, s18, 4
    s_mul_i32 s21, s16, {128*1280}
    s_mul_i32 s30, s18, {32*1280}
    s_add_u32 s21, s21, s30
    s_mul_i32 s22, s18, {16*3840}
    s_lshl_b32 s30, s17, 8
    s_add_u32 s22, s22, s30
    s_lshl_b32 s23, s18, 12
    s_add_u32 s24, s23, 16384
    v_lshrrev_b32 v{t0}, 3, v2
    v_and_b32 v{t1}, 7, v2
    v_lshrrev_b32 v{t2}, 1, v{t0}
    v_xor_b32 v{t3}, v{t1}, v{t2}
    v_mul_u32_u24 v{t0}, 1280, v{t0}
    v_lshl_add_u32 v{vXd[0]}, v{t3}, 4, v{t0}
    v_xor_b32 v{t3}, 4, v{t3}
    v_lshl_add_u32 v{vXd[1]}, v{t3}, 4, v{t0}
    v_lshrrev_b32 v{t0}, 4, v2
    v_and_b32 v{t1}, 15, v2
    v_lshlrev_b32 v{t2}, 2, v{t0}
    v_xor_b32 v{t1}, v{t1}, v{t2}
    v_mul_u32_u24 v{t0}, 3840, v{t0}
    v_lshl_add_u32 v{vWd}, v{t1}, 4, v{t0}
    s_waitcnt lgkmcnt(0)
    """)
    srd(a, 4, P['x'], REG)
    srd(a, 8, P['wqkv'], DM*3*DM*2)
    def dma(i):
        if i == 0:
            a(f"s_lshl_b32 s47, s44, 7\ns_mul_i32 s48, s44, {64*3840}")
        if i < 4:
            a(f"s_add_u32 s30, s24, s46\ns_add_u32 m0, s30, {i*1024}")
            a(f"s_add_u32 s31, s22, s48\ns_add_u32 s31, s31, {i*4*3840}")
            if not os.environ.get("NODMAW"): a(f"buffer_load_dwordx4 v{vWd}, s[8:11], s31 offen lds")
        else:
            i -= 4
            a(f"s_add_u32 s30, s23, s46\ns_add_u32 m0, s30, {i*1024}")
            a(f"s_add_u32 s31, s21, s47\ns_add_u32 s31, s31, {i*8*1280}")
            if not os.environ.get("NODMAX"): a(f"buffer_load_dwordx4 v{vXd[i&1]}, s[4:7], s31 offen lds")
    def adv():
        a(f"""
        s_add_u32 s44, s44, 1
        s_cmp_ge_u32 s44, {NST}
        s_cselect_b32 s30, {NST}, 0
        s_sub_u32 s44, s44, s30
        s_add_u32 s46, s46, {STG}
        s_and_b32 s46, s46, {D*STG-1}
        """)
    a("; STAMP 4")
    RA, RB = [int(x) for x in os.environ.get("QROT", "0,0").split(",")]
    a(f"""
    s_and_b32 s30, s16, 3
    s_mul_i32 s30, s30, {RA}
    s_mul_i32 s31, s17, {RB}
    s_add_u32 s44, s30, s31
    s_mul_i32 s30, s44, 6554
    s_lshr_b32 s30, s30, 16
    s_mul_i32 s30, s30, 10
    s_sub_u32 s44, s44, s30
    s_mov_b32 s46, 0
    """)
    if os.environ.get("NOROT"): a("s_mov_b32 s44, 0")
    for st in range(2):
        for i in range(8): dma(i)
        adv()
    def lbody(n_wait, n_issue, stamp=None):
        a(f"s_waitcnt vmcnt({n_wait})")
        if stamp is not None: a(f"; STAMP {stamp}")
        a("s_barrier")
        for _ in range(n_issue):
            for i in range(8): dma(i)
            adv()
    lbody(8, 2, 5)
    a("s_mov_b32 s49, 1")
    a.label(f"{name}_lloop")
    lbody(8*(D-2), 1)
    a(f"s_add_u32 s49, s49, 1\ns_cmp_le_u32 s49, {NST-D}\ns_cbranch_scc1 {name}_lloop")
    for j in range(NST-D+1, NST):
        lbody(8*(NST-1-j), 0, 6 if j == NST-1 else None)
    a("s_barrier")
    a(f"s_branch {name}_end")
    a.label(f"{name}_stats")
    T = VAlloc(3)
    t0 = T.get(); t1 = T.get(); t2 = T.get()
    lS = [T.get() for _ in range(4)]; aS = [T.get() for _ in range(4)]
    XS = [T.get(4, 4) for _ in range(4)]
    su = [T.get(), T.get()]; sq = [T.get(), T.get()]; u0 = T.get(); u1 = T.get(); u2 = T.get(); u3 = T.get(); pfa = T.get(); pfd = T.get()
    a(f"""
    s_sub_u32 s18, s18, 8
    s_lshl_b32 s23, s18, 12
    v_and_b32 v{t0}, 31, v2
    v_lshrrev_b32 v{t1}, 5, v2
    v_lshlrev_b32 v{t1}, 2, v{t1}
    v_bfe_u32 v{t2}, v{t0}, 1, 3
    v_xor_b32 v{t2}, v{t2}, v{t1}
    v_lshlrev_b32 v{t2}, 4, v{t2}
    v_lshl_add_u32 v{t2}, v{t0}, 7, v{t2}
    v_add_u32 v{t2}, s23, v{t2}
    """)
    if not os.environ.get("NOPF0"):
        a("s_waitcnt lgkmcnt(0)")
        srd(a, 4, P['x'], REG)
        srd(a, 8, P['wqkv'], DM*3*DM*2)
        a(f"""
        s_lshl_b32 s30, s2, 2
        s_add_u32 s30, s30, s18
        s_mul_i32 s31, s30, {22*128}
        s_mul_i32 s32, s30, {20*128}
        v_lshlrev_b32 v{pfa}, 7, v2
        s_mov_b64 exec, 0xfffff
        buffer_load_dword v{pfd}, v{pfa}, s[8:11], s32 offen
        s_mov_b64 exec, 0x3fffff
        buffer_load_dword v{pfd}, v{pfa}, s[4:7], s31 offen
        s_mov_b64 exec, -1
        """)
    for c in range(4):
        a(f"v_xor_b32 v{lS[c]}, {c*16}, v{t2}")
    for r in su + sq: a(f"v_mov_b32 v{r}, 0")
    a("s_mov_b32 s49, 0\ns_mov_b32 s45, 0")
    a.label(f"{name}_sloop")
    a("s_barrier")
    for c in range(4):
        a(f"v_add_u32 v{aS[c]}, s45, v{lS[c]}")
    for c in range(4):
        a(f"ds_read_b128 {vr(XS[c],4)}, v{aS[c]}")
    for c in range(4):
        a(f"s_waitcnt lgkmcnt({3-c})")
        if os.environ.get("NOSTATS"): continue
        for r in range(0, 4, 2):
            x = XS[c] + r
            a(f"""
            v_lshlrev_b32 v{u0}, 16, v{x}
            v_and_b32 v{u1}, 0xffff0000, v{x}
            v_lshlrev_b32 v{u2}, 16, v{x+1}
            v_and_b32 v{u3}, 0xffff0000, v{x+1}
            v_add_f32 v{su[0]}, v{su[0]}, v{u0}
            v_fmac_f32 v{sq[0]}, v{u0}, v{u0}
            v_add_f32 v{su[1]}, v{su[1]}, v{u1}
            v_fmac_f32 v{sq[1]}, v{u1}, v{u1}
            v_add_f32 v{su[0]}, v{su[0]}, v{u2}
            v_fmac_f32 v{sq[0]}, v{u2}, v{u2}
            v_add_f32 v{su[1]}, v{su[1]}, v{u3}
            v_fmac_f32 v{sq[1]}, v{u3}, v{u3}
            """)
    a(f"""
    s_add_u32 s45, s45, {STG}
    s_and_b32 s45, s45, {D*STG-1}
    s_add_u32 s49, s49, 1
    s_cmp_lt_u32 s49, {NST}
    s_cbranch_scc1 {name}_sloop
    v_add_f32 v{su[0]}, v{su[0]}, v{su[1]}
    v_add_f32 v{sq[0]}, v{sq[0]}, v{sq[1]}
    v_mov_b32 v{u0}, v{su[0]}
    v_mov_b32 v{u1}, v{sq[0]}
    s_nop 1
    v_permlane32_swap_b32 v{u0}, v{su[0]}
    v_permlane32_swap_b32 v{u1}, v{sq[0]}
    s_nop 1
    v_add_f32 v{su[0]}, v{su[0]}, v{u0}
    v_add_f32 v{sq[0]}, v{sq[0]}, v{u1}
    s_mov_b32 s30, {f32bits(1.0/DM)}
    v_mul_f32 v{su[0]}, s30, v{su[0]}
    v_mul_f32 v{sq[0]}, s30, v{sq[0]}
    v_fma_f32 v{sq[0]}, -v{su[0]}, v{su[0]}, v{sq[0]}
    v_max_f32 v{sq[0]}, 0, v{sq[0]}
    v_add_f32 v{sq[0]}, {f32bits(1e-5)}, v{sq[0]}
    v_rsq_f32 v{sq[0]}, v{sq[0]}
    s_nop 0
    v_mul_f32 v{su[0]}, v{su[0]}, v{sq[0]}
    v_sub_f32 v{su[0]}, 0, v{su[0]}
    v_and_b32 v{t0}, 31, v2
    s_lshl_b32 s30, s18, 7
    s_add_u32 s30, s30, {STATS}
    v_lshlrev_b32 v{t0}, 2, v{t0}
    v_add_u32 v{t0}, s30, v{t0}
    ds_write_b32 v{t0}, v{sq[0]}
    ds_write_b32 v{t0}, v{su[0]} offset:512
    s_waitcnt lgkmcnt(0)
    s_barrier
    s_branch {name}_end
    """)
    a.label(f"{name}_colsum")
    a(f"""
    s_cmp_ge_u32 s18, 8
    s_cbranch_scc1 {name}_csb
    s_sub_u32 s30, s2, 240
    s_lshr_b32 s31, s30, 3
    s_and_b32 s32, s30, 7
    s_waitcnt lgkmcnt(0)
    s_cmp_eq_u32 s31, 0
    s_cselect_b32 s4, s{P['wg']}, s{P['wu']}
    s_cselect_b32 s5, s{P['wg']+1}, s{P['wu']+1}
    s_mov_b32 s6, {DM*FF*2}
    s_mov_b32 s7, 0x00020000
    """)
    srd(a, 12, P['ws'], CS_BYTES, CS_OFF)
    C = VAlloc(3)
    c0 = C.get(); c1 = C.get(); vo = C.get()
    acc = C.get(8, 4)
    buf = C.get(80, 4)
    a(f"""
    v_and_b32 v{c0}, 31, v0              ; chunk c
    v_lshrrev_b32 v{c1}, 5, v0
    v_mul_u32_u24 v{vo}, {40*FF*2}, v{c1}
    v_lshl_add_u32 v{vo}, v{c0}, 4, v{vo}
    s_mul_i32 s33, s32, 432
    s_mov_b32 s46, 0x00003f80
    s_mov_b32 s47, 0x3f800000
    s_mov_b32 s49, 0
    """)
    for i in range(8):
        a(f"v_mov_b32 v{acc+i}, 0")
    a.label(f"{name}_csl")
    for i in range(20):
        a(f"s_add_u32 s30, s33, {i*FF*2}")
        a(f"buffer_load_dwordx4 {vr(buf+4*i,4)}, v{vo}, s[4:7], s30 offen")
    for i in range(20):
        a(f"s_waitcnt vmcnt({19-i})")
        for r in range(4):
            a(f"v_dot2c_f32_bf16 v{acc+2*r}, s46, v{buf+4*i+r}")
            a(f"v_dot2c_f32_bf16 v{acc+2*r+1}, s47, v{buf+4*i+r}")
    a(f"""
    s_add_u32 s33, s33, {20*FF*2}
    s_add_u32 s49, s49, 1
    s_cmp_lt_u32 s49, 2
    s_cbranch_scc1 {name}_csl
    s_nop 3
    v_lshlrev_b32 v{c1}, 5, v0
    ds_write_b128 v{c1}, {vr(acc,4)}
    ds_write_b128 v{c1}, {vr(acc+4,4)} offset:16
    s_waitcnt lgkmcnt(0)
    s_barrier
    v_lshlrev_b32 v{c1}, 2, v0
    """)
    for rg in range(16):
        a(f"ds_read_b32 v{buf+rg}, v{c1} offset:{rg*1024}")
    a("s_waitcnt lgkmcnt(0)")
    for rg in range(1, 16):
        a(f"v_add_f32 v{buf}, v{buf}, v{buf+rg}")
    a(f"""
    s_mul_i32 s30, s31, {FF*4}
    s_mul_i32 s33, s32, {216*4}
    s_add_u32 s30, s30, s33
    v_cmp_gt_u32 vcc, 216, v0
    s_and_saveexec_b64 s[34:35], vcc
    s_cbranch_execz {name}_end
    buffer_store_dword v{buf}, v{c1}, s[12:15], s30 offen
    """)
    a(f"s_branch {name}_end")
    a.label(f"{name}_csb")
    a("s_barrier")
    a.label(f"{name}_end")
    a("s_endpgm")
    return a.text(), max(VM.hi, L.hi, C.hi, T.hi), D*STG + 2048
```

```python
from common import *
import os
SCX = '' if os.environ.get('NOSC1') else ' sc1'
SCX2 = ' sc1' if os.environ.get('SC1X2') else ''
import os

def k_attn(name="attn_kernel"):
    FUSE = bool(os.environ.get('FUSE'))
    a = Asm()
    KH = 8192; VOFF = 12288
    CH = VOFF + 33*336
    NCH = 8; NB = 3
    FLAG = NB*CH + 256
    RPK = (FLAG + 64 + 255)//256*256
    WOW = RPK
    WOL = 0
    CSTR = 327680
    entry(a, name)
    a(f"""
    s_and_b32 s30, s2, 7                 ; xcd
    s_lshr_b32 s31, s2, 3                ; idx 0..31
    s_lshr_b32 s32, s31, 3
    s_lshl_b32 s16, s30, 2
    s_add_u32 s16, s16, s32              ; head
    s_and_b32 s17, s31, 7                ; qblock
    s_cmp_ge_u32 s18, 8
    s_cbranch_scc1 {name}_svc
    """)
    V = VAlloc(3)
    t0 = V.get(); t1 = V.get(); t2 = V.get(); t3 = V.get(); t4 = V.get()
    Q1 = V.get(4, 4); Q2 = V.get(4, 4)
    SS = [V.get(16, 4), V.get(16, 4)]
    PP = [V.get(4, 4), V.get(4, 4)]
    OO = V.get(16, 4)
    K1 = [V.get(4, 4), V.get(4, 4)]; K2 = [V.get(4, 4), V.get(4, 4)]
    V1 = [V.get(4, 4), V.get(4, 4)]; V2 = [V.get(4, 4), V.get(4, 4)]
    lk = V.get(); lk2 = V.get(); lv = V.get()
    ck = V.get(); ck2 = V.get(); cv = V.get()
    nk = V.get(); nk2 = V.get(); nv = V.get()
    vm = V.get(); vq = V.get(); vhh = V.get()
    a(f"""
    s_lshl_b32 s30, s17, 3
    s_add_u32 s30, s30, s18              ; q tile
    s_mul_i32 s30, s30, 40960
    s_mul_i32 s31, s16, 5
    s_add_u32 s31, s31, 1
    s_lshr_b32 s31, s31, 1               ; cA
    s_and_b32 s32, s16, 1                ; parity
    s_lshl_b32 s25, s31, 9
    s_add_u32 s24, s30, s25
    s_mul_i32 s26, s32, {-(1024+512-8) & 0xffffffff}
    s_add_u32 s26, s26, 1024
    s_add_u32 s26, s26, s24
    s_lshl_b32 s27, s32, 3               ; parity*8
    v_and_b32 v{vq}, 31, v2
    v_lshrrev_b32 v{vhh}, 5, v2
    v_lshlrev_b32 v{lk2}, 4, v{vq}                 ; q*16
    v_lshl_add_u32 v{lk}, v{vhh}, 9, v{lk2}        ; hh*512 + q*16
    v_mul_u32_u24 v{t4}, 336, v{vhh}
    v_lshl_add_u32 v{lv}, v{vq}, 4, v{t4}
    v_add_u32 v{lv}, {VOFF}, v{lv}
    ; ones rows: thread t<96: buffer = t/32, piece = t%32
    v_lshrrev_b32 v{t0}, 5, v0
    v_mul_u32_u24 v{t0}, {CH}, v{t0}
    v_and_b32 v{t1}, 31, v0
    v_mul_u32_u24 v{t1}, 336, v{t1}
    v_add_u32 v{t0}, v{t0}, v{t1}
    v_add_u32 v{t0}, {VOFF+320}, v{t0}
    v_mov_b32 v{SS[0]}, 0x3f803f80
    v_mov_b32 v{SS[0]+1}, 0x3f803f80
    v_mov_b32 v{SS[0]+2}, 0x3f803f80
    v_mov_b32 v{SS[0]+3}, 0x3f803f80
    v_cmp_gt_u32 vcc, 96, v0
    s_and_saveexec_b64 s[30:31], vcc
    s_cbranch_execz {name}_no1
    ds_write_b128 v{t0}, {vr(SS[0],4)}
    """)
    a.label(f"{name}_no1")
    a(f"""
    s_mov_b64 exec, -1
    v_mov_b32 v{t0}, {FLAG}
    v_mov_b32 v{t1}, 0
    ds_write_b32 v{t0}, v{t1}
    v_cmp_gt_u32 s[28:29], 32, v2
    v_mov_b32 v{Q2+2}, 0
    v_mov_b32 v{Q2+3}, 0
    s_waitcnt lgkmcnt(0)
    """)
    srd(a, 8, P['ws'], REG, QF_OFF)
    srd(a, 12, P['ws'], REG, O_OFF)
    a(f"""
    buffer_load_dwordx4 {vr(Q1,4)}, v{lk}, s[8:11], s24 offen
    buffer_load_dwordx2 {vr(Q2,2)}, v{lk2}, s[8:11], s26 offen
    v_add_u32 v{lk2}, s27, v{lk2}
    v_add_u32 v{lk2}, {KH}, v{lk2}
    """)
    for b in range(2):
        a(f"v_mov_b32 v{K2[b]+2}, 0x3f803f80")
        a(f"v_mov_b32 v{K2[b]+3}, 0x00003f80")
    def readK(buf, t, nxt):
        ak, ak2 = (nk, nk2) if nxt else (ck, ck2)
        a(f"ds_read_b128 {vr(K1[buf],4)}, v{ak} offset:{t*1024}")
        a(f"ds_read_b64 {vr(K2[buf],2)}, v{ak2} offset:{t*512}")
    def readV(buf, t, nxt):
        av = nv if nxt else cv
        a(f"ds_read_b128 {vr(V1[buf],4)}, v{av} offset:{t*4*336}")
        a(f"ds_read_b128 {vr(V2[buf],4)}, v{av} offset:{(t*4+2)*336}")
    def mf(d, A, B, C):
        a(f"v_mfma_f32_32x32x16_bf16 {vr(d,16)}, {vr(A,4)}, {vr(B,4)}, {C}")
    def smfma(sb, kb):
        mf(SS[sb], K1[kb], Q1, "0"); mf(SS[sb], K2[kb], Q2, vr(SS[sb],16))
    def set_m():
        a(f"""
        v_sub_f32 v{t0}, 0, v{vm}
        v_and_b32 v{t1}, 0xffff0000, v{t0}
        v_sub_f32 v{t0}, v{t0}, v{t1}
        v_and_b32 v{t3}, 0xffff0000, v{t0}
        v_sub_f32 v{t0}, v{t0}, v{t3}
        v_lshrrev_b32 v{t1}, 16, v{t1}
        v_or_b32 v{t1}, v{t1}, v{t3}
        v_lshrrev_b32 v{t0}, 16, v{t0}
        v_cndmask_b32 v{Q2+2}, 0, v{t1}, s[28:29]
        v_cndmask_b32 v{Q2+3}, 0, v{t0}, s[28:29]
        s_nop 1
        """)
    def max16(sb, first):
        s = SS[sb]
        if first: a(f"v_max_f32 v{vm}, v{s}, v{s+1}")
        else: a(f"v_max3_f32 v{vm}, v{s}, v{s+1}, v{vm}")
        for r in range(2, 16, 2):
            a(f"v_max3_f32 v{vm}, v{s+r}, v{s+r+1}, v{vm}")
    def xhalf_max():
        a(f"""
        v_mov_b32 v{t0}, v{vm}
        s_nop 1
        v_permlane32_swap_b32 v{t0}, v{vm}
        s_nop 1
        v_max_f32 v{vm}, v{vm}, v{t0}
        """)
    def set_addrs(cur, nxt):
        a(f"""
        v_add_u32 v{ck}, s{cur}, v{lk}
        v_add_u32 v{ck2}, s{cur}, v{lk2}
        v_add_u32 v{cv}, s{cur}, v{lv}
        v_add_u32 v{nk}, s{nxt}, v{lk}
        v_add_u32 v{nk2}, s{nxt}, v{lk2}
        v_add_u32 v{nv}, s{nxt}, v{lv}
        """)
    a(f"s_mov_b32 s33, 0\ns_mov_b32 s34, {CH}")
    set_addrs(33, 34)
    a(f"""
    ; STAMP 4
    s_waitcnt vmcnt(0)
    ; STAMP 5
    v_cndmask_b32 v{Q2}, 0, v{Q2}, s[28:29]
    v_cndmask_b32 v{Q2+1}, 0, v{Q2+1}, s[28:29]
    s_barrier
    """)
    a("; STAMP 0")
    readK(0, 0, False)
    a("s_waitcnt lgkmcnt(0)")
    smfma(0, 0)
    readK(1, 1, False)
    readV(0, 0, False)
    a("s_nop 15\ns_nop 1")
    max16(0, True)
    xhalf_max()
    set_m()
    a("s_mov_b32 s23, 0")
    a(f"s_branch {name}_main2")
    a.label(f"{name}_main")
    a(f"s_mov_b32 s33, 0\ns_mov_b32 s34, {CH}")
    set_addrs(33, 34)
    readK(0, 0, False)
    a("s_waitcnt lgkmcnt(0)")
    readK(1, 1, False)
    readV(0, 0, False)
    a.label(f"{name}_main2")
    a("; STAMP 1")
    if os.environ.get("PRIO"): a("s_setprio 2")
    smfma(0, 0)
    for r in range(16):
        a(f"v_mov_b32 v{OO+r}, 0")
    for r in range(4):
        a(f"v_mov_b32 v{PP[1]+r}, 0\nv_mov_b32 v{V2[1]+r}, 0")
    a(f"""
    s_mov_b32 s22, 0
    s_mov_b32 s20, {2*CH}
    """)
    a.label(f"{name}_loop")
    for t in range(8):
        sb = t & 1; s = SS[sb]; n = SS[sb ^ 1]
        def E(lo):
            for r in range(lo, lo+4): a(f"v_exp_f32 v{s+r}, v{s+r}")
        def C(lo):
            for r in range(lo, lo+4, 2): a(f"v_cvt_pk_bf16_f32 v{PP[r//8]+(r%8)//2}, v{s+r}, v{s+r+1}")
        if t == 6:
            a("s_barrier")
        a("s_waitcnt lgkmcnt(2)")
        mf(n, K1[sb^1], Q1, "0")
        E(0)
        mf(OO, V2[sb^1], PP[1], vr(OO,16))
        E(4); C(0); C(4)
        mf(n, K2[sb^1], Q2, vr(n,16))
        readK(sb, (t + 2) % 8, t + 2 >= 8)
        E(8)
        a("s_waitcnt lgkmcnt(2)")
        mf(OO, V1[sb], PP[0], vr(OO,16))
        readV(sb ^ 1, (t + 1) % 8, t + 1 >= 8)
        E(12); C(8); C(12)
    a(f"""
    s_add_u32 s22, s22, 1
    s_mov_b32 s30, s33
    s_mov_b32 s33, s34
    s_mov_b32 s34, s20
    s_mov_b32 s20, s30
    """)
    set_addrs(33, 34)
    a(f"s_cmp_lt_u32 s22, {NCH}\ns_cbranch_scc1 {name}_loop")
    mf(OO, V2[1], PP[1], vr(OO,16))
    a("s_waitcnt lgkmcnt(0)\ns_nop 15")
    a("; STAMP 2")
    vl = V.get(); vz = V.get()
    a(f"""
    v_mov_b32 v{t0}, v{OO+8}
    v_mov_b32 v{vl}, v{OO+8}
    s_nop 1
    v_permlane32_swap_b32 v{t0}, v{vl}
    v_mov_b32 v{vz}, 0
    """)
    for r in range(12):
        a(f"v_fma_f32 v{vz}, v{OO+r}, 0, v{vz}")
    a(f"""
    s_cmp_lg_u32 s23, 0
    s_cbranch_scc1 {name}_fin
    s_mov_b32 s30, {f32bits(2.0**60)}
    v_add_f32 v{t1}, v{vz}, v{vl}
    v_cmp_nlt_f32 vcc, v{t1}, s30
    s_cmp_eq_u64 vcc, 0
    s_cbranch_scc1 {name}_noflag
    v_mov_b32 v{t0}, {FLAG}
    v_mov_b32 v{t1}, 1
    ds_write_b32 v{t0}, v{t1}
    s_waitcnt lgkmcnt(0)
    """)
    a.label(f"{name}_noflag")
    a(f"""
    s_barrier
    v_mov_b32 v{t0}, {FLAG}
    ds_read_b32 v{t1}, v{t0}
    s_waitcnt lgkmcnt(0)
    v_readfirstlane_b32 s30, v{t1}
    s_nop 3
    s_cmp_eq_u32 s30, 0
    s_cbranch_scc1 {name}_fin
    v_mov_b32 v{Q2+2}, 0
    v_mov_b32 v{Q2+3}, 0
    v_mov_b32 v{vm}, 0xff7fffff
    s_mov_b32 s22, 0
    s_mov_b32 s33, 0
    """)
    set_addrs(33, 33)
    a.label(f"{name}_maxloop")
    a("s_barrier\ns_barrier")
    for t in range(8):
        readK(0, t, False)
        a("s_waitcnt lgkmcnt(0)")
        smfma(0, 0)
        a("s_nop 15\ns_nop 3")
        max16(0, False)
    a(f"""
    s_add_u32 s22, s22, 1
    s_cmp_lt_u32 s22, {NCH}
    s_cbranch_scc1 {name}_maxloop
    """)
    xhalf_max()
    set_m()
    a("s_mov_b32 s23, 1")
    a("s_barrier\ns_barrier")
    a(f"s_branch {name}_main")
    a.label(f"{name}_fin")
    a("; STAMP 3")
    pk = V.get(2, 2); vo = V.get()
    a(f"""
    v_rcp_f32 v{vl}, v{vl}
    s_lshl_b32 s30, s17, 2
    s_lshr_b32 s31, s18, 1
    s_add_u32 s30, s30, s31
    s_mul_i32 s30, s30, 81920
    s_and_b32 s31, s18, 1
    s_lshl_b32 s31, s31, 9
    s_add_u32 s30, s30, s31
    v_lshlrev_b32 v{vo}, 4, v{vq}
    v_add_u32 v{vo}, s30, v{vo}
    s_mul_i32 s31, s16, 5
    """)
    for grp in range(3):
        a(f"""
        v_add_u32 v{t0}, s31, v{vhh}
        v_add_u32 v{t0}, {2*grp}, v{t0}
        v_lshrrev_b32 v{t1}, 1, v{t0}
        v_lshlrev_b32 v{t1}, 10, v{t1}
        v_and_b32 v{t0}, 1, v{t0}
        v_lshl_add_u32 v{t1}, v{t0}, 3, v{t1}
        v_add_u32 v{t1}, v{t1}, v{vo}
        v_mul_f32 v{t0}, v{OO+4*grp}, v{vl}
        v_mul_f32 v{t2}, v{OO+4*grp+1}, v{vl}
        v_mul_f32 v{t3}, v{OO+4*grp+2}, v{vl}
        v_mul_f32 v{t4}, v{OO+4*grp+3}, v{vl}
        v_cvt_pk_bf16_f32 v{pk}, v{t0}, v{t2}
        v_cvt_pk_bf16_f32 v{pk+1}, v{t3}, v{t4}
        """)
        if grp == 2:
            a("s_mov_b64 exec, s[28:29]")
        a(f"buffer_store_dwordx2 {vr(pk,2)}, v{t1}, s[12:15], 0 offen{' sc1' if FUSE else ''}")
        a("s_nop 1")
    if not FUSE: a(f"s_branch {name}_end")
    a_main = a
    if not FUSE: a = Asm()
    a("s_mov_b64 exec, -1")
    a("s_waitcnt vmcnt(0)")
    a("s_barrier")
    a("; STAMP 7")
    srd(a, 4, P['ws'], SY_BYTES, SY_OFF)
    lw = a.newlabel(name + "_sw"); lp = a.newlabel(name + "_sp"); lq = a.newlabel(name + "_sq")
    a(f"""
    s_cmp_lg_u32 s18, 0
    s_cbranch_scc1 {lw}
    s_lshl_b32 s30, s17, 8
    v_mov_b32 v{t0}, s30
    v_mov_b32 v{t1}, 1
    s_mov_b64 exec, 1
    buffer_atomic_add v{t1}, v{t0}, s[4:7], 0 offen sc1
    s_mov_b32 s31, 0
    """)
    a.label(lp)
    a(f"""
    buffer_load_dword v{t2}, v{t0}, s[4:7], 0 offen sc1
    s_waitcnt vmcnt(0)
    v_readfirstlane_b32 s30, v{t2}
    s_add_u32 s31, s31, 1
    s_cmp_ge_u32 s31, 0x40000
    s_cbranch_scc1 {lq}
    s_cmp_lt_u32 s30, 32
    s_cbranch_scc1 {lp}
    """)
    a.label(lq)
    a("s_mov_b64 exec, -1")
    if os.environ.get("DIAGP"): a("s_mov_b32 s88, s31\ns_add_u32 s88, s88, s92")
    a.label(lw)
    a("s_barrier")
    a("; STAMP 6")
    lwoc = a.newlabel(name + "_wc")
    a(f"s_cmp_lt_u32 s18, 4\ns_cbranch_scc1 {lwoc}")
    srd(a, 8, P['ws'], WPX, WP_OFF)
    a(f"""
    v_mov_b32 v{t0}, 2048
    buffer_load_dword v{t1}, v{t0}, s[4:7], 0 offen sc1
    s_waitcnt vmcnt(0)
    v_readfirstlane_b32 s30, v{t1}
    s_nop 3
    s_cmp_lt_u32 s30, 256
    s_cbranch_scc1 {name}_end
    s_lshr_b32 s30, s2, 3
    s_lshl_b32 s30, s30, 2
    s_add_u32 s30, s30, s18
    s_sub_u32 s30, s30, 4
    s_mul_i32 s30, s30, {70*128}
    s_and_b32 s31, s2, 3
    s_mul_i32 s31, s31, {8960*128}
    s_add_u32 s30, s30, s31
    s_add_u32 s30, s30, {WP_GU}
    v_lshlrev_b32 v{t0}, 7, v2
    buffer_load_dword v{t1}, v{t0}, s[8:11], s30 offen
    s_add_u32 s30, s30, {64*128}
    s_mov_b64 exec, 0x3f
    buffer_load_dword v{t1}, v{t0}, s[8:11], s30 offen
    s_branch {name}_end
    """)
    a.label(lwoc)
    W_ = VAlloc(3, 168)
    w0 = W_.get(); w1 = W_.get(); w2 = W_.get(); w3 = W_.get()
    vq2 = W_.get(); vtok = W_.get(); vcm = W_.get(); vWa = W_.get(); vxo = W_.get()
    XF = [W_.get(4, 4) for _ in range(20)]
    WF = [[W_.get(4, 4) for _ in range(5)] for _ in range(2)]
    ACC = [W_.get(4, 4) for _ in range(5)]
    RES = [W_.get(2, 2) for _ in range(5)]
    a(f"""
    s_lshl_b32 s16, s16, 0
    s_lshr_b32 s30, s16, 3
    s_lshl_b32 s29, s17, 2
    s_add_u32 s29, s29, s30
    s_and_b32 s17, s16, 7                ; cb
    s_mul_i32 s28, s17, 160
    v_lshrrev_b32 v{vq2}, 4, v2          ; q / g
    v_and_b32 v{w0}, 15, v2
    s_lshl_b32 s30, s18, 4
    v_add_u32 v{w0}, s30, v{w0}
    v_lshlrev_b32 v{w1}, 4, v{w0}
    v_lshl_add_u32 v{vxo}, v{vq2}, 10, v{w1}   ; g*1024 + tok*16
    s_mul_i32 s30, s29, 81920
    """)
    for ks in range(20):
        a(f"s_add_u32 s31, s30, {ks*4096}")
        a(f"buffer_load_dwordx4 {vr(XF[ks],4)}, v{vxo}, s[12:15], s31 offen sc1")
    a(f"""
    s_lshl_b32 s30, s29, 6
    v_add_u32 v{vtok}, s30, v{w0}
    v_lshrrev_b32 v{w2}, 1, v{vq2}
    v_lshl_add_u32 v{w1}, v{w2}, 10, v{w1}
    v_and_b32 v{w2}, 1, v{vq2}
    v_lshl_add_u32 v{vcm}, v{w2}, 3, v{w1}
    v_lshrrev_b32 v{w0}, 5, v2
    v_lshlrev_b32 v{w0}, 4, v{w0}
    v_bfe_u32 v{w1}, v2, 4, 1
    v_lshl_add_u32 v{w0}, v{w1}, 2, v{w0}
    v_bfe_u32 v{w1}, v2, 2, 2
    v_add_u32 v{w0}, v{w0}, v{w1}
    v_mul_u32_u24 v{vWa}, 160, v{w0}
    v_and_b32 v{w1}, 3, v2
    v_lshl_add_u32 v{vWa}, v{w1}, 3, v{vWa}
    v_add_u32 v{w3}, {WOL}, v{vWa}
    v_add_u32 v{vWa}, {WOW}, v{vWa}
    """)
    srd(a, 36, P['x'], REG); srd(a, 40, P['ws'], ST_BYTES, ST_OFF); srd(a, 8, P['ws'], REG, H_OFF)
    a(f"v_mul_u32_u24 v{w0}, 1280, v{vtok}\nv_lshl_add_u32 v{w0}, v{vq2}, 3, v{w0}")
    for nt in range(5):
        a(f"buffer_load_dwordx2 {vr(RES[nt],2)}, v{w0}, s[36:39], s28 offen offset:{nt*32}")
    for nt in range(5):
        for r in range(4): a(f"v_mov_b32 v{ACC[nt]+r}, 0")
    def wrd(ks):
        ad = vWa if ks < 19 else w3
        for nt in range(5):
            for jh in range(2):
                a(f"ds_read_b64_tr_b16 {vr(WF[ks&1][nt]+2*jh,2)}, v{ad} offset:{jh*8*160 + nt*32}")
        if ks < 18: a(f"v_add_u32 v{vWa}, 5120, v{vWa}")
    wrd(0)
    for ks in range(20):
        a("s_waitcnt lgkmcnt(0)")
        if ks + 1 < 20: wrd(ks + 1)
        a(f"s_waitcnt vmcnt({19 - ks + 5})")
        for nt in range(5):
            a(f"v_mfma_f32_16x16x32_bf16 {vr(ACC[nt],4)}, {vr(WF[ks&1][nt],4)}, {vr(XF[ks],4)}, {vr(ACC[nt],4)}")
    a("s_waitcnt vmcnt(0)\ns_nop 7")
    pk2 = W_.get(2, 2); ssum = W_.get(); ssq = W_.get(); st2 = W_.get(2, 2)
    a(f"""
    s_mul_i32 s30, s17, {10*1024}
    s_mul_i32 s31, s29, 81920
    s_add_u32 s30, s30, s31
    v_mov_b32 v{ssum}, 0
    v_mov_b32 v{ssq}, 0
    """)
    for nt in range(5):
        acc = ACC[nt]; r = RES[nt]
        a(f"""
        v_lshlrev_b32 v{w1}, 16, v{r}
        v_and_b32 v{w2}, 0xffff0000, v{r}
        v_add_f32 v{acc}, v{acc}, v{w1}
        v_add_f32 v{acc+1}, v{acc+1}, v{w2}
        v_lshlrev_b32 v{w1}, 16, v{r+1}
        v_and_b32 v{w2}, 0xffff0000, v{r+1}
        v_add_f32 v{acc+2}, v{acc+2}, v{w1}
        v_add_f32 v{acc+3}, v{acc+3}, v{w2}
        v_cvt_pk_bf16_f32 v{pk2}, v{acc}, v{acc+1}
        v_cvt_pk_bf16_f32 v{pk2+1}, v{acc+2}, v{acc+3}
        s_add_u32 s31, s30, {nt*2048}
        buffer_store_dwordx2 {vr(pk2,2)}, v{vcm}, s[8:11], s31 offen
        """)
        for h_ in range(2):
            a(f"""
            v_lshlrev_b32 v{w1}, 16, v{pk2+h_}
            v_and_b32 v{w2}, 0xffff0000, v{pk2+h_}
            v_add_f32 v{ssum}, v{ssum}, v{w1}
            v_fmac_f32 v{ssq}, v{w1}, v{w1}
            v_add_f32 v{ssum}, v{ssum}, v{w2}
            v_fmac_f32 v{ssq}, v{w2}, v{w2}
            """)
    for reg in (ssum, ssq):
        a(f"""
        v_mov_b32 v{w0}, v{reg}
        s_nop 1
        v_permlane32_swap_b32 v{w0}, v{reg}
        s_nop 1
        v_add_f32 v{reg}, v{reg}, v{w0}
        v_mov_b32 v{w0}, v{reg}
        s_nop 1
        v_permlane16_swap_b32 v{w0}, v{reg}
        s_nop 1
        v_add_f32 v{reg}, v{reg}, v{w0}
        """)
    a(f"""
    v_mov_b32 v{st2}, v{ssum}
    v_mov_b32 v{st2+1}, v{ssq}
    v_lshlrev_b32 v{w0}, 6, v{vtok}
    s_lshl_b32 s30, s17, 3
    s_mov_b64 exec, 0xffff
    buffer_store_dwordx2 {vr(st2,2)}, v{w0}, s[40:43], s30 offen
    s_branch {name}_end
    """)
    a = a_main
    a.label(f"{name}_svc")
    S = VAlloc(3)
    vKlo = S.get(); vKhi = S.get(); vV = S.get(); u0 = S.get(); u1 = S.get(); u2 = S.get()
    a(f"""
    v_lshlrev_b32 v{vKlo}, 4, v2
    v_lshrrev_b32 v{u0}, 5, v2
    v_mul_u32_u24 v{u0}, 40960, v{u0}
    v_and_b32 v{u1}, 31, v2
    v_lshl_add_u32 v{vKhi}, v{u1}, 4, v{u0}
    v_mul_u32_u24 v{u0}, 49, v2
    v_lshrrev_b32 v{u0}, 10, v{u0}
    v_mul_u32_u24 v{u1}, 21, v{u0}
    v_sub_u32 v{u1}, v2, v{u1}           ; row
    v_cmp_gt_u32 vcc, 20, v{u1}
    v_cmp_gt_u32 s[30:31], 63, v2
    v_mul_u32_u24 v{u0}, 10240, v{u0}
    v_lshl_add_u32 v{vV}, v{u1}, 4, v{u0}
    s_and_b64 s[56:57], vcc, s[30:31]
    s_mul_i32 s50, s16, 5
    s_add_u32 s50, s50, 1
    s_lshr_b32 s50, s50, 1
    s_lshl_b32 s50, s50, 9               ; cA*512
    s_and_b32 s58, s16, 1
    s_mul_i32 s58, s58, {-(1024+512) & 0xffffffff}
    s_add_u32 s58, s58, 1024
    s_add_u32 s58, s58, s50              ; cR*512
    s_mul_i32 s51, s16, 320
    s_add_u32 s51, s51, {REG}
    s_waitcnt lgkmcnt(0)
    """)
    a("; STAMP 4")
    srd(a, 4, P['ws'], 2*REG, KF_OFF)
    a("s_sub_u32 s19, s18, 8")
    def issue_chunk(buf_sg, cidx):
        lv_ = a.newlabel(name + "_iv"); le_ = a.newlabel(name + "_ie"); l5 = a.newlabel(name + "_i5")
        a(f"s_mul_i32 s21, {cidx}, {CSTR}" if not cidx.isdigit() else f"s_mov_b32 s21, {int(cidx)*CSTR}")
        a(f"s_cmp_ge_u32 s19, 2\ns_cbranch_scc1 {lv_}")
        a(f"""
        s_mul_i32 s30, s19, {4*40960}
        s_add_u32 s30, s30, s21
        s_add_u32 s30, s30, s50
        s_lshl_b32 s32, s19, 12
        s_add_u32 s32, s32, s{buf_sg}
        """)
        for t in range(4):
            a(f"s_add_u32 m0, s32, {t*1024}")
            a(f"s_add_u32 s31, s30, {t*40960}")
            a(f"buffer_load_dwordx4 v{vKlo}, s[4:7], s31 offen lds")
        a(f"""
        s_mul_i32 s30, s19, {4*40960}
        s_add_u32 s30, s30, s21
        s_add_u32 s30, s30, s58
        s_lshl_b32 s32, s19, 11
        s_add_u32 s32, s32, s{buf_sg}
        """)
        for i in range(2):
            a(f"s_add_u32 m0, s32, {KH + i*1024}")
            a(f"s_add_u32 s31, s30, {i*2*40960}")
            a(f"buffer_load_dwordx4 v{vKhi}, s[4:7], s31 offen lds")
        a(f"s_branch {le_}")
        a.label(lv_)
        a(f"""
        s_sub_u32 s32, s19, 2
        s_mul_i32 s30, s32, {6*3*10240}
        s_add_u32 s30, s30, s21
        s_add_u32 s30, s30, s51
        s_mul_i32 s32, s32, {6*1008}
        s_add_u32 s32, s32, s{buf_sg}
        s_mov_b64 exec, s[56:57]
        """)
        for jv in range(6):
            if jv == 5:
                a(f"s_cmp_eq_u32 s19, 3\ns_cbranch_scc1 {l5}")
            a(f"s_add_u32 m0, s32, {VOFF + jv*1008}")
            a(f"s_add_u32 s31, s30, {jv*3*10240}")
            a(f"buffer_load_dwordx4 v{vV}, s[4:7], s31 offen lds")
        a.label(l5)
        a("s_mov_b64 exec, -1")
        a.label(le_)
    a("s_mov_b32 s20, 0")
    issue_chunk(20, "0")
    a("; STAMP 5")
    rp_v = [S.get(), S.get()]; rp_c = [S.get(), S.get()]
    rp_row = S.get(); rp_ra = S.get(); rp_f = S.get(); rp_t = S.get(); rp_o = S.get()
    RF = S.get(28, 4)
    a(f"""
    v_lshrrev_b32 v{rp_row}, 4, v2
    v_and_b32 v{rp_t}, 15, v2
    v_lshlrev_b32 v{rp_c[0]}, 1, v{rp_row}
    v_xor_b32 v{rp_c[0]}, v{rp_c[0]}, v{rp_t}
    v_xor_b32 v{rp_c[1]}, 8, v{rp_c[0]}
    v_lshrrev_b32 v{rp_t}, 4, v2
    v_bfe_u32 v{rp_f}, v2, 2, 2
    v_lshl_add_u32 v{rp_ra}, v{rp_t}, 3, v{rp_f}
    v_lshlrev_b32 v{rp_ra}, 8, v{rp_ra}
    v_and_b32 v{rp_o}, 3, v2
    v_lshl_add_u32 v{rp_ra}, v{rp_o}, 3, v{rp_ra}
    s_lshl_b32 s48, s19, 13
    s_add_u32 s48, s48, {RPK}
    v_add_u32 v{rp_ra}, s48, v{rp_ra}
    v_and_b32 v{rp_t}, 1, v{rp_t}
    v_lshl_or_b32 v{rp_f}, v{rp_t}, 2, v{rp_f}
    v_lshlrev_b32 v{rp_f}, 5, v{rp_f}
    v_lshlrev_b32 v{rp_o}, 4, v2
    """)
    srd(a, 40, P['ws'], WPX, WP_OFF)
    vwo = [S.get() for _ in range(5)]
    for i in range(5):
        a(f"""
        v_add_u32 v{u0}, {i*64}, v2
        v_mul_u32_u24 v{u1}, 104858, v{u0}
        v_lshrrev_b32 v{u1}, 20, v{u1}
        v_mul_u32_u24 v{u2}, 10, v{u1}
        v_sub_u32 v{u2}, v{u0}, v{u2}
        v_and_b32 v{rp_t}, 0x33, v{u1}
        v_bfe_u32 v{u0}, v{u1}, 2, 1
        v_lshl_or_b32 v{rp_t}, v{u0}, 3, v{rp_t}
        v_bfe_u32 v{u0}, v{u1}, 3, 1
        v_lshl_or_b32 v{rp_t}, v{u0}, 2, v{rp_t}
        v_mul_u32_u24 v{rp_t}, 1280, v{rp_t}
        v_lshl_add_u32 v{vwo[i]}, v{u2}, 4, v{rp_t}
        """)
    srd(a, 60, P['wo'], DM*DM*2)
    a("s_and_b32 s59, s16, 7\ns_mul_i32 s59, s59, 160")
    def wo_group(gsg, ldsbase_sg):
        a(f"s_mul_i32 s30, s{gsg}, {32*1280}\ns_add_u32 s30, s30, s59")
        for i in range(5):
            a(f"s_add_u32 m0, s{ldsbase_sg}, {i*1024}\ns_nop 0")
            a(f"buffer_load_dwordx4 v{vwo[i]}, s[60:63], s30 offen lds")
    def rp_decode(usg):
        l_gu = a.newlabel(name + "_rg"); l_wd = a.newlabel(name + "_rd"); l_e = a.newlabel(name + "_re")
        a(f"""
        s_cmp_ge_u32 s{usg}, 800
        s_cbranch_scc1 {l_wd}
        s_cmp_ge_u32 s{usg}, 160
        s_cbranch_scc1 {l_gu}
        s_mul_i32 s30, s{usg}, 3277
        s_lshr_b32 s30, s30, 16
        s_mul_i32 s31, s30, 20
        s_sub_u32 s31, s{usg}, s31
        s_mul_i32 s32, s30, 160
        s_mul_i32 s44, s31, {32*1280}
        s_add_u32 s44, s44, s32
        s_mov_b32 s45, 1280
        s_mul_i32 s46, s{usg}, 5120
        s_add_u32 s46, s46, {WP_WO}
        s_mov_b32 s47, 5
        s_mov_b32 s36, s{P['wo']}
        s_mov_b32 s37, s{P['wo']+1}
        s_mov_b32 s38, {DM*DM*2}
        s_branch {l_e}
        """)
        a.label(l_gu)
        a(f"""
        s_sub_u32 s49, s{usg}, 160
        s_mul_i32 s30, s49, 1639
        s_lshr_b32 s30, s30, 16
        s_mul_i32 s31, s30, 40
        s_sub_u32 s31, s49, s31
        s_mul_i32 s32, s30, 224
        s_lshr_b32 s49, s31, 1
        s_mul_i32 s44, s49, {32*3456}
        s_add_u32 s44, s44, s32
        s_mov_b32 s45, 3456
        s_mul_i32 s46, s30, 20
        s_add_u32 s46, s46, s49
        s_mul_i32 s46, s46, 14
        s_and_b32 s31, s31, 1
        s_mul_i32 s30, s31, 7
        s_add_u32 s46, s46, s30
        s_lshl_b32 s46, s46, 10
        s_add_u32 s46, s46, {WP_GU}
        s_mov_b32 s47, 7
        s_cmp_eq_u32 s31, 0
        s_cselect_b32 s36, s{P['wg']}, s{P['wu']}
        s_cselect_b32 s37, s{P['wg']+1}, s{P['wu']+1}
        s_mov_b32 s38, {DM*FF*2}
        s_branch {l_e}
        """)
        a.label(l_wd)
        a(f"""
        s_sub_u32 s49, s{usg}, 800
        s_mul_i32 s30, s49, 1214
        s_lshr_b32 s30, s30, 16
        s_mul_i32 s31, s30, 54
        s_sub_u32 s31, s49, s31
        s_mul_i32 s32, s30, 160
        s_mul_i32 s44, s31, {32*1280}
        s_add_u32 s44, s44, s32
        s_mov_b32 s45, 1280
        s_mul_i32 s46, s49, 5120
        s_add_u32 s46, s46, {WP_WD}
        s_mov_b32 s47, 5
        s_mov_b32 s36, s{P['wd']}
        s_mov_b32 s37, s{P['wd']+1}
        s_mov_b32 s38, {FF*DM*2}
        """)
        a.label(l_e)
        a("s_mov_b32 s39, 0x00020000")
    def rp_A(usg):
        rp_decode(usg)
        a(f"""
        s_lshl_b32 s49, s47, 1
        v_mul_lo_u32 v{rp_t}, v{rp_row}, s45
        v_lshl_add_u32 v{rp_v[0]}, v{rp_c[0]}, 4, v{rp_t}
        v_lshl_add_u32 v{rp_v[1]}, v{rp_c[1]}, 4, v{rp_t}
        v_cmp_gt_u32 s[54:55], s49, v{rp_c[0]}
        v_cmp_gt_u32 s[26:27], s49, v{rp_c[1]}
        s_lshl_b32 s31, s45, 2
        s_nop 1
        """)
        for i in range(8):
            var = (i >> 1) & 1
            a(f"s_add_u32 m0, s48, {i*1024}")
            a(f"s_mov_b64 exec, {['s[54:55]', 's[26:27]'][var]}")
            a(f"buffer_load_dwordx4 v{rp_v[var]}, s[36:39], s44 offen lds")
            a(f"s_add_u32 s44, s44, s31")
        a("s_mov_b64 exec, -1")
    def rp_B():
        for nt in range(7):
            a(f"v_xor_b32 v{rp_t}, {nt*32}, v{rp_f}")
            a(f"v_add_u32 v{rp_t}, v{rp_t}, v{rp_ra}")
            a(f"ds_read_b64_tr_b16 {vr(RF+4*nt,2)}, v{rp_t}")
            a(f"ds_read_b64_tr_b16 {vr(RF+4*nt+2,2)}, v{rp_t} offset:1024")
        a("s_waitcnt lgkmcnt(0)")
        lab = a.newlabel(name + "_r5")
        for nt in range(7):
            if nt == 5:
                a(f"s_cmp_lt_u32 s47, 7\ns_cbranch_scc1 {lab}")
            a(f"s_add_u32 s30, s46, {nt*1024}")
            a(f"buffer_store_dwordx4 {vr(RF+4*nt,4)}, v{rp_o}, s[40:43], s30 offen sc1")
        a.label(lab)
    a(f"""
    s_mov_b32 s23, 0                     ; mode
    s_lshl_b32 s53, s2, 2
    s_add_u32 s53, s53, s19
    s_mov_b32 s52, 0
    s_waitcnt vmcnt(0)
    ; STAMP 6
    s_barrier
    s_mov_b32 s20, {CH}
    """)
    issue_chunk(20, "1")
    a.label(f"{name}_smain")
    a(f"s_mov_b32 s22, 0\ns_mov_b32 s20, {2*CH}")
    a.label(f"{name}_sloop")
    lplain = a.newlabel(name + "_pl"); lbar = a.newlabel(name + "_br"); l1 = a.newlabel(name + "_c1"); l2 = a.newlabel(name + "_c2"); l1b = a.newlabel(name + "_c1b")
    if os.environ.get("NOREPACK"): a(f"s_branch {lplain}")
    a(f"""
    s_cmp_lg_u32 s23, 0
    s_cbranch_scc1 {lplain}
    s_cmp_gt_u32 s22, 2
    s_cbranch_scc1 {lplain}
    s_cmp_eq_u32 s22, 1
    s_cbranch_scc1 {l1}
    s_cmp_eq_u32 s22, 2
    s_cbranch_scc1 {l2}
    """)
    rp_A(53)
    a(f"s_add_u32 s53, s53, 1024\ns_waitcnt vmcnt(8)\ns_branch {lbar}")
    a.label(l1)
    a("s_waitcnt vmcnt(5)")
    rp_B()
    a(f"s_cmp_ge_u32 s53, 1232\ns_cbranch_scc1 {l1b}")
    rp_A(53)
    a(f"s_waitcnt vmcnt(13)\ns_branch {lbar}")
    a.label(l1b)
    a(f"s_waitcnt vmcnt(5)\ns_branch {lbar}")
    a.label(l2)
    a(f"s_cmp_ge_u32 s53, 1232\ns_cbranch_scc1 {lplain}")
    a("s_waitcnt vmcnt(5)")
    rp_B()
    a(f"s_waitcnt vmcnt(5)\ns_branch {lbar}")
    a.label(lplain)
    a("s_waitcnt vmcnt(0)")
    a.label(lbar)
    a("s_barrier")
    lnd = a.newlabel(name + "_sk")
    a(f"s_cmp_ge_u32 s22, {NCH-2}\ns_cbranch_scc1 {lnd}")
    a("s_add_u32 s25, s22, 2")
    issue_chunk(20, "s25")
    a.label(lnd)
    lwo = a.newlabel(name + "_wo"); lsg = a.newlabel(name + "_sg")
    if not FUSE: a(f"s_branch {lwo}")
    a(f"""
    s_cmp_lg_u32 s23, 0
    s_cbranch_scc1 {lwo}
    s_cmp_lg_u32 s22, 3
    s_cbranch_scc1 {lsg}
    s_cmp_lg_u32 s19, 0
    s_cbranch_scc1 {lsg}
    s_add_u32 s44, s{P['ws']}, {SY_OFF}
    s_addc_u32 s45, s{P['ws']+1}, 0
    s_mov_b32 s46, {SY_BYTES}
    s_mov_b32 s47, 0x00020000
    v_mov_b32 v{u0}, 2048
    v_mov_b32 v{u1}, 1
    s_mov_b64 exec, 1
    buffer_atomic_add v{u1}, v{u0}, s[44:47], 0 offen sc1
    s_mov_b64 exec, -1
    """)
    a.label(lsg)
    a(f"""
    s_cmp_lt_u32 s22, 3
    s_cbranch_scc1 {lwo}
    s_sub_u32 s25, s22, 3
    s_lshl_b32 s25, s25, 2
    s_add_u32 s25, s25, s19              ; group
    s_cmp_ge_u32 s25, 19
    s_cbranch_scc1 {lwo}
    s_mul_i32 s32, s25, 5120
    s_add_u32 s32, s32, {WOW}
    """)
    wo_group(25, 32)
    a.label(lwo)
    a(f"""
    s_add_u32 s20, s20, {CH}
    s_cmp_ge_u32 s20, {3*CH}
    s_cselect_b32 s30, {3*CH}, 0
    s_sub_u32 s20, s20, s30
    s_add_u32 s22, s22, 1
    s_cmp_lt_u32 s22, {NCH}
    s_cbranch_scc1 {name}_sloop
    s_cmp_lg_u32 s23, 0
    s_cbranch_scc1 {name}_sfin
    s_barrier
    v_mov_b32 v{u0}, {FLAG}
    ds_read_b32 v{u1}, v{u0}
    s_waitcnt lgkmcnt(0)
    v_readfirstlane_b32 s30, v{u1}
    s_nop 3
    s_cmp_eq_u32 s30, 0
    s_cbranch_scc1 {name}_sfin
    s_mov_b32 s22, 0
    s_mov_b32 s20, 0
    """)
    a.label(f"{name}_smax")
    a("s_barrier")
    a("s_mov_b32 s25, s22")
    issue_chunk(20, "s25")
    a("s_waitcnt vmcnt(0)\ns_barrier")
    a(f"s_add_u32 s22, s22, 1\ns_cmp_lt_u32 s22, {NCH}\ns_cbranch_scc1 {name}_smax")
    a("s_barrier")
    a("s_mov_b32 s20, 0")
    issue_chunk(20, "0")
    a(f"s_mov_b32 s20, {CH}")
    issue_chunk(20, "1")
    a("s_waitcnt vmcnt(0)\ns_barrier\ns_mov_b32 s23, 1")
    a(f"s_branch {name}_smain")
    a.label(f"{name}_sfin")
    if not FUSE: a(f"s_branch {name}_end")
    a("s_waitcnt vmcnt(0)\ns_barrier")
    lsf = a.newlabel(name + "_sf")
    a(f"s_cmp_lg_u32 s19, 3\ns_cbranch_scc1 {lsf}")
    a(f"s_mov_b32 s25, 19\ns_mov_b32 s32, {WOL}")
    wo_group(25, 32)
    a("s_waitcnt vmcnt(0)")
    a.label(lsf)
    a("s_barrier")
    a.label(f"{name}_end")
    a("s_endpgm")
    return a.text(), max(V.hi, S.hi, W_.hi if FUSE else 0), (WOW + 19*5120) if FUSE else (RPK + 4*8192)
```

```python
from common import *
import os
SCX = '' if os.environ.get('NOSC1') else ' sc1'
SCX2 = ' sc1' if os.environ.get('SC1X2') else ''
import os


def gu2_compute(a, name, K, D, STG, XB):
    V = VAlloc(3)
    t0 = V.get(); t1 = V.get(); t2 = V.get(); t3 = V.get()
    lX0 = V.get(); lX1 = V.get(); lWa = V.get(); lWs = V.get()
    aX0 = V.get(); aX1 = V.get(); aWa = V.get(); aWs = V.get()
    a(f"""
    s_lshr_b32 s19, s18, 1               ; wm
    s_and_b32 s20, s18, 1                ; wn
    v_and_b32 v{t0}, 15, v2              ; tok
    v_lshrrev_b32 v{t1}, 4, v2           ; g
    v_lshlrev_b32 v{t2}, 11, v{t1}
    v_lshl_add_u32 v{t2}, v{t0}, 4, v{t2}
    s_lshl_b32 s30, s19, 10
    v_add_u32 v{t2}, s30, v{t2}
    s_lshl_b32 s21, s20, 9               ; wn*512
    s_sub_u32 s22, 512, s21              ; (1-wn)*512
    v_add_u32 v{lX0}, s21, v{t2}
    v_add_u32 v{lX1}, s22, v{t2}
    v_lshlrev_b32 v{lWs}, 4, v2
    v_add_u32 v{lWs}, {XB}, v{lWs}
    s_lshl_b32 s30, s20, 12
    v_add_u32 v{lWa}, s30, v{lWs}
    """)
    XF = [[V.get(4, 4) for s_ in range(4)] for b in range(2)]
    WIN = 4
    WF = [V.get(4, 4) for _ in range(WIN)]
    AG = [[V.get(4, 4) for s_ in range(4)] for j in range(3)]
    AU = [[V.get(4, 4) for s_ in range(4)] for j in range(3)]
    SG = [V.get(4, 4) for s_ in range(2)]; SU = [V.get(4, 4) for s_ in range(2)]
    accs = [x for r in AG + AU for x in r] + SG + SU
    for x in accs:
        for r in range(4): a(f"v_mov_b32 v{x+r}, 0")
    CSg = [V.get(4, 4) for _ in range(4)]; CSu = [V.get(4, 4) for _ in range(4)]
    STT = [V.get(4, 4) for _ in range(4)]
    vq = V.get(); vtok = V.get()
    a(f"""
    v_lshrrev_b32 v{vq}, 4, v2
    v_and_b32 v{vtok}, 15, v2
    s_lshl_b32 s29, s16, 1
    s_add_u32 s29, s29, s19
    s_lshl_b32 s30, s29, 6
    v_add_u32 v{vtok}, s30, v{vtok}
    s_waitcnt lgkmcnt(0)
    """)
    def epi_loads():
        srd(a, 12, P['ws'], ACT_BYTES, ACT_OFF); srd(a, 36, P['ws'], CS_BYTES, CS_OFF); srd(a, 40, P['ws'], ST_BYTES, ST_OFF)
        a(f"""
        v_lshlrev_b32 v{t0}, 4, v{vq}
        s_mul_i32 s30, s17, {112*4}
        s_lshl_b32 s31, s20, 8
        s_add_u32 s31, s31, s30
        """)
        for j in range(3):
            a(f"buffer_load_dwordx4 {vr(CSg[j],4)}, v{t0}, s[36:39], s31 offen offset:{j*64}")
        a(f"buffer_load_dwordx4 {vr(CSg[3],4)}, v{t0}, s[36:39], s30 offen offset:192")
        a(f"s_add_u32 s31, s31, {FF*4}\ns_add_u32 s30, s30, {FF*4}")
        for j in range(3):
            a(f"buffer_load_dwordx4 {vr(CSu[j],4)}, v{t0}, s[36:39], s31 offen offset:{j*64}")
        a(f"buffer_load_dwordx4 {vr(CSu[3],4)}, v{t0}, s[36:39], s30 offen offset:192")
        a(f"""
        v_lshlrev_b32 v{t1}, 6, v{vtok}
        v_lshl_add_u32 v{t1}, v{vq}, 4, v{t1}
        s_lshl_b32 s30, s20, 11
        s_sub_u32 s31, 2048, s30
        """)
        for s_ in range(4):
            a(f"buffer_load_dwordx4 {vr(STT[s_],4)}, v{t1}, s[40:43], s{30 if s_ < 2 else 31} offen offset:{(s_ & 1)*1024}")
    q = LdsQ(a)
    JS = 8
    def xread(b):
        for s_ in range(4):
            q.issue(('x', b), f"ds_read_b128 {vr(XF[b][s_],4)}, v{aX0 if s_ < 2 else aX1} offset:{(s_ & 1)*256}")
    def wread(u):
        j = u % JS
        if j < 3: ad, off = aWa, j*1024
        elif j < 6: ad, off = aWa, 7168 + (j-3)*1024
        elif j == 6: ad, off = aWs, 3072
        else: ad, off = aWs, 10240
        q.issue(('w', u), f"ds_read_b128 {vr(WF[u % WIN],4)}, v{ad} offset:{off}")
    def set_addr():
        a(f"v_add_u32 v{aX0}, s45, v{lX0}\nv_add_u32 v{aX1}, s45, v{lX1}\nv_add_u32 v{aWa}, s45, v{lWa}\nv_add_u32 v{aWs}, s45, v{lWs}")
    def job(u):
        b, j = divmod(u, JS)
        q.need({('w', u), ('x', b)})
        if j < 3: tgt = AG[j]
        elif j < 6: tgt = AU[j-3]
        elif j == 6: tgt = SG
        else: tgt = SU
        for s_, acc in enumerate(tgt):
            if os.environ.get("NOMFMA"): continue
            a(f"v_mfma_f32_16x16x32_bf16 {vr(acc,4)}, {vr(WF[u % WIN],4)}, {vr(XF[b][s_],4)}, {vr(acc,4)}")
    def enter(check_exit):
        if check_exit:
            a(f"s_add_u32 s49, s49, 1")
            a(f"s_cmp_ge_u32 s49, {K//64}\ns_cbranch_scc1 {name}_tail")
        a(f"""
        s_add_u32 s45, s45, {STG}
        s_cmp_ge_u32 s45, {D*STG}
        s_cselect_b32 s30, {D*STG}, 0
        s_sub_u32 s45, s45, s30
        s_barrier
        """)
        set_addr()
    a("s_mov_b32 s49, 0\ns_mov_b32 s45, 0")
    a("; STAMP 0")
    a("s_barrier")
    a("; STAMP 1")
    set_addr()
    xread(0)
    for u in range(WIN): wread(u)
    epi_loads()
    a.label(f"{name}_loop")
    qstate = list(q.q)
    for u in range(2*JS):
        if u == 2*JS - WIN:
            enter(True); xread(0)
        if u == JS - WIN:
            enter(False); xread(1)
        job(u)
        wread((u + WIN) % (2*JS))
    assert q.q == qstate, (q.q, qstate)
    a(f"s_branch {name}_loop")
    a.label(f"{name}_tail")
    a("; STAMP 2")
    a("s_waitcnt lgkmcnt(0)")
    q.drain()
    for u in range(2*JS - WIN, 2*JS): job(u)
    a("s_waitcnt vmcnt(0)")
    E = VAlloc(XF[0][0], WF[-1] + 4)
    mu = [E.get(2, 2) for _ in range(4)]; ag = [E.get(2, 2) for _ in range(4)]
    pk = E.get(4, 4); w = E.get(4, 2); e = E.get(4, 2); one2 = E.get(2, 2); vo = E.get()
    a("s_nop 7")
    def red_q(reg):
        a(f"""
        v_mov_b32 v{t0}, v{reg}
        s_nop 1
        v_permlane32_swap_b32 v{t0}, v{reg}
        s_nop 1
        v_add_f32 v{reg}, v{reg}, v{t0}
        v_mov_b32 v{t0}, v{reg}
        s_nop 1
        v_permlane16_swap_b32 v{t0}, v{reg}
        s_nop 1
        v_add_f32 v{reg}, v{reg}, v{t0}
        """)
    for s_ in range(4):
        st = STT[s_]
        a(f"v_add_f32 v{st}, v{st}, v{st+2}\nv_add_f32 v{st+1}, v{st+1}, v{st+3}")
        red_q(st); red_q(st+1)
        a(f"""
        s_mov_b32 s30, {f32bits(1.0/DM)}
        v_mul_f32 v{mu[s_]}, s30, v{st}
        v_mul_f32 v{st+1}, s30, v{st+1}
        v_fma_f32 v{st+1}, -v{mu[s_]}, v{mu[s_]}, v{st+1}
        v_max_f32 v{st+1}, 0, v{st+1}
        v_add_f32 v{st+1}, {f32bits(1e-5)}, v{st+1}
        v_rsq_f32 v{st+1}, v{st+1}
        v_sub_f32 v{mu[s_]}, 0, v{mu[s_]}
        v_mul_f32 v{ag[s_]}, {f32bits(-math.log2(math.e))}, v{st+1}
        """)
    a("; STAMP 3")
    a(f"""
    v_mov_b32 v{one2}, 1.0
    v_mov_b32 v{one2+1}, 1.0
    v_and_b32 v{t0}, 15, v2
    v_and_b32 v{t1}, 1, v{vq}
    v_lshl_add_u32 v{t0}, v{t1}, 4, v{t0}
    v_lshlrev_b32 v{t0}, 4, v{t0}
    v_lshrrev_b32 v{t1}, 1, v{vq}
    v_lshl_add_u32 v{vo}, v{t1}, 10, v{t0}
    s_mul_i32 s30, s17, {14*1024}
    s_mul_i32 s31, s29, 221184
    s_add_u32 s30, s30, s31
    s_lshl_b32 s31, s20, 13
    s_add_u32 s31, s31, s30
    """)
    def out_pair(g0, g1, u0, u1, cg, cu, s0, soff_expr):
        for k_, (g, u_, s_) in enumerate(((g0, u0, s0), (g1, u1, s0+1))):
            for r in (0, 2): a(f"v_pk_fma_f32 {vr(g+r,2)}, {vr(cg+r,2)}, {vr(mu[s_],2)}, {vr(g+r,2)} op_sel_hi:[1,0,1]")
            for r in (0, 2): a(f"v_pk_mul_f32 {vr(w+r,2)}, {vr(g+r,2)}, {vr(ag[s_],2)} op_sel_hi:[1,0]")
            for r in range(4): a(f"v_exp_f32 v{e+r}, v{w+r}")
            for r in (0, 2): a(f"v_pk_fma_f32 {vr(u_+r,2)}, {vr(cu+r,2)}, {vr(mu[s_],2)}, {vr(u_+r,2)} op_sel_hi:[1,0,1]")
            for r in (0, 2): a(f"v_pk_add_f32 {vr(e+r,2)}, {vr(e+r,2)}, {vr(one2,2)}")
            for r in range(4): a(f"v_rcp_f32 v{e+r}, v{e+r}")
            for r in (0, 2): a(f"v_pk_mul_f32 {vr(w+r,2)}, {vr(w+r,2)}, {vr(u_+r,2)}")
            for r in (0, 2): a(f"v_pk_mul_f32 {vr(w+r,2)}, {vr(w+r,2)}, {vr(e+r,2)}")
            a(f"v_cvt_pk_bf16_f32 v{pk+2*k_}, v{w}, v{w+1}")
            a(f"v_cvt_pk_bf16_f32 v{pk+2*k_+1}, v{w+2}, v{w+3}")
        a("s_nop 1")
        a(f"v_permlane16_swap_b32 v{pk}, v{pk+2}")
        a(f"v_permlane16_swap_b32 v{pk+1}, v{pk+3}")
        a(soff_expr)
        a(f"buffer_store_dwordx4 {vr(pk,4)}, v{vo}, s[12:15], s33 offen{SCX}")
        a("s_nop 1")
    lsk = a.newlabel(name + "_o")
    a(f"s_cmp_eq_u32 s17, 15\ns_cselect_b32 s34, 1, 0\ns_and_b32 s30, s34, s20\ns_cmp_lg_u32 s30, 0\ns_cbranch_scc1 {name}_end")
    a(f"s_mul_i32 s30, s17, {14*1024}\ns_mul_i32 s32, s29, 221184\ns_add_u32 s30, s30, s32")
    for j in range(3):
        out_pair(AG[j][0], AG[j][1], AU[j][0], AU[j][1], CSg[j], CSu[j], 0, f"s_add_u32 s33, s31, s21\ns_add_u32 s33, s33, {j*2048}")
        out_pair(AG[j][2], AG[j][3], AU[j][2], AU[j][3], CSg[j], CSu[j], 2, f"s_add_u32 s33, s31, s22\ns_add_u32 s33, s33, {j*2048}")
    a(f"s_cmp_lg_u32 s34, 0\ns_cbranch_scc1 {name}_end")
    out_pair(SG[0], SG[1], SU[0], SU[1], CSg[3], CSu[3], 0, f"s_add_u32 s33, s30, s21\ns_add_u32 s33, s33, {3*2048}")
    a(f"s_branch {name}_end")
    return V.hi

def k_gemm(name, kind):
    a = Asm()
    if kind == 'wo':
        BM, NT, NREG, K, D, G, wsec = 64, 5, 1, 640, 8, 2, WP_WO
        xoff, xbytes = O_OFF, REG
    elif kind == 'down':
        BM, NT, NREG, K, D, G, wsec = 64, 5, 1, 1728, 8, 2, WP_WD
        xoff, xbytes = ACT_OFF, ACT_BYTES
    else:
        BM, NT, NREG, K, D, G, wsec = 128, 7, 2, 640, 7, 1, WP_GU
        xoff, xbytes = H_OFF, REG
    NC = NT*16
    XTBS = (K//8)*1024
    HTBS = 81920; ATBS = 221184
    MT = BM // 64; NTT = NT * NREG
    XB = G * 4 * BM * 16; WB = G * NTT * 1024
    STG = XB + WB
    NST = K // (32*G)
    NXT = XB // 1024
    NXI = NXT // 4
    NWT = G * NTT
    WIN = 4 if kind == 'gu' else 5
    entry(a, name)
    sh = 2 if kind == 'gu' else 1
    a(f"""
    s_and_b32 s35, s2, 7                 ; xcd
    s_lshr_b32 s31, s2, 3                ; idx
    s_and_b32 s32, s31, 7
    s_lshr_b32 s33, s31, 3
    s_lshr_b32 s34, s35, {sh}
    s_lshl_b32 s34, s34, 3
    s_add_u32 s16, s34, s32              ; rb
    s_and_b32 s34, s35, {(1<<sh)-1}
    s_lshl_b32 s34, s34, 2
    s_add_u32 s17, s34, s33              ; cb
    s_mul_i32 s28, s17, {NC*2}
    s_cmp_ge_u32 s18, 4
    s_cbranch_scc1 {name}_loader
    """)
    GU2 = (kind == 'gu') and bool(os.environ.get("GU2"))
    a_main = a
    if GU2:
        gu2_hi = gu2_compute(a, name, K, D, STG, XB)
        a = Asm()
    V = VAlloc(3)
    t0 = V.get(); t1 = V.get(); t2 = V.get(); t3 = V.get()
    vXl = V.get(); vWl = V.get(); vXa = V.get(); vWa = V.get()
    a(f"""
    v_and_b32 v{t0}, 15, v2              ; tok
    v_lshrrev_b32 v{t1}, 4, v2           ; g
    v_mul_u32_u24 v{vXl}, {BM*16}, v{t1}
    v_lshl_add_u32 v{vXl}, v{t0}, 4, v{vXl}
    s_mul_i32 s30, s18, {16*MT*16}
    v_add_u32 v{vXl}, s30, v{vXl}
    v_lshlrev_b32 v{vWl}, 4, v2
    v_add_u32 v{vWl}, {XB}, v{vWl}
    """)
    XF = [[V.get(4, 4) for mt in range(MT)] for b in range(2)]
    WF = [V.get(4, 4) for _ in range(WIN)]
    ACC = [[V.get(4, 4) for mt in range(MT)] for nt in range(NTT)]
    for nt in range(NTT):
        for mt in range(MT):
            for r in range(4):
                a(f"v_mov_b32 v{ACC[nt][mt]+r}, 0")
    vq = V.get(); vtok = V.get(); vcm = V.get()
    a(f"""
    v_lshrrev_b32 v{vq}, 4, v2           ; q
    v_and_b32 v{vtok}, 15, v2
    s_mul_i32 s30, s16, {BM}
    s_mul_i32 s31, s18, {16*MT}
    s_add_u32 s30, s30, s31
    v_add_u32 v{vtok}, s30, v{vtok}
    s_lshr_b32 s29, s30, 6
    v_and_b32 v{t0}, 63, v{vtok}
    v_lshlrev_b32 v{t0}, 4, v{t0}
    v_lshrrev_b32 v{t1}, 1, v{vq}
    v_lshl_add_u32 v{t0}, v{t1}, 10, v{t0}
    v_and_b32 v{t1}, 1, v{vq}
    v_lshl_add_u32 v{vcm}, v{t1}, 3, v{t0}
    s_waitcnt lgkmcnt(0)
    """)
    if kind in ('wo', 'down'):
        RES = [V.get(2, 2) for _ in range(NT)]
    else:
        CS = [V.get(4, 4) for _ in range(NTT)]
    if kind in ('gu', 'down'):
        STT = [V.get(4, 4) for _ in range(MT)]
    def epi_loads():
        if kind == 'wo':
            srd(a, 12, P['ws'], REG, H_OFF); srd(a, 36, P['x'], REG); srd(a, 40, P['ws'], ST_BYTES, ST_OFF)
            a(f"v_mul_u32_u24 v{t0}, 1280, v{vtok}\nv_lshl_add_u32 v{t0}, v{vq}, 3, v{t0}")
            for nt in range(NT):
                a(f"buffer_load_dwordx2 {vr(RES[nt],2)}, v{t0}, s[36:39], s28 offen offset:{nt*32}")
        elif kind == 'down':
            srd(a, 12, P['out'], REG); srd(a, 36, P['ws'], REG, H_OFF); srd(a, 40, P['ws'], ST_BYTES, ST_OFF)
            a(f"""
            s_mul_i32 s30, s17, {10*1024}
            s_mul_i32 s31, s29, {HTBS}
            s_add_u32 s30, s30, s31
            """)
            for nt in range(NT):
                a(f"buffer_load_dwordx2 {vr(RES[nt],2)}, v{vcm}, s[36:39], s30 offen offset:{nt*2048 if nt < 2 else 0}") if nt < 2 else (a(f"s_add_u32 s31, s30, {nt*2048}"), a(f"buffer_load_dwordx2 {vr(RES[nt],2)}, v{vcm}, s[36:39], s31 offen"))
        else:
            srd(a, 12, P['ws'], ACT_BYTES, ACT_OFF); srd(a, 36, P['ws'], CS_BYTES, CS_OFF); srd(a, 40, P['ws'], ST_BYTES, ST_OFF)
            a(f"v_lshlrev_b32 v{t0}, 4, v{vq}\ns_mul_i32 s30, s17, {112*4}")
            for rg in range(2):
                for nt in range(NT):
                    a(f"s_add_u32 s31, s30, {rg*FF*4 + nt*64}")
                    a(f"buffer_load_dwordx4 {vr(CS[rg*NT+nt],4)}, v{t0}, s[36:39], s31 offen")
        if kind in ('gu', 'down'):
            a(f"v_lshlrev_b32 v{t1}, 6, v{vtok}\nv_lshl_add_u32 v{t1}, v{vq}, 4, v{t1}")
            for mt in range(MT):
                a(f"buffer_load_dwordx4 {vr(STT[mt],4)}, v{t1}, s[40:43], 0 offen offset:{mt*16*64}")
    q = LdsQ(a)
    JOBS = 2 * NTT
    assert JOBS % WIN == 0
    def xread(ks):
        off = (ks*4*BM*16) if G == 2 else 0
        for mt in range(MT):
            q.issue(('x', ks & 1), f"ds_read_b128 {vr(XF[ks&1][mt],4)}, v{vXa} offset:{off + mt*256}")
    def wread(u):
        off = u*1024 if G == 2 else (u % NTT)*1024
        q.issue(('w', u), f"ds_read_b128 {vr(WF[u % WIN],4)}, v{vWa} offset:{off}")
    def set_read_addr():
        a(f"v_add_u32 v{vXa}, s45, v{vXl}\nv_add_u32 v{vWa}, s45, v{vWl}")
    def job_mfma(u):
        ks, nt = divmod(u, NTT)
        slot = u % WIN
        q.need({('w', u), ('x', ks & 1)})
        for mt in range(MT):
            if os.environ.get("NOMFMA"): continue
            a(f"v_mfma_f32_16x16x32_bf16 {vr(ACC[nt][mt],4)}, {vr(WF[slot],4)}, {vr(XF[ks&1][mt],4)}, {vr(ACC[nt][mt],4)}")
    def enter(check_exit):
        if check_exit:
            a(f"s_add_u32 s49, s49, 1")
            a(f"s_cmp_ge_u32 s49, {K//64}\ns_cbranch_scc1 {name}_tail")
        a(f"""
        s_add_u32 s45, s45, {STG}
        s_cmp_ge_u32 s45, {D*STG}
        s_cselect_b32 s30, {D*STG}, 0
        s_sub_u32 s45, s45, s30
        s_barrier
        """)
        set_read_addr()
    a("s_mov_b32 s49, 0\ns_mov_b32 s45, 0")
    a("; STAMP 0")
    a("s_barrier")
    a("; STAMP 1")
    set_read_addr()
    xread(0)
    for u in range(WIN): wread(u)
    epi_loads()
    a.label(f"{name}_loop")
    qstate = list(q.q)
    for u in range(JOBS):
        if u == JOBS - WIN:
            enter(True)
            xread(0)
        if u == NTT - WIN:
            if G == 1: enter(False)
            xread(1)
        job_mfma(u)
        wread((u + WIN) % JOBS)
    assert q.q == qstate, (q.q, qstate)
    a(f"s_branch {name}_loop")
    a.label(f"{name}_tail")
    a("; STAMP 2")
    a("s_waitcnt lgkmcnt(0)")
    q.drain()
    for u in range(JOBS - WIN, JOBS):
        job_mfma(u)
    a("s_waitcnt vmcnt(0)")
    def red_q(reg):
        a(f"""
        v_mov_b32 v{t0}, v{reg}
        s_nop 1
        v_permlane32_swap_b32 v{t0}, v{reg}
        s_nop 1
        v_add_f32 v{reg}, v{reg}, v{t0}
        v_mov_b32 v{t0}, v{reg}
        s_nop 1
        v_permlane16_swap_b32 v{t0}, v{reg}
        s_nop 1
        v_add_f32 v{reg}, v{reg}, v{t0}
        """)
    if kind in ('gu', 'down'):
        mu = [V.get(2, 2) for _ in range(MT)]; rs_ = [V.get() for _ in range(MT)]
        for mt in range(MT):
            s_ = STT[mt]
            a(f"v_add_f32 v{s_}, v{s_}, v{s_+2}\nv_add_f32 v{s_+1}, v{s_+1}, v{s_+3}")
            red_q(s_); red_q(s_+1)
            a(f"""
            s_mov_b32 s30, {f32bits(1.0/DM)}
            v_mul_f32 v{mu[mt]}, s30, v{s_}
            v_mul_f32 v{s_+1}, s30, v{s_+1}
            v_fma_f32 v{s_+1}, -v{mu[mt]}, v{mu[mt]}, v{s_+1}
            v_max_f32 v{s_+1}, 0, v{s_+1}
            v_add_f32 v{s_+1}, {f32bits(1e-5)}, v{s_+1}
            v_rsq_f32 v{rs_[mt]}, v{s_+1}
            v_sub_f32 v{mu[mt]}, 0, v{mu[mt]}
            """)
    a("; STAMP 3")
    if kind in ('wo', 'down'):
        pk = V.get(2, 2)
        if kind == 'wo':
            ssum = V.get(); ssq = V.get()
            a(f"""
            v_mov_b32 v{t3}, v{vcm}
            s_mul_i32 s30, s17, {10*1024}
            s_mul_i32 s31, s29, {HTBS}
            s_add_u32 s30, s30, s31
            v_mov_b32 v{ssum}, 0
            v_mov_b32 v{ssq}, 0
            """)
        else:
            a(f"""
            v_mul_u32_u24 v{t3}, 1280, v{vtok}
            v_lshl_add_u32 v{t3}, v{vq}, 3, v{t3}
            v_mul_f32 v{rs_[0]}, {f32bits(-math.log(2.0))}, v{rs_[0]}
            """)
        for nt in range(NT):
            acc = ACC[nt][0]; r = RES[nt]
            a(f"v_lshlrev_b32 v{t1}, 16, v{r}\nv_and_b32 v{t2}, 0xffff0000, v{r}")
            if kind == 'wo':
                a(f"v_add_f32 v{acc}, v{acc}, v{t1}\nv_add_f32 v{acc+1}, v{acc+1}, v{t2}")
            else:
                a(f"v_fma_f32 v{acc}, v{acc}, v{rs_[0]}, v{t1}\nv_fma_f32 v{acc+1}, v{acc+1}, v{rs_[0]}, v{t2}")
            a(f"v_lshlrev_b32 v{t1}, 16, v{r+1}\nv_and_b32 v{t2}, 0xffff0000, v{r+1}")
            if kind == 'wo':
                a(f"v_add_f32 v{acc+2}, v{acc+2}, v{t1}\nv_add_f32 v{acc+3}, v{acc+3}, v{t2}")
            else:
                a(f"v_fma_f32 v{acc+2}, v{acc+2}, v{rs_[0]}, v{t1}\nv_fma_f32 v{acc+3}, v{acc+3}, v{rs_[0]}, v{t2}")
            a(f"v_cvt_pk_bf16_f32 v{pk}, v{acc}, v{acc+1}\nv_cvt_pk_bf16_f32 v{pk+1}, v{acc+2}, v{acc+3}")
            if kind == 'wo':
                a(f"s_add_u32 s31, s30, {nt*2048}")
                a(f"buffer_store_dwordx2 {vr(pk,2)}, v{t3}, s[12:15], s31 offen{SCX2}")
                for h_ in range(2):
                    a(f"""
                    v_lshlrev_b32 v{t1}, 16, v{pk+h_}
                    v_and_b32 v{t2}, 0xffff0000, v{pk+h_}
                    v_add_f32 v{ssum}, v{ssum}, v{t1}
                    v_fmac_f32 v{ssq}, v{t1}, v{t1}
                    v_add_f32 v{ssum}, v{ssum}, v{t2}
                    v_fmac_f32 v{ssq}, v{t2}, v{t2}
                    """)
            else:
                a(f"buffer_store_dwordx2 {vr(pk,2)}, v{t3}, s[12:15], s28 offen offset:{nt*32}{SCX2}")
        if kind == 'wo':
            red_q(ssum); red_q(ssq)
            st2 = V.get(2, 2)
            a(f"""
            v_mov_b32 v{st2}, v{ssum}
            v_mov_b32 v{st2+1}, v{ssq}
            v_lshlrev_b32 v{t0}, 6, v{vtok}
            s_lshl_b32 s30, s17, 3
            s_mov_b64 exec, 0xffff
            buffer_store_dwordx2 {vr(st2,2)}, v{t0}, s[40:43], s30 offen
            """)
    else:
        ag = [V.get(2, 2) for _ in range(MT)]
        for mt in range(MT):
            a(f"v_mul_f32 v{ag[mt]}, {f32bits(-math.log2(math.e))}, v{rs_[mt]}")
        pk = V.get(4, 4); vo = V.get(); w = V.get(4, 2); e = V.get(4, 2); one2 = V.get(2, 2)
        a(f"v_mov_b32 v{one2}, 1.0\nv_mov_b32 v{one2+1}, 1.0")
        a(f"""
        v_and_b32 v{t0}, 63, v{vtok}
        v_and_b32 v{t1}, 1, v{vq}
        v_lshl_add_u32 v{t0}, v{t1}, 4, v{t0}
        v_lshlrev_b32 v{t0}, 4, v{t0}
        v_lshrrev_b32 v{t1}, 1, v{vq}
        v_lshl_add_u32 v{vo}, v{t1}, 10, v{t0}
        s_mul_i32 s30, s17, {14*1024}
        s_mul_i32 s31, s29, {ATBS}
        s_add_u32 s30, s30, s31
        """)
        for nt in range(NT):
            if nt == 3:
                a(f"s_cmp_eq_u32 s17, 15\ns_cbranch_scc1 {name}_end")
            for mt in range(MT):
                g = ACC[nt][mt]; u_ = ACC[NT+nt][mt]; cg = CS[nt]; cu = CS[NT+nt]
                for r in (0, 2): a(f"v_pk_fma_f32 {vr(g+r,2)}, {vr(cg+r,2)}, {vr(mu[mt],2)}, {vr(g+r,2)} op_sel_hi:[1,0,1]")
                for r in (0, 2): a(f"v_pk_mul_f32 {vr(w+r,2)}, {vr(g+r,2)}, {vr(ag[mt],2)} op_sel_hi:[1,0]")
                for r in range(4): a(f"v_exp_f32 v{e+r}, v{w+r}")
                for r in (0, 2): a(f"v_pk_fma_f32 {vr(u_+r,2)}, {vr(cu+r,2)}, {vr(mu[mt],2)}, {vr(u_+r,2)} op_sel_hi:[1,0,1]")
                for r in (0, 2): a(f"v_pk_add_f32 {vr(e+r,2)}, {vr(e+r,2)}, {vr(one2,2)}")
                for r in range(4): a(f"v_rcp_f32 v{e+r}, v{e+r}")
                for r in (0, 2): a(f"v_pk_mul_f32 {vr(w+r,2)}, {vr(w+r,2)}, {vr(u_+r,2)}")
                for r in (0, 2): a(f"v_pk_mul_f32 {vr(w+r,2)}, {vr(w+r,2)}, {vr(e+r,2)}")
                a(f"v_cvt_pk_bf16_f32 v{pk+2*mt}, v{w}, v{w+1}")
                a(f"v_cvt_pk_bf16_f32 v{pk+2*mt+1}, v{w+2}, v{w+3}")
            a("s_nop 1")
            a(f"v_permlane16_swap_b32 v{pk}, v{pk+2}")
            a(f"v_permlane16_swap_b32 v{pk+1}, v{pk+3}")
            a(f"s_add_u32 s31, s30, {nt*2048}")
            a(f"buffer_store_dwordx4 {vr(pk,4)}, v{vo}, s[12:15], s31 offen{SCX}")
            a("s_nop 1")
    a(f"s_branch {name}_end")
    a = a_main
    a.label(f"{name}_loader")
    L = VAlloc(3)
    vd = L.get()
    ra, rb_ = (3, 7) if NST == 27 else ((1, 3) if NST == 10 else (2, 5))
    if os.environ.get('NOROT'): ra, rb_ = 0, 0
    a(f"""
    s_sub_u32 s18, s18, 4
    v_lshlrev_b32 v{vd}, 4, v2
    s_mul_i32 s50, s18, {NXI // (BM//64) * 1024}
    s_mul_i32 s30, s16, {(BM//64)*XTBS}
    s_add_u32 s50, s50, s30
    s_mul_i32 s25, s18, {NXI*1024}
    s_lshl_b32 s27, s18, 10
    s_add_u32 s27, s27, {XB}
    s_mul_i32 s51, s17, {(K//32)*NTT*1024}
    s_lshl_b32 s30, s18, 10
    s_add_u32 s51, s51, s30
    s_add_u32 s51, s51, {wsec}
    s_mul_i32 s30, s32, {ra}
    s_mul_i32 s31, s33, {rb_}
    s_add_u32 s44, s30, s31
    s_cmp_ge_u32 s44, {NST}
    s_cselect_b32 s30, {NST}, 0
    s_sub_u32 s44, s44, s30
    s_cmp_ge_u32 s44, {NST}
    s_cselect_b32 s30, {NST}, 0
    s_sub_u32 s44, s44, s30
    s_mov_b32 s46, 0
    s_waitcnt lgkmcnt(0)
    """)
    srd(a, 4, P['ws'], xbytes, xoff)
    srd(a, 8, P['ws'], WPX, WP_OFF)
    NWI = (NWT + 3)//4
    uneven = NWT % 4 != 0
    per_hi = NXI + NWI
    per_lo = NXI + NWI - (1 if uneven else 0)
    def issue_stage():
        a(f"s_mul_i32 s47, s44, {G*4*1024}\ns_add_u32 s47, s47, s50")
        a(f"s_mul_i32 s48, s44, {WB}\ns_add_u32 s48, s48, s51")
        a(f"s_add_u32 s52, s27, s46\ns_add_u32 s53, s25, s46")
        for i in range(NWI):
            lab = None
            if uneven and i == NWI - 1:
                lab = a.newlabel(name + "_sk")
                a(f"s_cmp_ge_u32 s18, {NWT % 4}\ns_cbranch_scc1 {lab}")
            a(f"s_add_u32 m0, s52, {i*4096}")
            a(f"s_add_u32 s31, s48, {i*4096}")
            if not os.environ.get("NODMAW"): a(f"buffer_load_dwordx4 v{vd}, s[8:11], s31 offen lds")
            if lab: a.label(lab)
        for i in range(NXI):
            c, tg = divmod(i, BM//64)
            a(f"s_add_u32 m0, s53, {i*1024}")
            a(f"s_add_u32 s31, s47, {c*1024 + tg*XTBS}")
            if not os.environ.get("NODMAX"): a(f"buffer_load_dwordx4 v{vd}, s[4:7], s31 offen lds")
        a(f"""
        s_add_u32 s44, s44, 1
        s_cmp_ge_u32 s44, {NST}
        s_cselect_b32 s30, {NST}, 0
        s_sub_u32 s44, s44, s30
        s_add_u32 s46, s46, {STG}
        s_cmp_ge_u32 s46, {D*STG}
        s_cselect_b32 s30, {D*STG}, 0
        s_sub_u32 s46, s46, s30
        """)
    def vmw(n_st, extra=0):
        if extra:
            if per_hi != per_lo:
                l1 = a.newlabel(name + "_w"); le = a.newlabel(name + "_w")
                a(f"s_cmp_ge_u32 s18, {NWT % 4}\ns_cbranch_scc1 {l1}")
                a(f"s_waitcnt vmcnt({per_hi*n_st + extra})\ns_branch {le}")
                a.label(l1)
                a(f"s_waitcnt vmcnt({per_lo*n_st + extra})")
                a.label(le)
            else:
                a(f"s_waitcnt vmcnt({per_hi*n_st + extra})")
            return
        if per_hi != per_lo:
            l1 = a.newlabel(name + "_w"); le = a.newlabel(name + "_w")
            a(f"s_cmp_ge_u32 s18, {NWT % 4}\ns_cbranch_scc1 {l1}")
            a(f"s_waitcnt vmcnt({per_hi*n_st})\ns_branch {le}")
            a.label(l1)
            a(f"s_waitcnt vmcnt({per_lo*n_st})")
            a.label(le)
        else:
            a(f"s_waitcnt vmcnt({per_hi*n_st})")
    if kind in ('wo', 'gu') and not os.environ.get("NOPF"):
        nlines = 8960 if kind == 'wo' else 8640
        base = WP_GU if kind == 'wo' else WP_WD
        msk = 3 if kind == 'wo' else 1
        pf = L.get(); pfd = L.get()
        PFTXT = f"""
        s_lshr_b32 s30, s2, 3
        s_lshl_b32 s30, s30, 2
        s_add_u32 s30, s30, s18
        s_mul_i32 s30, s30, {70*128}
        s_and_b32 s31, s35, {msk}
        s_mul_i32 s31, s31, {nlines*128}
        s_add_u32 s30, s30, s31
        s_add_u32 s30, s30, {base}
        v_lshlrev_b32 v{pf}, 7, v2
        buffer_load_dword v{pfd}, v{pf}, s[8:11], s30 offen
        s_add_u32 s30, s30, {64*128}
        s_mov_b64 exec, 0x3f
        buffer_load_dword v{pfd}, v{pf}, s[8:11], s30 offen
        s_mov_b64 exec, -1
        """
    do_pf = kind in ('wo', 'gu') and not os.environ.get("NOPF")
    a("; STAMP 4")
    issued = min(2, D)
    plan = []
    for j in range(NST):
        ow = issued - 1 - j
        lim = min(NST, max(D, j - 1 + D))
        n_new = max(0, min(2, lim - issued))
        plan.append((ow, n_new)); issued += n_new
    assert issued == NST
    runs = []
    for p in plan:
        if runs and runs[-1][0] == p: runs[-1][1] += 1
        else: runs.append([p, 1])
    for _ in range(min(2, D)): issue_stage()
    tot = min(2, D); extra = 0
    for (ow, nn), cnt in runs:
        if cnt > 1:
            lab = a.newlabel(name + "_ll")
            a(f"s_mov_b32 s49, 0")
            a.label(lab)
            vmw(ow, extra); a("s_barrier")
            for _ in range(nn): issue_stage()
            a(f"s_add_u32 s49, s49, 1\ns_cmp_lt_u32 s49, {cnt}\ns_cbranch_scc1 {lab}")
        else:
            vmw(ow, extra); a("s_barrier")
            for _ in range(nn): issue_stage()
        tot += nn*cnt
        if tot == NST and do_pf and not extra:
            a(PFTXT); extra = 2
    a.label(f"{name}_end")
    a("s_endpgm")
    return a.text(), max(gu2_hi if GU2 else V.hi, L.hi), D*STG
```

```python
from common import *
import os
SCX = '' if os.environ.get('NOSC1') else ' sc1'
SCX2 = ' sc1' if os.environ.get('SC1X2') else ''

import os
def k_qkv(name="qkv_kernel"):
    a = Asm()
    D = 4; NST = 10; STG = 32768
    STATS = D*STG
    QS = (DH ** -0.5) * math.log2(math.e)
    entry(a, name)
    a(f"""
    s_cmp_ge_u32 s2, 240
    s_cbranch_scc1 {name}_colsum
    s_and_b32 s30, s2, 7          ; xcd
    s_lshr_b32 s31, s2, 3         ; idx 0..29
    s_and_b32 s32, s30, 1
    s_mul_i32 s32, s32, 30
    s_add_u32 s32, s32, s31       ; t 0..59
    s_lshr_b32 s17, s32, 2        ; cb
    s_and_b32 s33, s32, 3
    s_lshr_b32 s30, s30, 1
    s_lshl_b32 s30, s30, 2
    s_add_u32 s16, s30, s33       ; rb
    s_cmp_ge_u32 s18, 8
    s_cbranch_scc1 {name}_stats
    s_cmp_ge_u32 s18, 4
    s_cbranch_scc1 {name}_loader
    s_lshr_b32 s19, s18, 1        ; wm
    s_and_b32 s20, s18, 1         ; wn
    """)
    V = VAlloc(3)
    t0 = V.get(); t1 = V.get(); t2 = V.get(); t3 = V.get()
    dead0 = V.n
    lX = [[V.get() for sm in range(2)] for s in range(4)]
    lW = [V.get() for sn in range(2)]
    aX = [[V.get() for sm in range(2)] for s in range(4)]
    aW = [V.get() for sn in range(2)]
    a(f"""
    v_and_b32 v{t0}, 31, v2               ; r
    v_lshrrev_b32 v{t1}, 5, v2            ; hh
    v_bfe_u32 v{t2}, v{t0}, 1, 3          ; f
    v_xor_b32 v{t2}, v{t2}, v{t1}
    v_lshlrev_b32 v{t2}, 4, v{t2}
    v_lshl_add_u32 v{t2}, v{t0}, 7, v{t2}
    s_lshl_b32 s30, s19, 13
    s_lshl_b32 s31, s20, 12
    s_add_u32 s30, s30, s31
    v_add_u32 v{t2}, s30, v{t2}
    """)
    for s in range(4):
        a(f"v_xor_b32 v{lX[s][0]}, {s*32}, v{t2}")
        a(f"v_xor_b32 v{lX[s][1]}, 0x1000, v{lX[s][0]}")
    a(f"""
    v_lshrrev_b32 v{t0}, 5, v2            ; g>>1
    v_bfe_u32 v{t1}, v2, 2, 2             ; rr
    v_lshl_add_u32 v{t0}, v{t0}, 3, v{t1}
    v_lshlrev_b32 v{t0}, 8, v{t0}
    v_bfe_u32 v{t2}, v2, 4, 1
    v_lshlrev_b32 v{t2}, 1, v{t2}
    v_bfe_u32 v{t3}, v2, 1, 1
    v_add_u32 v{t2}, v{t2}, v{t3}
    s_lshl_b32 s30, s20, 3
    s_lshl_b32 s31, s19, 2
    s_add_u32 s30, s30, s31
    v_add_u32 v{t2}, s30, v{t2}
    v_lshlrev_b32 v{t1}, 2, v{t1}
    v_xor_b32 v{t2}, v{t2}, v{t1}
    v_lshl_add_u32 v{t0}, v{t2}, 4, v{t0}
    v_and_b32 v{t3}, 1, v2
    v_lshl_add_u32 v{lW[0]}, v{t3}, 3, v{t0}
    v_add_u32 v{lW[0]}, 16384, v{lW[0]}
    v_xor_b32 v{lW[1]}, 64, v{lW[0]}
    """)
    XF = [[V.get(4, 4) for sm in range(2)] for b in range(2)]
    WF = [[V.get(4, 4) for sn in range(2)] for b in range(2)]
    dead1 = V.n
    ACC = [[V.get(16, 4) for j in range(2)] for i in range(2)]
    CSA = V.get(16, 4); ONE = V.get(4, 4)
    for i in range(2):
        for j in range(2):
            for r in range(16):
                a(f"v_mov_b32 v{ACC[i][j]+r}, 0")
    for r in range(16):
        a(f"v_mov_b32 v{CSA+r}, 0")
    for r in range(4):
        for j in range(2):
            a(f"v_mov_b32 v{XF[1][j]+r}, 0\nv_mov_b32 v{WF[1][j]+r}, 0")
    for r in range(4): a(f"v_mov_b32 v{ONE+r}, 0x3f803f80")
    def frag_reads(s):
        b = s & 1
        out = []
        for sm in range(2):
            out.append(f"ds_read_b128 {vr(XF[b][sm],4)}, v{aX[s][sm]}")
        for sn in range(2):
            for jh in range(2):
                out.append(f"ds_read_b64_tr_b16 {vr(WF[b][sn]+2*jh,2)}, v{aW[sn]} offset:{s*4096 + jh*1024}")
        return out
    def mfmas(b, vmode, fill=()):
        ops = []
        k = 0
        for sn in range(2):
            for sm in range(2):
                if os.environ.get("NOMFMA"): pass
                elif vmode:
                    ops.append(f"v_mfma_f32_32x32x16_bf16 {vr(ACC[sn][sm],16)}, {vr(XF[b][sm],4)}, {vr(WF[b][sn],4)}, {vr(ACC[sn][sm],16)}")
                else:
                    ops.append(f"v_mfma_f32_32x32x16_bf16 {vr(ACC[sn][sm],16)}, {vr(WF[b][sn],4)}, {vr(XF[b][sm],4)}, {vr(ACC[sn][sm],16)}")
                if k == 1 and not os.environ.get("NOCS"):
                    ops.append(f"v_mfma_f32_32x32x16_bf16 {vr(CSA,16)}, {vr(WF[b][0],4)}, {vr(ONE,4)}, {vr(CSA,16)}")
                k += 1
        fill = list(fill)
        per = (len(fill) + max(len(ops), 1) - 1) // max(len(ops), 1)
        for o in ops:
            a(o)
            for f in fill[:per]: a(f)
            fill = fill[per:]
        for f in fill: a(f)
    def mainloop(vmode, lab):
        a("s_mov_b32 s49, 0\ns_mov_b32 s45, 0")
        a("; STAMP 0")
        a.label(lab)
        a("s_waitcnt lgkmcnt(0)")
        a("s_barrier")
        adds0 = [f"v_add_u32 v{aX[0][sm]}, s45, v{lX[0][sm]}" for sm in range(2)] + [f"v_add_u32 v{aW[sn]}, s45, v{lW[sn]}" for sn in range(2)]
        adds1 = [f"v_add_u32 v{aX[s][sm]}, s45, v{lX[s][sm]}" for s in range(1, 4) for sm in range(2)]
        for x in adds0: a(x)
        mfmas(1, vmode, frag_reads(0) + adds1)
        for s in range(3):
            a("s_waitcnt lgkmcnt(0)")
            mfmas(s & 1, vmode, frag_reads(s + 1))
        a(f"""
        s_add_u32 s45, s45, {STG}
        s_and_b32 s45, s45, {D*STG-1}
        s_add_u32 s49, s49, 1
        s_cmp_lt_u32 s49, {NST}
        s_cbranch_scc1 {lab}
        s_waitcnt lgkmcnt(0)
        """)
        mfmas(1, vmode)
        a("; STAMP 2")
    def cs_publish():
        a(f"""
        s_nop 7
        s_nop 7
        v_lshrrev_b32 v{t0}, 5, v2           ; hh
        v_lshlrev_b32 v{t0}, 4, v{t0}
        s_lshl_b32 s30, s20, 6
        s_lshl_b32 s31, s19, 5
        s_add_u32 s30, s30, s31
        s_lshl_b32 s30, s30, 2
        s_add_u32 s30, s30, {STATS+1024}
        v_add_u32 v{t0}, s30, v{t0}
        s_mov_b32 s30, 1
        s_mov_b32 s31, 1
        s_mov_b64 exec, s[30:31]
        """)
        for aa in range(4):
            a(f"ds_write_b128 v{t0}, {vr(CSA+4*aa,4)} offset:{aa*32}")
        a("s_mov_b64 exec, -1\ns_waitcnt lgkmcnt(0)\ns_barrier")
        a("; STAMP 3")
    a("s_waitcnt lgkmcnt(0)")
    srd(a, 12, P['ws'], 3*REG)
    a(f"s_cmp_ge_u32 s17, 10\ns_cbranch_scc1 {name}_vpath")
    mainloop(False, f"{name}_lq")
    cs_publish()
    VM = V
    V = VAlloc(dead0, dead1)
    am = [V.get(2, 2), V.get(2, 2)]; bm = [V.get(2, 2), V.get(2, 2)]
    csr = [V.get(4, 4), V.get(4, 4)]; pk = [V.get(4, 4), V.get(4, 4)]; vo = V.get(); vca = V.get(); w = V.get(4, 2)
    th = V.get()
    a(f"""
    v_and_b32 v{t0}, 31, v2
    s_lshl_b32 s30, s19, 6
    s_lshl_b32 s31, s20, 5
    s_add_u32 s30, s30, s31
    v_add_lshl_u32 v{t1}, v{t0}, s30, 2
    v_add_u32 v{t1}, {STATS}, v{t1}
    v_xor_b32 v{t2}, 128, v{t1}
    ds_read_b32 v{am[0]}, v{t1}
    ds_read_b32 v{bm[0]}, v{t1} offset:512
    ds_read_b32 v{am[1]}, v{t2}
    ds_read_b32 v{bm[1]}, v{t2} offset:512
    v_lshrrev_b32 v{th}, 5, v2        ; hh
    v_lshlrev_b32 v{vca}, 4, v{th}
    s_lshl_b32 s30, s20, 8
    s_add_u32 s30, s30, {STATS}
    v_add_u32 v{vca}, s30, v{vca}
    s_cmp_lt_u32 s17, 5
    s_cselect_b32 s34, {f32bits(QS)}, 1.0
    s_cselect_b32 s35, {QF_OFF}, {KF_OFF}
    s_cselect_b32 s30, 0, 5
    s_sub_u32 s30, s17, s30              ; cbl
    s_lshl_b32 s31, s30, 5
    s_lshl_b32 s33, s20, 4
    s_add_u32 s31, s31, s33
    s_lshl_b32 s31, s31, 8
    s_add_u32 s35, s35, s31
    s_lshl_b32 s31, s16, 2
    s_lshl_b32 s33, s19, 1
    s_add_u32 s31, s31, s33
    s_mul_i32 s31, s31, 40960
    s_add_u32 s35, s35, s31
    v_lshlrev_b32 v{vo}, 9, v{th}
    v_lshl_add_u32 v{vo}, v{t0}, 4, v{vo}
    s_mul_i32 s46, s20, 40960
    s_sub_u32 s47, 40960, s46
    s_add_u32 s46, s46, s35
    s_add_u32 s47, s47, s35
    s_lshl_b32 s48, s19, 11
    s_sub_u32 s49, 2048, s48
    s_lshl_b32 s50, s19, 7
    s_sub_u32 s51, 128, s50
    v_add_u32 v{t1}, s50, v{vca}
    v_add_u32 v{t2}, s51, v{vca}
    ds_read_b128 {vr(csr[0],4)}, v{t1} offset:1024
    s_waitcnt lgkmcnt(1)
    v_mul_f32 v{am[0]}, s34, v{am[0]}
    v_mul_f32 v{bm[0]}, s34, v{bm[0]}
    v_mul_f32 v{am[1]}, s34, v{am[1]}
    v_mul_f32 v{bm[1]}, s34, v{bm[1]}
    """)
    items = [(sn, aa) for sn in range(2) for aa in range(4)]
    for i, (sn, aa) in enumerate(items):
        if i + 1 < len(items):
            sn2, aa2 = items[i+1]
            a(f"ds_read_b128 {vr(csr[(i+1)&1],4)}, v{t1 if sn2 == 0 else t2} offset:{1024 + aa2*32}")
            a("s_waitcnt lgkmcnt(1)")
        else:
            a("s_waitcnt lgkmcnt(0)")
        c = csr[i & 1]
        for sm in range(2):
            acc = ACC[sn][sm] + 4*aa
            for r in (0, 2): a(f"v_pk_mul_f32 {vr(w+r,2)}, {vr(c+r,2)}, {vr(bm[sm],2)} op_sel_hi:[1,0]")
            for r in (0, 2): a(f"v_pk_fma_f32 {vr(w+r,2)}, {vr(acc+r,2)}, {vr(am[sm],2)}, {vr(w+r,2)} op_sel_hi:[1,0,1]")
            h_ = 2*(aa & 1)
            a(f"v_cvt_pk_bf16_f32 v{pk[sm]+h_}, v{w}, v{w+1}")
            a(f"v_cvt_pk_bf16_f32 v{pk[sm]+h_+1}, v{w+2}, v{w+3}")
            if aa & 1:
                a("s_nop 1")
                a(f"v_permlane32_swap_b32 v{pk[sm]}, v{pk[sm]+2}")
                a(f"v_permlane32_swap_b32 v{pk[sm]+1}, v{pk[sm]+3}")
                a(f"s_add_u32 s30, s{46+sm}, s{48+sn}")
                a(f"buffer_store_dwordx4 {vr(pk[sm],4)}, v{vo}, s[12:15], s30 offen offset:{(aa >> 1)*1024}{SCX}")
    a(f"s_branch {name}_end")
    a.label(f"{name}_vpath")
    V = VAlloc(dead0, dead1)
    mainloop(True, f"{name}_lv")
    cs_publish()
    csn = [V.get(), V.get()]
    rs4 = [V.get(4, 4), V.get(4, 4)]; nb4 = [V.get(4, 4), V.get(4, 4)]; pk4 = V.get(4, 4); vo = V.get(); vra = V.get()
    wv = [V.get() for _ in range(8)]; th = V.get()
    a(f"""
    v_and_b32 v{t0}, 31, v2
    v_lshrrev_b32 v{th}, 5, v2        ; hh
    s_lshl_b32 s30, s20, 6
    s_lshl_b32 s31, s19, 5
    s_add_u32 s30, s30, s31
    v_add_lshl_u32 v{t1}, v{t0}, s30, 2
    v_add_u32 v{t1}, {STATS}, v{t1}
    v_xor_b32 v{t2}, 128, v{t1}
    ds_read_b32 v{csn[0]}, v{t1} offset:1024
    ds_read_b32 v{csn[1]}, v{t2} offset:1024
    v_lshlrev_b32 v{vra}, 4, v{th}
    s_lshl_b32 s30, s19, 8
    s_add_u32 s30, s30, {STATS}
    v_add_u32 v{vra}, s30, v{vra}
    s_lshl_b32 s30, s16, 3
    s_lshl_b32 s31, s19, 2
    s_add_u32 s30, s30, s31
    s_mul_i32 s30, s30, 20480
    s_sub_u32 s31, s17, 10
    s_lshl_b32 s31, s31, 7
    s_lshl_b32 s33, s20, 6
    s_add_u32 s31, s31, s33
    s_lshl_b32 s31, s31, 4
    s_add_u32 s35, s30, s31
    s_add_u32 s35, s35, {VT_OFF}
    v_mul_u32_u24 v{vo}, 10240, v{th}
    v_lshl_add_u32 v{vo}, v{t0}, 4, v{vo}
    s_mul_i32 s46, s20, 40960
    s_sub_u32 s47, 40960, s46
    s_add_u32 s46, s46, s35
    s_add_u32 s47, s47, s35
    s_lshl_b32 s48, s19, 9
    s_sub_u32 s49, 512, s48
    s_lshl_b32 s50, s20, 7
    s_sub_u32 s51, 128, s50
    v_add_u32 v{t1}, s50, v{vra}
    v_add_u32 v{t2}, s51, v{vra}
    s_waitcnt lgkmcnt(0)
    """)
    for sm in range(2):
        ad = t1 if sm == 0 else t2
        for g in range(2):
            for ah in range(2):
                aa = 2*g + ah
                a(f"ds_read_b128 {vr(rs4[ah],4)}, v{ad} offset:{aa*32}")
                a(f"ds_read_b128 {vr(nb4[ah],4)}, v{ad} offset:{512 + aa*32}")
            a("s_waitcnt lgkmcnt(0)")
            for sn in range(2):
                for ah in range(2):
                    acc = ACC[sn][sm] + 4*(2*g + ah)
                    for i in range(4): a(f"v_mul_f32 v{wv[4*ah+i]}, v{nb4[ah]+i}, v{csn[sn]}")
                    for i in range(4): a(f"v_fmac_f32 v{wv[4*ah+i]}, v{acc+i}, v{rs4[ah]+i}")
                for i in range(4):
                    a(f"v_cvt_pk_bf16_f32 v{pk4+i}, v{wv[2*i]}, v{wv[2*i+1]}")
                a(f"s_add_u32 s30, s{46+sm}, s{48+sn}")
                a(f"s_add_u32 s30, s30, {g*20480}")
                a(f"buffer_store_dwordx4 {vr(pk4,4)}, v{vo}, s[12:15], s30 offen{SCX}")
                a("s_nop 1")
    a(f"s_branch {name}_end")
    a.label(f"{name}_loader")
    L = VAlloc(3)
    t0 = L.get(); t1 = L.get(); t2 = L.get(); t3 = L.get()
    vXd = [L.get(), L.get()]; vWd = L.get()
    a(f"""
    s_sub_u32 s18, s18, 4
    s_mul_i32 s21, s16, {128*1280}
    s_mul_i32 s30, s18, {32*1280}
    s_add_u32 s21, s21, s30
    s_mul_i32 s22, s18, {16*3840}
    s_lshl_b32 s30, s17, 8
    s_add_u32 s22, s22, s30
    s_lshl_b32 s23, s18, 12
    s_add_u32 s24, s23, 16384
    v_lshrrev_b32 v{t0}, 3, v2
    v_and_b32 v{t1}, 7, v2
    v_lshrrev_b32 v{t2}, 1, v{t0}
    v_xor_b32 v{t3}, v{t1}, v{t2}
    v_mul_u32_u24 v{t0}, 1280, v{t0}
    v_lshl_add_u32 v{vXd[0]}, v{t3}, 4, v{t0}
    v_xor_b32 v{t3}, 4, v{t3}
    v_lshl_add_u32 v{vXd[1]}, v{t3}, 4, v{t0}
    v_lshrrev_b32 v{t0}, 4, v2
    v_and_b32 v{t1}, 15, v2
    v_lshlrev_b32 v{t2}, 2, v{t0}
    v_xor_b32 v{t1}, v{t1}, v{t2}
    v_mul_u32_u24 v{t0}, 3840, v{t0}
    v_lshl_add_u32 v{vWd}, v{t1}, 4, v{t0}
    s_waitcnt lgkmcnt(0)
    """)
    srd(a, 4, P['x'], REG)
    srd(a, 8, P['wqkv'], DM*3*DM*2)
    def dma(i):
        if i == 0:
            a(f"s_lshl_b32 s47, s44, 7\ns_mul_i32 s48, s44, {64*3840}")
        if i < 4:
            a(f"s_add_u32 s30, s24, s46\ns_add_u32 m0, s30, {i*1024}")
            a(f"s_add_u32 s31, s22, s48\ns_add_u32 s31, s31, {i*4*3840}")
            if not os.environ.get("NODMAW"): a(f"buffer_load_dwordx4 v{vWd}, s[8:11], s31 offen lds")
        else:
            i -= 4
            a(f"s_add_u32 s30, s23, s46\ns_add_u32 m0, s30, {i*1024}")
            a(f"s_add_u32 s31, s21, s47\ns_add_u32 s31, s31, {i*8*1280}")
            if not os.environ.get("NODMAX"): a(f"buffer_load_dwordx4 v{vXd[i&1]}, s[4:7], s31 offen lds")
    def adv():
        a(f"""
        s_add_u32 s44, s44, 1
        s_cmp_ge_u32 s44, {NST}
        s_cselect_b32 s30, {NST}, 0
        s_sub_u32 s44, s44, s30
        s_add_u32 s46, s46, {STG}
        s_and_b32 s46, s46, {D*STG-1}
        """)
    a("; STAMP 4")
    RA, RB = [int(x) for x in os.environ.get("QROT", "0,0").split(",")]
    a(f"""
    s_and_b32 s30, s16, 3
    s_mul_i32 s30, s30, {RA}
    s_mul_i32 s31, s17, {RB}
    s_add_u32 s44, s30, s31
    s_mul_i32 s30, s44, 6554
    s_lshr_b32 s30, s30, 16
    s_mul_i32 s30, s30, 10
    s_sub_u32 s44, s44, s30
    s_mov_b32 s46, 0
    """)
    if os.environ.get("NOROT"): a("s_mov_b32 s44, 0")
    for st in range(2):
        for i in range(8): dma(i)
        adv()
    def lbody(n_wait, n_issue, stamp=None):
        a(f"s_waitcnt vmcnt({n_wait})")
        if stamp is not None: a(f"; STAMP {stamp}")
        a("s_barrier")
        for _ in range(n_issue):
            for i in range(8): dma(i)
            adv()
    lbody(8, 2, 5)
    a("s_mov_b32 s49, 1")
    a.label(f"{name}_lloop")
    lbody(8*(D-2), 1)
    a(f"s_add_u32 s49, s49, 1\ns_cmp_le_u32 s49, {NST-D}\ns_cbranch_scc1 {name}_lloop")
    for j in range(NST-D+1, NST):
        lbody(8*(NST-1-j), 0, 6 if j == NST-1 else None)
    a("s_barrier")
    a(f"s_branch {name}_end")
    a.label(f"{name}_stats")
    T = VAlloc(3)
    t0 = T.get(); t1 = T.get(); t2 = T.get()
    lS = [T.get() for _ in range(4)]; aS = [T.get() for _ in range(4)]
    XS = [T.get(4, 4) for _ in range(4)]
    su = [T.get(), T.get()]; sq = [T.get(), T.get()]; u0 = T.get(); u1 = T.get(); u2 = T.get(); u3 = T.get(); pfa = T.get(); pfd = T.get()
    a(f"""
    s_sub_u32 s18, s18, 8
    s_lshl_b32 s23, s18, 12
    v_and_b32 v{t0}, 31, v2
    v_lshrrev_b32 v{t1}, 5, v2
    v_lshlrev_b32 v{t1}, 2, v{t1}
    v_bfe_u32 v{t2}, v{t0}, 1, 3
    v_xor_b32 v{t2}, v{t2}, v{t1}
    v_lshlrev_b32 v{t2}, 4, v{t2}
    v_lshl_add_u32 v{t2}, v{t0}, 7, v{t2}
    v_add_u32 v{t2}, s23, v{t2}
    """)
    if os.environ.get("PF0"):
        a("s_waitcnt lgkmcnt(0)")
        srd(a, 4, P['x'], REG)
        srd(a, 8, P['wqkv'], DM*3*DM*2)
        a(f"""
        s_lshl_b32 s30, s2, 2
        s_add_u32 s30, s30, s18
        s_mul_i32 s31, s30, {22*128}
        s_mul_i32 s32, s30, {20*128}
        v_lshlrev_b32 v{pfa}, 7, v2
        s_mov_b64 exec, 0xfffff
        buffer_load_dword v{pfd}, v{pfa}, s[8:11], s32 offen
        s_mov_b64 exec, 0x3fffff
        buffer_load_dword v{pfd}, v{pfa}, s[4:7], s31 offen
        s_mov_b64 exec, -1
        """)
    for c in range(4):
        a(f"v_xor_b32 v{lS[c]}, {c*16}, v{t2}")
    for r in su + sq: a(f"v_mov_b32 v{r}, 0")
    a("s_mov_b32 s49, 0\ns_mov_b32 s45, 0")
    a.label(f"{name}_sloop")
    a("s_barrier")
    for c in range(4):
        a(f"v_add_u32 v{aS[c]}, s45, v{lS[c]}")
    for c in range(4):
        a(f"ds_read_b128 {vr(XS[c],4)}, v{aS[c]}")
    for c in range(4):
        a(f"s_waitcnt lgkmcnt({3-c})")
        if os.environ.get("NOSTATS"): continue
        for r in range(0, 4, 2):
            x = XS[c] + r
            a(f"""
            v_lshlrev_b32 v{u0}, 16, v{x}
            v_and_b32 v{u1}, 0xffff0000, v{x}
            v_lshlrev_b32 v{u2}, 16, v{x+1}
            v_and_b32 v{u3}, 0xffff0000, v{x+1}
            v_add_f32 v{su[0]}, v{su[0]}, v{u0}
            v_fmac_f32 v{sq[0]}, v{u0}, v{u0}
            v_add_f32 v{su[1]}, v{su[1]}, v{u1}
            v_fmac_f32 v{sq[1]}, v{u1}, v{u1}
            v_add_f32 v{su[0]}, v{su[0]}, v{u2}
            v_fmac_f32 v{sq[0]}, v{u2}, v{u2}
            v_add_f32 v{su[1]}, v{su[1]}, v{u3}
            v_fmac_f32 v{sq[1]}, v{u3}, v{u3}
            """)
    a(f"""
    s_add_u32 s45, s45, {STG}
    s_and_b32 s45, s45, {D*STG-1}
    s_add_u32 s49, s49, 1
    s_cmp_lt_u32 s49, {NST}
    s_cbranch_scc1 {name}_sloop
    v_add_f32 v{su[0]}, v{su[0]}, v{su[1]}
    v_add_f32 v{sq[0]}, v{sq[0]}, v{sq[1]}
    v_mov_b32 v{u0}, v{su[0]}
    v_mov_b32 v{u1}, v{sq[0]}
    s_nop 1
    v_permlane32_swap_b32 v{u0}, v{su[0]}
    v_permlane32_swap_b32 v{u1}, v{sq[0]}
    s_nop 1
    v_add_f32 v{su[0]}, v{su[0]}, v{u0}
    v_add_f32 v{sq[0]}, v{sq[0]}, v{u1}
    s_mov_b32 s30, {f32bits(1.0/DM)}
    v_mul_f32 v{su[0]}, s30, v{su[0]}
    v_mul_f32 v{sq[0]}, s30, v{sq[0]}
    v_fma_f32 v{sq[0]}, -v{su[0]}, v{su[0]}, v{sq[0]}
    v_max_f32 v{sq[0]}, 0, v{sq[0]}
    v_add_f32 v{sq[0]}, {f32bits(1e-5)}, v{sq[0]}
    v_rsq_f32 v{sq[0]}, v{sq[0]}
    s_nop 0
    v_mul_f32 v{su[0]}, v{su[0]}, v{sq[0]}
    v_sub_f32 v{su[0]}, 0, v{su[0]}
    v_and_b32 v{t0}, 31, v2
    s_lshl_b32 s30, s18, 7
    s_add_u32 s30, s30, {STATS}
    v_lshlrev_b32 v{t0}, 2, v{t0}
    v_add_u32 v{t0}, s30, v{t0}
    ds_write_b32 v{t0}, v{sq[0]}
    ds_write_b32 v{t0}, v{su[0]} offset:512
    s_waitcnt lgkmcnt(0)
    s_barrier
    s_branch {name}_end
    """)
    a.label(f"{name}_colsum")
    a(f"""
    s_cmp_ge_u32 s18, 8
    s_cbranch_scc1 {name}_csb
    s_sub_u32 s30, s2, 240
    s_lshr_b32 s31, s30, 3
    s_and_b32 s32, s30, 7
    s_waitcnt lgkmcnt(0)
    s_cmp_eq_u32 s31, 0
    s_cselect_b32 s4, s{P['wg']}, s{P['wu']}
    s_cselect_b32 s5, s{P['wg']+1}, s{P['wu']+1}
    s_mov_b32 s6, {DM*FF*2}
    s_mov_b32 s7, 0x00020000
    """)
    srd(a, 12, P['ws'], CS_BYTES, CS_OFF)
    C = VAlloc(3)
    c0 = C.get(); c1 = C.get(); vo = C.get()
    acc = C.get(8, 4)
    buf = C.get(80, 4)
    a(f"""
    v_and_b32 v{c0}, 31, v0              ; chunk c
    v_lshrrev_b32 v{c1}, 5, v0
    v_mul_u32_u24 v{vo}, {40*FF*2}, v{c1}
    v_lshl_add_u32 v{vo}, v{c0}, 4, v{vo}
    s_mul_i32 s33, s32, 432
    s_mov_b32 s46, 0x00003f80
    s_mov_b32 s47, 0x3f800000
    s_mov_b32 s49, 0
    """)
    for i in range(8):
        a(f"v_mov_b32 v{acc+i}, 0")
    a.label(f"{name}_csl")
    for i in range(20):
        a(f"s_add_u32 s30, s33, {i*FF*2}")
        a(f"buffer_load_dwordx4 {vr(buf+4*i,4)}, v{vo}, s[4:7], s30 offen")
    for i in range(20):
        a(f"s_waitcnt vmcnt({19-i})")
        for r in range(4):
            a(f"v_dot2c_f32_bf16 v{acc+2*r}, s46, v{buf+4*i+r}")
            a(f"v_dot2c_f32_bf16 v{acc+2*r+1}, s47, v{buf+4*i+r}")
    a(f"""
    s_add_u32 s33, s33, {20*FF*2}
    s_add_u32 s49, s49, 1
    s_cmp_lt_u32 s49, 2
    s_cbranch_scc1 {name}_csl
    s_nop 3
    v_lshlrev_b32 v{c1}, 5, v0
    ds_write_b128 v{c1}, {vr(acc,4)}
    ds_write_b128 v{c1}, {vr(acc+4,4)} offset:16
    s_waitcnt lgkmcnt(0)
    s_barrier
    v_lshlrev_b32 v{c1}, 2, v0
    """)
    for rg in range(16):
        a(f"ds_read_b32 v{buf+rg}, v{c1} offset:{rg*1024}")
    a("s_waitcnt lgkmcnt(0)")
    for rg in range(1, 16):
        a(f"v_add_f32 v{buf}, v{buf}, v{buf+rg}")
    a(f"""
    s_mul_i32 s30, s31, {FF*4}
    s_mul_i32 s33, s32, {216*4}
    s_add_u32 s30, s30, s33
    v_cmp_gt_u32 vcc, 216, v0
    s_and_saveexec_b64 s[34:35], vcc
    s_cbranch_execz {name}_end
    buffer_store_dword v{buf}, v{c1}, s[12:15], s30 offen
    """)
    a(f"s_branch {name}_end")
    a.label(f"{name}_csb")
    _a_keep = a
    if not os.environ.get('FUSE'): a = Asm()
    a(f"""
    s_cmp_lg_u32 s2, 240
    s_cbranch_scc1 {name}_csb2
    s_cmp_lg_u32 s18, 8
    s_cbranch_scc1 {name}_csb2
    s_waitcnt lgkmcnt(0)
    """)
    srd(a, 4, P['ws'], SY_BYTES, SY_OFF)
    a(f"""
    v_lshlrev_b32 v3, 4, v2
    v_mov_b32 v4, 0
    v_mov_b32 v5, 0
    v_mov_b32 v6, 0
    v_mov_b32 v7, 0
    buffer_store_dwordx4 v[4:7], v3, s[4:7], 0 offen
    buffer_store_dwordx4 v[4:7], v3, s[4:7], 0 offen offset:1024
    buffer_store_dwordx4 v[4:7], v3, s[4:7], 0 offen offset:2048
    buffer_store_dwordx4 v[4:7], v3, s[4:7], 0 offen offset:3072
    """)
    a = _a_keep
    a.label(f"{name}_csb2")
    a("s_barrier")
    a.label(f"{name}_end")
    a("s_endpgm")
    return a.text(), max(VM.hi, L.hi, C.hi, T.hi), D*STG + 2048
```

```python
from common import *
import os
SCX = '' if os.environ.get('NOSC1') else ' sc1'
SCX2 = ' sc1' if os.environ.get('SC1X2') else ''
import os

def k_attn(name="attn_kernel"):
    FUSE = bool(os.environ.get('FUSE'))
    a = Asm()
    KH = 8192; VOFF = 12288
    CH = VOFF + 33*336
    NCH = 8; NB = 3
    FLAG = NB*CH + 256
    RPK = (FLAG + 64 + 255)//256*256
    WOW = RPK
    WOL = 0
    CSTR = 327680
    entry(a, name)
    a(f"""
    s_and_b32 s30, s2, 7                 ; xcd
    s_lshr_b32 s31, s2, 3                ; idx 0..31
    s_lshr_b32 s32, s31, 3
    s_lshl_b32 s16, s30, 2
    s_add_u32 s16, s16, s32              ; head
    s_and_b32 s17, s31, 7                ; qblock
    s_cmp_ge_u32 s18, 8
    s_cbranch_scc1 {name}_svc
    """)
    V = VAlloc(3)
    t0 = V.get(); t1 = V.get(); t2 = V.get(); t3 = V.get(); t4 = V.get()
    Q1 = V.get(4, 4); Q2 = V.get(4, 4)
    SS = [V.get(16, 4), V.get(16, 4)]
    PP = [V.get(4, 4), V.get(4, 4)]
    OO = V.get(16, 4)
    K1 = [V.get(4, 4), V.get(4, 4)]; K2 = [V.get(4, 4), V.get(4, 4)]
    V1 = [V.get(4, 4), V.get(4, 4)]; V2 = [V.get(4, 4), V.get(4, 4)]
    lk = V.get(); lk2 = V.get(); lv = V.get()
    ck = V.get(); ck2 = V.get(); cv = V.get()
    nk = V.get(); nk2 = V.get(); nv = V.get()
    vm = V.get(); vq = V.get(); vhh = V.get()
    a(f"""
    s_lshl_b32 s30, s17, 3
    s_add_u32 s30, s30, s18              ; q tile
    s_mul_i32 s30, s30, 40960
    s_mul_i32 s31, s16, 5
    s_add_u32 s31, s31, 1
    s_lshr_b32 s31, s31, 1               ; cA
    s_and_b32 s32, s16, 1                ; parity
    s_lshl_b32 s25, s31, 9
    s_add_u32 s24, s30, s25
    s_mul_i32 s26, s32, {-(1024+512-8) & 0xffffffff}
    s_add_u32 s26, s26, 1024
    s_add_u32 s26, s26, s24
    s_lshl_b32 s27, s32, 3               ; parity*8
    v_and_b32 v{vq}, 31, v2
    v_lshrrev_b32 v{vhh}, 5, v2
    v_lshlrev_b32 v{lk2}, 4, v{vq}                 ; q*16
    v_lshl_add_u32 v{lk}, v{vhh}, 9, v{lk2}        ; hh*512 + q*16
    v_mul_u32_u24 v{t4}, 336, v{vhh}
    v_lshl_add_u32 v{lv}, v{vq}, 4, v{t4}
    v_add_u32 v{lv}, {VOFF}, v{lv}
    ; ones rows: thread t<96: buffer = t/32, piece = t%32
    v_lshrrev_b32 v{t0}, 5, v0
    v_mul_u32_u24 v{t0}, {CH}, v{t0}
    v_and_b32 v{t1}, 31, v0
    v_mul_u32_u24 v{t1}, 336, v{t1}
    v_add_u32 v{t0}, v{t0}, v{t1}
    v_add_u32 v{t0}, {VOFF+320}, v{t0}
    v_mov_b32 v{SS[0]}, 0x3f803f80
    v_mov_b32 v{SS[0]+1}, 0x3f803f80
    v_mov_b32 v{SS[0]+2}, 0x3f803f80
    v_mov_b32 v{SS[0]+3}, 0x3f803f80
    v_cmp_gt_u32 vcc, 96, v0
    s_and_saveexec_b64 s[30:31], vcc
    s_cbranch_execz {name}_no1
    ds_write_b128 v{t0}, {vr(SS[0],4)}
    """)
    a.label(f"{name}_no1")
    a(f"""
    s_mov_b64 exec, -1
    v_mov_b32 v{t0}, {FLAG}
    v_mov_b32 v{t1}, 0
    ds_write_b32 v{t0}, v{t1}
    v_cmp_gt_u32 s[28:29], 32, v2
    v_mov_b32 v{Q2+2}, 0
    v_mov_b32 v{Q2+3}, 0
    s_waitcnt lgkmcnt(0)
    """)
    srd(a, 8, P['ws'], REG, QF_OFF)
    srd(a, 12, P['ws'], REG, O_OFF)
    a(f"""
    buffer_load_dwordx4 {vr(Q1,4)}, v{lk}, s[8:11], s24 offen
    buffer_load_dwordx2 {vr(Q2,2)}, v{lk2}, s[8:11], s26 offen
    v_add_u32 v{lk2}, s27, v{lk2}
    v_add_u32 v{lk2}, {KH}, v{lk2}
    """)
    for b in range(2):
        a(f"v_mov_b32 v{K2[b]+2}, 0x3f803f80")
        a(f"v_mov_b32 v{K2[b]+3}, 0x00003f80")
    def readK(buf, t, nxt):
        ak, ak2 = (nk, nk2) if nxt else (ck, ck2)
        a(f"ds_read_b128 {vr(K1[buf],4)}, v{ak} offset:{t*1024}")
        a(f"ds_read_b64 {vr(K2[buf],2)}, v{ak2} offset:{t*512}")
    def readV(buf, t, nxt):
        av = nv if nxt else cv
        a(f"ds_read_b128 {vr(V1[buf],4)}, v{av} offset:{t*4*336}")
        a(f"ds_read_b128 {vr(V2[buf],4)}, v{av} offset:{(t*4+2)*336}")
    def mf(d, A, B, C):
        a(f"v_mfma_f32_32x32x16_bf16 {vr(d,16)}, {vr(A,4)}, {vr(B,4)}, {C}")
    def smfma(sb, kb):
        mf(SS[sb], K1[kb], Q1, "0"); mf(SS[sb], K2[kb], Q2, vr(SS[sb],16))
    def set_m():
        a(f"""
        v_sub_f32 v{t0}, 0, v{vm}
        v_and_b32 v{t1}, 0xffff0000, v{t0}
        v_sub_f32 v{t0}, v{t0}, v{t1}
        v_and_b32 v{t3}, 0xffff0000, v{t0}
        v_sub_f32 v{t0}, v{t0}, v{t3}
        v_lshrrev_b32 v{t1}, 16, v{t1}
        v_or_b32 v{t1}, v{t1}, v{t3}
        v_lshrrev_b32 v{t0}, 16, v{t0}
        v_cndmask_b32 v{Q2+2}, 0, v{t1}, s[28:29]
        v_cndmask_b32 v{Q2+3}, 0, v{t0}, s[28:29]
        s_nop 1
        """)
    def max16(sb, first):
        s = SS[sb]
        if first: a(f"v_max_f32 v{vm}, v{s}, v{s+1}")
        else: a(f"v_max3_f32 v{vm}, v{s}, v{s+1}, v{vm}")
        for r in range(2, 16, 2):
            a(f"v_max3_f32 v{vm}, v{s+r}, v{s+r+1}, v{vm}")
    def xhalf_max():
        a(f"""
        v_mov_b32 v{t0}, v{vm}
        s_nop 1
        v_permlane32_swap_b32 v{t0}, v{vm}
        s_nop 1
        v_max_f32 v{vm}, v{vm}, v{t0}
        """)
    def set_addrs(cur, nxt):
        a(f"""
        v_add_u32 v{ck}, s{cur}, v{lk}
        v_add_u32 v{ck2}, s{cur}, v{lk2}
        v_add_u32 v{cv}, s{cur}, v{lv}
        v_add_u32 v{nk}, s{nxt}, v{lk}
        v_add_u32 v{nk2}, s{nxt}, v{lk2}
        v_add_u32 v{nv}, s{nxt}, v{lv}
        """)
    a(f"s_mov_b32 s33, 0\ns_mov_b32 s34, {CH}")
    set_addrs(33, 34)
    a(f"""
    ; STAMP 4
    s_waitcnt vmcnt(0)
    ; STAMP 5
    v_cndmask_b32 v{Q2}, 0, v{Q2}, s[28:29]
    v_cndmask_b32 v{Q2+1}, 0, v{Q2+1}, s[28:29]
    s_barrier
    """)
    a("; STAMP 0")
    readK(0, 0, False)
    a("s_waitcnt lgkmcnt(0)")
    smfma(0, 0)
    readK(1, 1, False)
    readV(0, 0, False)
    a("s_nop 15\ns_nop 1")
    max16(0, True)
    xhalf_max()
    set_m()
    a("s_mov_b32 s23, 0")
    a(f"s_branch {name}_main2")
    a.label(f"{name}_main")
    a(f"s_mov_b32 s33, 0\ns_mov_b32 s34, {CH}")
    set_addrs(33, 34)
    readK(0, 0, False)
    a("s_waitcnt lgkmcnt(0)")
    readK(1, 1, False)
    readV(0, 0, False)
    a.label(f"{name}_main2")
    a("; STAMP 1")
    if os.environ.get("PRIO"): a("s_setprio 2")
    smfma(0, 0)
    for r in range(16):
        a(f"v_mov_b32 v{OO+r}, 0")
    for r in range(4):
        a(f"v_mov_b32 v{PP[1]+r}, 0\nv_mov_b32 v{V2[1]+r}, 0")
    a(f"""
    s_mov_b32 s22, 0
    s_mov_b32 s20, {2*CH}
    """)
    a.label(f"{name}_loop")
    for t in range(8):
        sb = t & 1; s = SS[sb]; n = SS[sb ^ 1]
        def E(lo):
            for r in range(lo, lo+4): a(f"v_exp_f32 v{s+r}, v{s+r}")
        def C(lo):
            for r in range(lo, lo+4, 2): a(f"v_cvt_pk_bf16_f32 v{PP[r//8]+(r%8)//2}, v{s+r}, v{s+r+1}")
        if t == 6:
            a("s_barrier")
        a("s_waitcnt lgkmcnt(2)")
        mf(n, K1[sb^1], Q1, "0")
        E(0)
        mf(OO, V2[sb^1], PP[1], vr(OO,16))
        E(4); C(0); C(4)
        mf(n, K2[sb^1], Q2, vr(n,16))
        readK(sb, (t + 2) % 8, t + 2 >= 8)
        E(8)
        a("s_waitcnt lgkmcnt(2)")
        mf(OO, V1[sb], PP[0], vr(OO,16))
        readV(sb ^ 1, (t + 1) % 8, t + 1 >= 8)
        E(12); C(8); C(12)
    a(f"""
    s_add_u32 s22, s22, 1
    s_mov_b32 s30, s33
    s_mov_b32 s33, s34
    s_mov_b32 s34, s20
    s_mov_b32 s20, s30
    """)
    set_addrs(33, 34)
    a(f"s_cmp_lt_u32 s22, {NCH}\ns_cbranch_scc1 {name}_loop")
    mf(OO, V2[1], PP[1], vr(OO,16))
    a("s_waitcnt lgkmcnt(0)\ns_nop 15")
    a("; STAMP 2")
    vl = V.get(); vz = V.get()
    a(f"""
    v_mov_b32 v{t0}, v{OO+8}
    v_mov_b32 v{vl}, v{OO+8}
    s_nop 1
    v_permlane32_swap_b32 v{t0}, v{vl}
    v_mov_b32 v{vz}, 0
    """)
    for r in range(12):
        a(f"v_fma_f32 v{vz}, v{OO+r}, 0, v{vz}")
    a(f"""
    s_cmp_lg_u32 s23, 0
    s_cbranch_scc1 {name}_fin
    s_mov_b32 s30, {f32bits(2.0**60)}
    v_add_f32 v{t1}, v{vz}, v{vl}
    v_cmp_nlt_f32 vcc, v{t1}, s30
    s_cmp_eq_u64 vcc, 0
    s_cbranch_scc1 {name}_noflag
    v_mov_b32 v{t0}, {FLAG}
    v_mov_b32 v{t1}, 1
    ds_write_b32 v{t0}, v{t1}
    s_waitcnt lgkmcnt(0)
    """)
    a.label(f"{name}_noflag")
    a(f"""
    s_barrier
    v_mov_b32 v{t0}, {FLAG}
    ds_read_b32 v{t1}, v{t0}
    s_waitcnt lgkmcnt(0)
    v_readfirstlane_b32 s30, v{t1}
    s_nop 3
    s_cmp_eq_u32 s30, 0
    s_cbranch_scc1 {name}_fin
    v_mov_b32 v{Q2+2}, 0
    v_mov_b32 v{Q2+3}, 0
    v_mov_b32 v{vm}, 0xff7fffff
    s_mov_b32 s22, 0
    s_mov_b32 s33, 0
    """)
    set_addrs(33, 33)
    a.label(f"{name}_maxloop")
    a("s_barrier\ns_barrier")
    for t in range(8):
        readK(0, t, False)
        a("s_waitcnt lgkmcnt(0)")
        smfma(0, 0)
        a("s_nop 15\ns_nop 3")
        max16(0, False)
    a(f"""
    s_add_u32 s22, s22, 1
    s_cmp_lt_u32 s22, {NCH}
    s_cbranch_scc1 {name}_maxloop
    """)
    xhalf_max()
    set_m()
    a("s_mov_b32 s23, 1")
    a("s_barrier\ns_barrier")
    a(f"s_branch {name}_main")
    a.label(f"{name}_fin")
    a("; STAMP 3")
    pk = V.get(2, 2); vo = V.get()
    a(f"""
    v_rcp_f32 v{vl}, v{vl}
    s_lshl_b32 s30, s17, 2
    s_lshr_b32 s31, s18, 1
    s_add_u32 s30, s30, s31
    s_mul_i32 s30, s30, 81920
    s_and_b32 s31, s18, 1
    s_lshl_b32 s31, s31, 9
    s_add_u32 s30, s30, s31
    v_lshlrev_b32 v{vo}, 4, v{vq}
    v_add_u32 v{vo}, s30, v{vo}
    s_mul_i32 s31, s16, 5
    """)
    for grp in range(3):
        a(f"""
        v_add_u32 v{t0}, s31, v{vhh}
        v_add_u32 v{t0}, {2*grp}, v{t0}
        v_lshrrev_b32 v{t1}, 1, v{t0}
        v_lshlrev_b32 v{t1}, 10, v{t1}
        v_and_b32 v{t0}, 1, v{t0}
        v_lshl_add_u32 v{t1}, v{t0}, 3, v{t1}
        v_add_u32 v{t1}, v{t1}, v{vo}
        v_mul_f32 v{t0}, v{OO+4*grp}, v{vl}
        v_mul_f32 v{t2}, v{OO+4*grp+1}, v{vl}
        v_mul_f32 v{t3}, v{OO+4*grp+2}, v{vl}
        v_mul_f32 v{t4}, v{OO+4*grp+3}, v{vl}
        v_cvt_pk_bf16_f32 v{pk}, v{t0}, v{t2}
        v_cvt_pk_bf16_f32 v{pk+1}, v{t3}, v{t4}
        """)
        if grp == 2:
            a("s_mov_b64 exec, s[28:29]")
        a(f"buffer_store_dwordx2 {vr(pk,2)}, v{t1}, s[12:15], 0 offen{' sc1' if FUSE else ''}")
        a("s_nop 1")
    if not FUSE: a(f"s_branch {name}_end")
    a_main = a
    if not FUSE: a = Asm()
    a("s_mov_b64 exec, -1")
    a("s_waitcnt vmcnt(0)")
    a("s_barrier")
    a("; STAMP 7")
    srd(a, 4, P['ws'], SY_BYTES, SY_OFF)
    lw = a.newlabel(name + "_sw"); lp = a.newlabel(name + "_sp"); lq = a.newlabel(name + "_sq")
    a(f"""
    s_cmp_lg_u32 s18, 0
    s_cbranch_scc1 {lw}
    s_lshl_b32 s30, s17, 8
    v_mov_b32 v{t0}, s30
    v_mov_b32 v{t1}, 1
    s_mov_b64 exec, 1
    buffer_atomic_add v{t1}, v{t0}, s[4:7], 0 offen sc1
    s_mov_b32 s31, 0
    """)
    a.label(lp)
    a(f"""
    buffer_load_dword v{t2}, v{t0}, s[4:7], 0 offen sc1
    s_waitcnt vmcnt(0)
    v_readfirstlane_b32 s30, v{t2}
    s_add_u32 s31, s31, 1
    s_cmp_ge_u32 s31, 0x40000
    s_cbranch_scc1 {lq}
    s_cmp_lt_u32 s30, 32
    s_cbranch_scc1 {lp}
    """)
    a.label(lq)
    a("s_mov_b64 exec, -1")
    if os.environ.get("DIAGP"): a("s_mov_b32 s88, s31\ns_add_u32 s88, s88, s92")
    a.label(lw)
    a("s_barrier")
    a("; STAMP 6")
    lwoc = a.newlabel(name + "_wc")
    a(f"s_cmp_lt_u32 s18, 4\ns_cbranch_scc1 {lwoc}")
    srd(a, 8, P['ws'], WPX, WP_OFF)
    a(f"""
    v_mov_b32 v{t0}, 2048
    buffer_load_dword v{t1}, v{t0}, s[4:7], 0 offen sc1
    s_waitcnt vmcnt(0)
    v_readfirstlane_b32 s30, v{t1}
    s_nop 3
    s_cmp_lt_u32 s30, 256
    s_cbranch_scc1 {name}_end
    s_lshr_b32 s30, s2, 3
    s_lshl_b32 s30, s30, 2
    s_add_u32 s30, s30, s18
    s_sub_u32 s30, s30, 4
    s_mul_i32 s30, s30, {70*128}
    s_and_b32 s31, s2, 3
    s_mul_i32 s31, s31, {8960*128}
    s_add_u32 s30, s30, s31
    s_add_u32 s30, s30, {WP_GU}
    v_lshlrev_b32 v{t0}, 7, v2
    buffer_load_dword v{t1}, v{t0}, s[8:11], s30 offen
    s_add_u32 s30, s30, {64*128}
    s_mov_b64 exec, 0x3f
    buffer_load_dword v{t1}, v{t0}, s[8:11], s30 offen
    s_branch {name}_end
    """)
    a.label(lwoc)
    W_ = VAlloc(3, 168)
    w0 = W_.get(); w1 = W_.get(); w2 = W_.get(); w3 = W_.get()
    vq2 = W_.get(); vtok = W_.get(); vcm = W_.get(); vWa = W_.get(); vxo = W_.get()
    XF = [W_.get(4, 4) for _ in range(20)]
    WF = [[W_.get(4, 4) for _ in range(5)] for _ in range(2)]
    ACC = [W_.get(4, 4) for _ in range(5)]
    RES = [W_.get(2, 2) for _ in range(5)]
    a(f"""
    s_lshl_b32 s16, s16, 0
    s_lshr_b32 s30, s16, 3
    s_lshl_b32 s29, s17, 2
    s_add_u32 s29, s29, s30
    s_and_b32 s17, s16, 7                ; cb
    s_mul_i32 s28, s17, 160
    v_lshrrev_b32 v{vq2}, 4, v2          ; q / g
    v_and_b32 v{w0}, 15, v2
    s_lshl_b32 s30, s18, 4
    v_add_u32 v{w0}, s30, v{w0}
    v_lshlrev_b32 v{w1}, 4, v{w0}
    v_lshl_add_u32 v{vxo}, v{vq2}, 10, v{w1}   ; g*1024 + tok*16
    s_mul_i32 s30, s29, 81920
    """)
    for ks in range(20):
        a(f"s_add_u32 s31, s30, {ks*4096}")
        a(f"buffer_load_dwordx4 {vr(XF[ks],4)}, v{vxo}, s[12:15], s31 offen sc1")
    a(f"""
    s_lshl_b32 s30, s29, 6
    v_add_u32 v{vtok}, s30, v{w0}
    v_lshrrev_b32 v{w2}, 1, v{vq2}
    v_lshl_add_u32 v{w1}, v{w2}, 10, v{w1}
    v_and_b32 v{w2}, 1, v{vq2}
    v_lshl_add_u32 v{vcm}, v{w2}, 3, v{w1}
    v_lshrrev_b32 v{w0}, 5, v2
    v_lshlrev_b32 v{w0}, 4, v{w0}
    v_bfe_u32 v{w1}, v2, 4, 1
    v_lshl_add_u32 v{w0}, v{w1}, 2, v{w0}
    v_bfe_u32 v{w1}, v2, 2, 2
    v_add_u32 v{w0}, v{w0}, v{w1}
    v_mul_u32_u24 v{vWa}, 160, v{w0}
    v_and_b32 v{w1}, 3, v2
    v_lshl_add_u32 v{vWa}, v{w1}, 3, v{vWa}
    v_add_u32 v{w3}, {WOL}, v{vWa}
    v_add_u32 v{vWa}, {WOW}, v{vWa}
    """)
    srd(a, 36, P['x'], REG); srd(a, 40, P['ws'], ST_BYTES, ST_OFF); srd(a, 8, P['ws'], REG, H_OFF)
    a(f"v_mul_u32_u24 v{w0}, 1280, v{vtok}\nv_lshl_add_u32 v{w0}, v{vq2}, 3, v{w0}")
    for nt in range(5):
        a(f"buffer_load_dwordx2 {vr(RES[nt],2)}, v{w0}, s[36:39], s28 offen offset:{nt*32}")
    for nt in range(5):
        for r in range(4): a(f"v_mov_b32 v{ACC[nt]+r}, 0")
    def wrd(ks):
        ad = vWa if ks < 19 else w3
        for nt in range(5):
            for jh in range(2):
                a(f"ds_read_b64_tr_b16 {vr(WF[ks&1][nt]+2*jh,2)}, v{ad} offset:{jh*8*160 + nt*32}")
        if ks < 18: a(f"v_add_u32 v{vWa}, 5120, v{vWa}")
    wrd(0)
    for ks in range(20):
        a("s_waitcnt lgkmcnt(0)")
        if ks + 1 < 20: wrd(ks + 1)
        a(f"s_waitcnt vmcnt({19 - ks + 5})")
        for nt in range(5):
            a(f"v_mfma_f32_16x16x32_bf16 {vr(ACC[nt],4)}, {vr(WF[ks&1][nt],4)}, {vr(XF[ks],4)}, {vr(ACC[nt],4)}")
    a("s_waitcnt vmcnt(0)\ns_nop 7")
    pk2 = W_.get(2, 2); ssum = W_.get(); ssq = W_.get(); st2 = W_.get(2, 2)
    a(f"""
    s_mul_i32 s30, s17, {10*1024}
    s_mul_i32 s31, s29, 81920
    s_add_u32 s30, s30, s31
    v_mov_b32 v{ssum}, 0
    v_mov_b32 v{ssq}, 0
    """)
    for nt in range(5):
        acc = ACC[nt]; r = RES[nt]
        a(f"""
        v_lshlrev_b32 v{w1}, 16, v{r}
        v_and_b32 v{w2}, 0xffff0000, v{r}
        v_add_f32 v{acc}, v{acc}, v{w1}
        v_add_f32 v{acc+1}, v{acc+1}, v{w2}
        v_lshlrev_b32 v{w1}, 16, v{r+1}
        v_and_b32 v{w2}, 0xffff0000, v{r+1}
        v_add_f32 v{acc+2}, v{acc+2}, v{w1}
        v_add_f32 v{acc+3}, v{acc+3}, v{w2}
        v_cvt_pk_bf16_f32 v{pk2}, v{acc}, v{acc+1}
        v_cvt_pk_bf16_f32 v{pk2+1}, v{acc+2}, v{acc+3}
        s_add_u32 s31, s30, {nt*2048}
        buffer_store_dwordx2 {vr(pk2,2)}, v{vcm}, s[8:11], s31 offen
        """)
        for h_ in range(2):
            a(f"""
            v_lshlrev_b32 v{w1}, 16, v{pk2+h_}
            v_and_b32 v{w2}, 0xffff0000, v{pk2+h_}
            v_add_f32 v{ssum}, v{ssum}, v{w1}
            v_fmac_f32 v{ssq}, v{w1}, v{w1}
            v_add_f32 v{ssum}, v{ssum}, v{w2}
            v_fmac_f32 v{ssq}, v{w2}, v{w2}
            """)
    for reg in (ssum, ssq):
        a(f"""
        v_mov_b32 v{w0}, v{reg}
        s_nop 1
        v_permlane32_swap_b32 v{w0}, v{reg}
        s_nop 1
        v_add_f32 v{reg}, v{reg}, v{w0}
        v_mov_b32 v{w0}, v{reg}
        s_nop 1
        v_permlane16_swap_b32 v{w0}, v{reg}
        s_nop 1
        v_add_f32 v{reg}, v{reg}, v{w0}
        """)
    a(f"""
    v_mov_b32 v{st2}, v{ssum}
    v_mov_b32 v{st2+1}, v{ssq}
    v_lshlrev_b32 v{w0}, 6, v{vtok}
    s_lshl_b32 s30, s17, 3
    s_mov_b64 exec, 0xffff
    buffer_store_dwordx2 {vr(st2,2)}, v{w0}, s[40:43], s30 offen
    s_branch {name}_end
    """)
    a = a_main
    a.label(f"{name}_svc")
    S = VAlloc(3)
    vKlo = S.get(); vKhi = S.get(); vV = S.get(); u0 = S.get(); u1 = S.get(); u2 = S.get()
    a(f"""
    v_lshlrev_b32 v{vKlo}, 4, v2
    v_lshrrev_b32 v{u0}, 5, v2
    v_mul_u32_u24 v{u0}, 40960, v{u0}
    v_and_b32 v{u1}, 31, v2
    v_lshl_add_u32 v{vKhi}, v{u1}, 4, v{u0}
    v_mul_u32_u24 v{u0}, 49, v2
    v_lshrrev_b32 v{u0}, 10, v{u0}
    v_mul_u32_u24 v{u1}, 21, v{u0}
    v_sub_u32 v{u1}, v2, v{u1}           ; row
    v_cmp_gt_u32 vcc, 20, v{u1}
    v_cmp_gt_u32 s[30:31], 63, v2
    v_mul_u32_u24 v{u0}, 10240, v{u0}
    v_lshl_add_u32 v{vV}, v{u1}, 4, v{u0}
    s_and_b64 s[56:57], vcc, s[30:31]
    s_mul_i32 s50, s16, 5
    s_add_u32 s50, s50, 1
    s_lshr_b32 s50, s50, 1
    s_lshl_b32 s50, s50, 9               ; cA*512
    s_and_b32 s58, s16, 1
    s_mul_i32 s58, s58, {-(1024+512) & 0xffffffff}
    s_add_u32 s58, s58, 1024
    s_add_u32 s58, s58, s50              ; cR*512
    s_mul_i32 s51, s16, 320
    s_add_u32 s51, s51, {REG}
    s_waitcnt lgkmcnt(0)
    """)
    a("; STAMP 4")
    srd(a, 4, P['ws'], 2*REG, KF_OFF)
    a("s_sub_u32 s19, s18, 8")
    def issue_chunk(buf_sg, cidx):
        lv_ = a.newlabel(name + "_iv"); le_ = a.newlabel(name + "_ie"); l5 = a.newlabel(name + "_i5")
        a(f"s_mul_i32 s21, {cidx}, {CSTR}" if not cidx.isdigit() else f"s_mov_b32 s21, {int(cidx)*CSTR}")
        a(f"s_cmp_ge_u32 s19, 2\ns_cbranch_scc1 {lv_}")
        a(f"""
        s_mul_i32 s30, s19, {4*40960}
        s_add_u32 s30, s30, s21
        s_add_u32 s30, s30, s50
        s_lshl_b32 s32, s19, 12
        s_add_u32 s32, s32, s{buf_sg}
        """)
        for t in range(4):
            a(f"s_add_u32 m0, s32, {t*1024}")
            a(f"s_add_u32 s31, s30, {t*40960}")
            a(f"buffer_load_dwordx4 v{vKlo}, s[4:7], s31 offen lds")
        a(f"""
        s_mul_i32 s30, s19, {4*40960}
        s_add_u32 s30, s30, s21
        s_add_u32 s30, s30, s58
        s_lshl_b32 s32, s19, 11
        s_add_u32 s32, s32, s{buf_sg}
        """)
        for i in range(2):
            a(f"s_add_u32 m0, s32, {KH + i*1024}")
            a(f"s_add_u32 s31, s30, {i*2*40960}")
            a(f"buffer_load_dwordx4 v{vKhi}, s[4:7], s31 offen lds")
        a(f"s_branch {le_}")
        a.label(lv_)
        a(f"""
        s_sub_u32 s32, s19, 2
        s_mul_i32 s30, s32, {6*3*10240}
        s_add_u32 s30, s30, s21
        s_add_u32 s30, s30, s51
        s_mul_i32 s32, s32, {6*1008}
        s_add_u32 s32, s32, s{buf_sg}
        s_mov_b64 exec, s[56:57]
        """)
        for jv in range(6):
            if jv == 5:
                a(f"s_cmp_eq_u32 s19, 3\ns_cbranch_scc1 {l5}")
            a(f"s_add_u32 m0, s32, {VOFF + jv*1008}")
            a(f"s_add_u32 s31, s30, {jv*3*10240}")
            a(f"buffer_load_dwordx4 v{vV}, s[4:7], s31 offen lds")
        a.label(l5)
        a("s_mov_b64 exec, -1")
        a.label(le_)
    a("s_mov_b32 s20, 0")
    issue_chunk(20, "0")
    a("; STAMP 5")
    rp_v = [S.get(), S.get()]; rp_c = [S.get(), S.get()]
    rp_row = S.get(); rp_ra = S.get(); rp_f = S.get(); rp_t = S.get(); rp_o = S.get()
    RF = S.get(28, 4)
    a(f"""
    v_lshrrev_b32 v{rp_row}, 4, v2
    v_and_b32 v{rp_t}, 15, v2
    v_lshlrev_b32 v{rp_c[0]}, 1, v{rp_row}
    v_xor_b32 v{rp_c[0]}, v{rp_c[0]}, v{rp_t}
    v_xor_b32 v{rp_c[1]}, 8, v{rp_c[0]}
    v_lshrrev_b32 v{rp_t}, 4, v2
    v_bfe_u32 v{rp_f}, v2, 2, 2
    v_lshl_add_u32 v{rp_ra}, v{rp_t}, 3, v{rp_f}
    v_lshlrev_b32 v{rp_ra}, 8, v{rp_ra}
    v_and_b32 v{rp_o}, 3, v2
    v_lshl_add_u32 v{rp_ra}, v{rp_o}, 3, v{rp_ra}
    s_lshl_b32 s48, s19, 13
    s_add_u32 s48, s48, {RPK}
    v_add_u32 v{rp_ra}, s48, v{rp_ra}
    v_and_b32 v{rp_t}, 1, v{rp_t}
    v_lshl_or_b32 v{rp_f}, v{rp_t}, 2, v{rp_f}
    v_lshlrev_b32 v{rp_f}, 5, v{rp_f}
    v_lshlrev_b32 v{rp_o}, 4, v2
    """)
    srd(a, 40, P['ws'], WPX, WP_OFF)
    _a_keep = a
    if not FUSE: a = Asm()
    vwo = [S.get() for _ in range(5)]
    for i in range(5):
        a(f"""
        v_add_u32 v{u0}, {i*64}, v2
        v_mul_u32_u24 v{u1}, 104858, v{u0}
        v_lshrrev_b32 v{u1}, 20, v{u1}
        v_mul_u32_u24 v{u2}, 10, v{u1}
        v_sub_u32 v{u2}, v{u0}, v{u2}
        v_and_b32 v{rp_t}, 0x33, v{u1}
        v_bfe_u32 v{u0}, v{u1}, 2, 1
        v_lshl_or_b32 v{rp_t}, v{u0}, 3, v{rp_t}
        v_bfe_u32 v{u0}, v{u1}, 3, 1
        v_lshl_or_b32 v{rp_t}, v{u0}, 2, v{rp_t}
        v_mul_u32_u24 v{rp_t}, 1280, v{rp_t}
        v_lshl_add_u32 v{vwo[i]}, v{u2}, 4, v{rp_t}
        """)
    srd(a, 60, P['wo'], DM*DM*2)
    a("s_and_b32 s59, s16, 7\ns_mul_i32 s59, s59, 160")
    a = _a_keep
    def wo_group(gsg, ldsbase_sg):
        a(f"s_mul_i32 s30, s{gsg}, {32*1280}\ns_add_u32 s30, s30, s59")
        for i in range(5):
            a(f"s_add_u32 m0, s{ldsbase_sg}, {i*1024}\ns_nop 0")
            a(f"buffer_load_dwordx4 v{vwo[i]}, s[60:63], s30 offen lds")
    def rp_decode(usg):
        l_gu = a.newlabel(name + "_rg"); l_wd = a.newlabel(name + "_rd"); l_e = a.newlabel(name + "_re")
        a(f"""
        s_cmp_ge_u32 s{usg}, 800
        s_cbranch_scc1 {l_wd}
        s_cmp_ge_u32 s{usg}, 160
        s_cbranch_scc1 {l_gu}
        s_mul_i32 s30, s{usg}, 3277
        s_lshr_b32 s30, s30, 16
        s_mul_i32 s31, s30, 20
        s_sub_u32 s31, s{usg}, s31
        s_mul_i32 s32, s30, 160
        s_mul_i32 s44, s31, {32*1280}
        s_add_u32 s44, s44, s32
        s_mov_b32 s45, 1280
        s_mul_i32 s46, s{usg}, 5120
        s_add_u32 s46, s46, {WP_WO}
        s_mov_b32 s47, 5
        s_mov_b32 s36, s{P['wo']}
        s_mov_b32 s37, s{P['wo']+1}
        s_mov_b32 s38, {DM*DM*2}
        s_branch {l_e}
        """)
        a.label(l_gu)
        a(f"""
        s_sub_u32 s49, s{usg}, 160
        s_mul_i32 s30, s49, 1639
        s_lshr_b32 s30, s30, 16
        s_mul_i32 s31, s30, 40
        s_sub_u32 s31, s49, s31
        s_mul_i32 s32, s30, 224
        s_lshr_b32 s49, s31, 1
        s_mul_i32 s44, s49, {32*3456}
        s_add_u32 s44, s44, s32
        s_mov_b32 s45, 3456
        s_mul_i32 s46, s30, 20
        s_add_u32 s46, s46, s49
        s_mul_i32 s46, s46, 14
        s_and_b32 s31, s31, 1
        s_mul_i32 s30, s31, 7
        s_add_u32 s46, s46, s30
        s_lshl_b32 s46, s46, 10
        s_add_u32 s46, s46, {WP_GU}
        s_mov_b32 s47, 7
        s_cmp_eq_u32 s31, 0
        s_cselect_b32 s36, s{P['wg']}, s{P['wu']}
        s_cselect_b32 s37, s{P['wg']+1}, s{P['wu']+1}
        s_mov_b32 s38, {DM*FF*2}
        s_branch {l_e}
        """)
        a.label(l_wd)
        a(f"""
        s_sub_u32 s49, s{usg}, 800
        s_mul_i32 s30, s49, 1214
        s_lshr_b32 s30, s30, 16
        s_mul_i32 s31, s30, 54
        s_sub_u32 s31, s49, s31
        s_mul_i32 s32, s30, 160
        s_mul_i32 s44, s31, {32*1280}
        s_add_u32 s44, s44, s32
        s_mov_b32 s45, 1280
        s_mul_i32 s46, s49, 5120
        s_add_u32 s46, s46, {WP_WD}
        s_mov_b32 s47, 5
        s_mov_b32 s36, s{P['wd']}
        s_mov_b32 s37, s{P['wd']+1}
        s_mov_b32 s38, {FF*DM*2}
        """)
        a.label(l_e)
        a("s_mov_b32 s39, 0x00020000")
    def rp_A(usg):
        rp_decode(usg)
        a(f"""
        s_lshl_b32 s49, s47, 1
        v_mul_lo_u32 v{rp_t}, v{rp_row}, s45
        v_lshl_add_u32 v{rp_v[0]}, v{rp_c[0]}, 4, v{rp_t}
        v_lshl_add_u32 v{rp_v[1]}, v{rp_c[1]}, 4, v{rp_t}
        v_cmp_gt_u32 s[54:55], s49, v{rp_c[0]}
        v_cmp_gt_u32 s[26:27], s49, v{rp_c[1]}
        s_lshl_b32 s31, s45, 2
        s_nop 1
        """)
        for i in range(8):
            var = (i >> 1) & 1
            a(f"s_add_u32 m0, s48, {i*1024}")
            a(f"s_mov_b64 exec, {['s[54:55]', 's[26:27]'][var]}")
            a(f"buffer_load_dwordx4 v{rp_v[var]}, s[36:39], s44 offen lds")
            a(f"s_add_u32 s44, s44, s31")
        a("s_mov_b64 exec, -1")
    def rp_B():
        for nt in range(7):
            a(f"v_xor_b32 v{rp_t}, {nt*32}, v{rp_f}")
            a(f"v_add_u32 v{rp_t}, v{rp_t}, v{rp_ra}")
            a(f"ds_read_b64_tr_b16 {vr(RF+4*nt,2)}, v{rp_t}")
            a(f"ds_read_b64_tr_b16 {vr(RF+4*nt+2,2)}, v{rp_t} offset:1024")
        a("s_waitcnt lgkmcnt(0)")
        lab = a.newlabel(name + "_r5")
        for nt in range(7):
            if nt == 5:
                a(f"s_cmp_lt_u32 s47, 7\ns_cbranch_scc1 {lab}")
            a(f"s_add_u32 s30, s46, {nt*1024}")
            a(f"buffer_store_dwordx4 {vr(RF+4*nt,4)}, v{rp_o}, s[40:43], s30 offen sc1")
        a.label(lab)
    a(f"""
    s_mov_b32 s23, 0                     ; mode
    s_lshl_b32 s53, s2, 2
    s_add_u32 s53, s53, s19
    s_mov_b32 s52, 0
    s_waitcnt vmcnt(0)
    ; STAMP 6
    s_barrier
    s_mov_b32 s20, {CH}
    """)
    issue_chunk(20, "1")
    a.label(f"{name}_smain")
    a(f"s_mov_b32 s22, 0\ns_mov_b32 s20, {2*CH}")
    a.label(f"{name}_sloop")
    lplain = a.newlabel(name + "_pl"); lbar = a.newlabel(name + "_br"); l1 = a.newlabel(name + "_c1"); l2 = a.newlabel(name + "_c2"); l1b = a.newlabel(name + "_c1b")
    if os.environ.get("NOREPACK"): a(f"s_branch {lplain}")
    a(f"""
    s_cmp_lg_u32 s23, 0
    s_cbranch_scc1 {lplain}
    s_cmp_gt_u32 s22, 2
    s_cbranch_scc1 {lplain}
    s_cmp_eq_u32 s22, 1
    s_cbranch_scc1 {l1}
    s_cmp_eq_u32 s22, 2
    s_cbranch_scc1 {l2}
    """)
    rp_A(53)
    a(f"s_add_u32 s53, s53, 1024\ns_waitcnt vmcnt(8)\ns_branch {lbar}")
    a.label(l1)
    a("s_waitcnt vmcnt(5)")
    rp_B()
    a(f"s_cmp_ge_u32 s53, 1232\ns_cbranch_scc1 {l1b}")
    rp_A(53)
    a(f"s_waitcnt vmcnt(13)\ns_branch {lbar}")
    a.label(l1b)
    a(f"s_waitcnt vmcnt(5)\ns_branch {lbar}")
    a.label(l2)
    a(f"s_cmp_ge_u32 s53, 1232\ns_cbranch_scc1 {lplain}")
    a("s_waitcnt vmcnt(5)")
    rp_B()
    a(f"s_waitcnt vmcnt(5)\ns_branch {lbar}")
    a.label(lplain)
    a("s_waitcnt vmcnt(0)")
    a.label(lbar)
    a("s_barrier")
    lnd = a.newlabel(name + "_sk")
    a(f"s_cmp_ge_u32 s22, {NCH-2}\ns_cbranch_scc1 {lnd}")
    a("s_add_u32 s25, s22, 2")
    issue_chunk(20, "s25")
    a.label(lnd)
    _a_keep = a
    if not FUSE: a = Asm()
    lwo = a.newlabel(name + "_wo"); lsg = a.newlabel(name + "_sg")
    a(f"""
    s_cmp_lg_u32 s23, 0
    s_cbranch_scc1 {lwo}
    s_cmp_lg_u32 s22, 3
    s_cbranch_scc1 {lsg}
    s_cmp_lg_u32 s19, 0
    s_cbranch_scc1 {lsg}
    s_add_u32 s44, s{P['ws']}, {SY_OFF}
    s_addc_u32 s45, s{P['ws']+1}, 0
    s_mov_b32 s46, {SY_BYTES}
    s_mov_b32 s47, 0x00020000
    v_mov_b32 v{u0}, 2048
    v_mov_b32 v{u1}, 1
    s_mov_b64 exec, 1
    buffer_atomic_add v{u1}, v{u0}, s[44:47], 0 offen sc1
    s_mov_b64 exec, -1
    """)
    a.label(lsg)
    a(f"""
    s_cmp_lt_u32 s22, 3
    s_cbranch_scc1 {lwo}
    s_sub_u32 s25, s22, 3
    s_lshl_b32 s25, s25, 2
    s_add_u32 s25, s25, s19              ; group
    s_cmp_ge_u32 s25, 19
    s_cbranch_scc1 {lwo}
    s_mul_i32 s32, s25, 5120
    s_add_u32 s32, s32, {WOW}
    """)
    wo_group(25, 32)
    a.label(lwo)
    a = _a_keep
    a(f"""
    s_add_u32 s20, s20, {CH}
    s_cmp_ge_u32 s20, {3*CH}
    s_cselect_b32 s30, {3*CH}, 0
    s_sub_u32 s20, s20, s30
    s_add_u32 s22, s22, 1
    s_cmp_lt_u32 s22, {NCH}
    s_cbranch_scc1 {name}_sloop
    s_cmp_lg_u32 s23, 0
    s_cbranch_scc1 {name}_sfin
    s_barrier
    v_mov_b32 v{u0}, {FLAG}
    ds_read_b32 v{u1}, v{u0}
    s_waitcnt lgkmcnt(0)
    v_readfirstlane_b32 s30, v{u1}
    s_nop 3
    s_cmp_eq_u32 s30, 0
    s_cbranch_scc1 {name}_sfin
    s_mov_b32 s22, 0
    s_mov_b32 s20, 0
    """)
    a.label(f"{name}_smax")
    a("s_barrier")
    a("s_mov_b32 s25, s22")
    issue_chunk(20, "s25")
    a("s_waitcnt vmcnt(0)\ns_barrier")
    a(f"s_add_u32 s22, s22, 1\ns_cmp_lt_u32 s22, {NCH}\ns_cbranch_scc1 {name}_smax")
    a("s_barrier")
    a("s_mov_b32 s20, 0")
    issue_chunk(20, "0")
    a(f"s_mov_b32 s20, {CH}")
    issue_chunk(20, "1")
    a("s_waitcnt vmcnt(0)\ns_barrier\ns_mov_b32 s23, 1")
    a(f"s_branch {name}_smain")
    a.label(f"{name}_sfin")
    _a_keep = a
    if not FUSE: a = Asm()
    a("s_waitcnt vmcnt(0)\ns_barrier")
    lsf = a.newlabel(name + "_sf")
    a(f"s_cmp_lg_u32 s19, 3\ns_cbranch_scc1 {lsf}")
    a(f"s_mov_b32 s25, 19\ns_mov_b32 s32, {WOL}")
    wo_group(25, 32)
    a("s_waitcnt vmcnt(0)")
    a.label(lsf)
    a("s_barrier")
    a = _a_keep
    a.label(f"{name}_end")
    a("s_endpgm")
    return a.text(), max(V.hi, S.hi, W_.hi if FUSE else 0), (WOW + 19*5120) if FUSE else (RPK + 4*8192)
```

```python
from common import *
import os
SCX = '' if os.environ.get('NOSC1') else ' sc1'
SCX2 = ' sc1' if os.environ.get('SC1X2') else ''
import os


def gu2_compute(a, name, K, D, STG, XB):
    V = VAlloc(3)
    t0 = V.get(); t1 = V.get(); t2 = V.get(); t3 = V.get()
    lX0 = V.get(); lX1 = V.get(); lWa = V.get(); lWs = V.get()
    aX0 = V.get(); aX1 = V.get(); aWa = V.get(); aWs = V.get()
    a(f"""
    s_lshr_b32 s19, s18, 1               ; wm
    s_and_b32 s20, s18, 1                ; wn
    v_and_b32 v{t0}, 15, v2              ; tok
    v_lshrrev_b32 v{t1}, 4, v2           ; g
    v_lshlrev_b32 v{t2}, 11, v{t1}
    v_lshl_add_u32 v{t2}, v{t0}, 4, v{t2}
    s_lshl_b32 s30, s19, 10
    v_add_u32 v{t2}, s30, v{t2}
    s_lshl_b32 s21, s20, 9               ; wn*512
    s_sub_u32 s22, 512, s21              ; (1-wn)*512
    v_add_u32 v{lX0}, s21, v{t2}
    v_add_u32 v{lX1}, s22, v{t2}
    v_lshlrev_b32 v{lWs}, 4, v2
    v_add_u32 v{lWs}, {XB}, v{lWs}
    s_lshl_b32 s30, s20, 12
    v_add_u32 v{lWa}, s30, v{lWs}
    """)
    XF = [[V.get(4, 4) for s_ in range(4)] for b in range(2)]
    WIN = 4
    WF = [V.get(4, 4) for _ in range(WIN)]
    AG = [[V.get(4, 4) for s_ in range(4)] for j in range(3)]
    AU = [[V.get(4, 4) for s_ in range(4)] for j in range(3)]
    SG = [V.get(4, 4) for s_ in range(2)]; SU = [V.get(4, 4) for s_ in range(2)]
    accs = [x for r in AG + AU for x in r] + SG + SU
    for x in accs:
        for r in range(4): a(f"v_mov_b32 v{x+r}, 0")
    CSg = [V.get(4, 4) for _ in range(4)]; CSu = [V.get(4, 4) for _ in range(4)]
    STT = [V.get(4, 4) for _ in range(4)]
    vq = V.get(); vtok = V.get()
    a(f"""
    v_lshrrev_b32 v{vq}, 4, v2
    v_and_b32 v{vtok}, 15, v2
    s_lshl_b32 s29, s16, 1
    s_add_u32 s29, s29, s19
    s_lshl_b32 s30, s29, 6
    v_add_u32 v{vtok}, s30, v{vtok}
    s_waitcnt lgkmcnt(0)
    """)
    def epi_loads():
        srd(a, 12, P['ws'], ACT_BYTES, ACT_OFF); srd(a, 36, P['ws'], CS_BYTES, CS_OFF); srd(a, 40, P['ws'], ST_BYTES, ST_OFF)
        a(f"""
        v_lshlrev_b32 v{t0}, 4, v{vq}
        s_mul_i32 s30, s17, {112*4}
        s_lshl_b32 s31, s20, 8
        s_add_u32 s31, s31, s30
        """)
        for j in range(3):
            a(f"buffer_load_dwordx4 {vr(CSg[j],4)}, v{t0}, s[36:39], s31 offen offset:{j*64}")
        a(f"buffer_load_dwordx4 {vr(CSg[3],4)}, v{t0}, s[36:39], s30 offen offset:192")
        a(f"s_add_u32 s31, s31, {FF*4}\ns_add_u32 s30, s30, {FF*4}")
        for j in range(3):
            a(f"buffer_load_dwordx4 {vr(CSu[j],4)}, v{t0}, s[36:39], s31 offen offset:{j*64}")
        a(f"buffer_load_dwordx4 {vr(CSu[3],4)}, v{t0}, s[36:39], s30 offen offset:192")
        a(f"""
        v_lshlrev_b32 v{t1}, 6, v{vtok}
        v_lshl_add_u32 v{t1}, v{vq}, 4, v{t1}
        s_lshl_b32 s30, s20, 11
        s_sub_u32 s31, 2048, s30
        """)
        for s_ in range(4):
            a(f"buffer_load_dwordx4 {vr(STT[s_],4)}, v{t1}, s[40:43], s{30 if s_ < 2 else 31} offen offset:{(s_ & 1)*1024}")
    q = LdsQ(a)
    JS = 8
    def xread(b):
        for s_ in range(4):
            q.issue(('x', b), f"ds_read_b128 {vr(XF[b][s_],4)}, v{aX0 if s_ < 2 else aX1} offset:{(s_ & 1)*256}")
    def wread(u):
        j = u % JS
        if j < 3: ad, off = aWa, j*1024
        elif j < 6: ad, off = aWa, 7168 + (j-3)*1024
        elif j == 6: ad, off = aWs, 3072
        else: ad, off = aWs, 10240
        q.issue(('w', u), f"ds_read_b128 {vr(WF[u % WIN],4)}, v{ad} offset:{off}")
    def set_addr():
        a(f"v_add_u32 v{aX0}, s45, v{lX0}\nv_add_u32 v{aX1}, s45, v{lX1}\nv_add_u32 v{aWa}, s45, v{lWa}\nv_add_u32 v{aWs}, s45, v{lWs}")
    def job(u):
        b, j = divmod(u, JS)
        q.need({('w', u), ('x', b)})
        if j < 3: tgt = AG[j]
        elif j < 6: tgt = AU[j-3]
        elif j == 6: tgt = SG
        else: tgt = SU
        for s_, acc in enumerate(tgt):
            if os.environ.get("NOMFMA"): continue
            a(f"v_mfma_f32_16x16x32_bf16 {vr(acc,4)}, {vr(WF[u % WIN],4)}, {vr(XF[b][s_],4)}, {vr(acc,4)}")
    def enter(check_exit):
        if check_exit:
            a(f"s_add_u32 s49, s49, 1")
            a(f"s_cmp_ge_u32 s49, {K//64}\ns_cbranch_scc1 {name}_tail")
        a(f"""
        s_add_u32 s45, s45, {STG}
        s_cmp_ge_u32 s45, {D*STG}
        s_cselect_b32 s30, {D*STG}, 0
        s_sub_u32 s45, s45, s30
        s_barrier
        """)
        set_addr()
    a("s_mov_b32 s49, 0\ns_mov_b32 s45, 0")
    a("; STAMP 0")
    a("s_barrier")
    a("; STAMP 1")
    set_addr()
    xread(0)
    for u in range(WIN): wread(u)
    epi_loads()
    a.label(f"{name}_loop")
    qstate = list(q.q)
    for u in range(2*JS):
        if u == 2*JS - WIN:
            enter(True); xread(0)
        if u == JS - WIN:
            enter(False); xread(1)
        job(u)
        wread((u + WIN) % (2*JS))
    assert q.q == qstate, (q.q, qstate)
    a(f"s_branch {name}_loop")
    a.label(f"{name}_tail")
    a("; STAMP 2")
    a("s_waitcnt lgkmcnt(0)")
    q.drain()
    for u in range(2*JS - WIN, 2*JS): job(u)
    a("s_waitcnt vmcnt(0)")
    E = VAlloc(XF[0][0], WF[-1] + 4)
    mu = [E.get(2, 2) for _ in range(4)]; ag = [E.get(2, 2) for _ in range(4)]
    pk = E.get(4, 4); w = E.get(4, 2); e = E.get(4, 2); one2 = E.get(2, 2); vo = E.get()
    a("s_nop 7")
    def red_q(reg):
        a(f"""
        v_mov_b32 v{t0}, v{reg}
        s_nop 1
        v_permlane32_swap_b32 v{t0}, v{reg}
        s_nop 1
        v_add_f32 v{reg}, v{reg}, v{t0}
        v_mov_b32 v{t0}, v{reg}
        s_nop 1
        v_permlane16_swap_b32 v{t0}, v{reg}
        s_nop 1
        v_add_f32 v{reg}, v{reg}, v{t0}
        """)
    for s_ in range(4):
        st = STT[s_]
        a(f"v_add_f32 v{st}, v{st}, v{st+2}\nv_add_f32 v{st+1}, v{st+1}, v{st+3}")
        red_q(st); red_q(st+1)
        a(f"""
        s_mov_b32 s30, {f32bits(1.0/DM)}
        v_mul_f32 v{mu[s_]}, s30, v{st}
        v_mul_f32 v{st+1}, s30, v{st+1}
        v_fma_f32 v{st+1}, -v{mu[s_]}, v{mu[s_]}, v{st+1}
        v_max_f32 v{st+1}, 0, v{st+1}
        v_add_f32 v{st+1}, {f32bits(1e-5)}, v{st+1}
        v_rsq_f32 v{st+1}, v{st+1}
        v_sub_f32 v{mu[s_]}, 0, v{mu[s_]}
        v_mul_f32 v{ag[s_]}, {f32bits(-math.log2(math.e))}, v{st+1}
        """)
    a("; STAMP 3")
    a(f"""
    v_mov_b32 v{one2}, 1.0
    v_mov_b32 v{one2+1}, 1.0
    v_and_b32 v{t0}, 15, v2
    v_and_b32 v{t1}, 1, v{vq}
    v_lshl_add_u32 v{t0}, v{t1}, 4, v{t0}
    v_lshlrev_b32 v{t0}, 4, v{t0}
    v_lshrrev_b32 v{t1}, 1, v{vq}
    v_lshl_add_u32 v{vo}, v{t1}, 10, v{t0}
    s_mul_i32 s30, s17, {14*1024}
    s_mul_i32 s31, s29, 221184
    s_add_u32 s30, s30, s31
    s_lshl_b32 s31, s20, 13
    s_add_u32 s31, s31, s30
    """)
    def out_pair(g0, g1, u0, u1, cg, cu, s0, soff_expr):
        for k_, (g, u_, s_) in enumerate(((g0, u0, s0), (g1, u1, s0+1))):
            for r in (0, 2): a(f"v_pk_fma_f32 {vr(g+r,2)}, {vr(cg+r,2)}, {vr(mu[s_],2)}, {vr(g+r,2)} op_sel_hi:[1,0,1]")
            for r in (0, 2): a(f"v_pk_mul_f32 {vr(w+r,2)}, {vr(g+r,2)}, {vr(ag[s_],2)} op_sel_hi:[1,0]")
            for r in range(4): a(f"v_exp_f32 v{e+r}, v{w+r}")
            for r in (0, 2): a(f"v_pk_fma_f32 {vr(u_+r,2)}, {vr(cu+r,2)}, {vr(mu[s_],2)}, {vr(u_+r,2)} op_sel_hi:[1,0,1]")
            for r in (0, 2): a(f"v_pk_add_f32 {vr(e+r,2)}, {vr(e+r,2)}, {vr(one2,2)}")
            for r in range(4): a(f"v_rcp_f32 v{e+r}, v{e+r}")
            for r in (0, 2): a(f"v_pk_mul_f32 {vr(w+r,2)}, {vr(w+r,2)}, {vr(u_+r,2)}")
            for r in (0, 2): a(f"v_pk_mul_f32 {vr(w+r,2)}, {vr(w+r,2)}, {vr(e+r,2)}")
            a(f"v_cvt_pk_bf16_f32 v{pk+2*k_}, v{w}, v{w+1}")
            a(f"v_cvt_pk_bf16_f32 v{pk+2*k_+1}, v{w+2}, v{w+3}")
        a("s_nop 1")
        a(f"v_permlane16_swap_b32 v{pk}, v{pk+2}")
        a(f"v_permlane16_swap_b32 v{pk+1}, v{pk+3}")
        a(soff_expr)
        a(f"buffer_store_dwordx4 {vr(pk,4)}, v{vo}, s[12:15], s33 offen{SCX}")
        a("s_nop 1")
    lsk = a.newlabel(name + "_o")
    a(f"s_cmp_eq_u32 s17, 15\ns_cselect_b32 s34, 1, 0\ns_and_b32 s30, s34, s20\ns_cmp_lg_u32 s30, 0\ns_cbranch_scc1 {name}_end")
    a(f"s_mul_i32 s30, s17, {14*1024}\ns_mul_i32 s32, s29, 221184\ns_add_u32 s30, s30, s32")
    for j in range(3):
        out_pair(AG[j][0], AG[j][1], AU[j][0], AU[j][1], CSg[j], CSu[j], 0, f"s_add_u32 s33, s31, s21\ns_add_u32 s33, s33, {j*2048}")
        out_pair(AG[j][2], AG[j][3], AU[j][2], AU[j][3], CSg[j], CSu[j], 2, f"s_add_u32 s33, s31, s22\ns_add_u32 s33, s33, {j*2048}")
    a(f"s_cmp_lg_u32 s34, 0\ns_cbranch_scc1 {name}_end")
    out_pair(SG[0], SG[1], SU[0], SU[1], CSg[3], CSu[3], 0, f"s_add_u32 s33, s30, s21\ns_add_u32 s33, s33, {3*2048}")
    a(f"s_branch {name}_end")
    return V.hi

def k_gemm(name, kind):
    a = Asm()
    if kind == 'wo':
        BM, NT, NREG, K, D, G, wsec = 64, 5, 1, 640, 8, 2, WP_WO
        xoff, xbytes = O_OFF, REG
    elif kind == 'down':
        BM, NT, NREG, K, D, G, wsec = 64, 5, 1, 1728, 8, 2, WP_WD
        xoff, xbytes = ACT_OFF, ACT_BYTES
    else:
        BM, NT, NREG, K, D, G, wsec = 128, 7, 2, 640, 7, 1, WP_GU
        xoff, xbytes = H_OFF, REG
    NC = NT*16
    XTBS = (K//8)*1024
    HTBS = 81920; ATBS = 221184
    MT = BM // 64; NTT = NT * NREG
    XB = G * 4 * BM * 16; WB = G * NTT * 1024
    STG = XB + WB
    NST = K // (32*G)
    NXT = XB // 1024
    NXI = NXT // 4
    NWT = G * NTT
    WIN = 4 if kind == 'gu' else 5
    BP = 2 if (kind == 'gu' and G == 1 and os.environ.get('BP2')) else 1
    entry(a, name)
    sh = 2 if kind == 'gu' else 1
    a(f"""
    s_and_b32 s35, s2, 7                 ; xcd
    s_lshr_b32 s31, s2, 3                ; idx
    s_and_b32 s32, s31, 7
    s_lshr_b32 s33, s31, 3
    s_lshr_b32 s34, s35, {sh}
    s_lshl_b32 s34, s34, 3
    s_add_u32 s16, s34, s32              ; rb
    s_and_b32 s34, s35, {(1<<sh)-1}
    s_lshl_b32 s34, s34, 2
    s_add_u32 s17, s34, s33              ; cb
    s_mul_i32 s28, s17, {NC*2}
    s_cmp_ge_u32 s18, 4
    s_cbranch_scc1 {name}_loader
    """)
    GU2 = (kind == 'gu') and bool(os.environ.get("GU2"))
    a_main = a
    if GU2:
        gu2_hi = gu2_compute(a, name, K, D, STG, XB)
        a = Asm()
    V = VAlloc(3)
    t0 = V.get(); t1 = V.get(); t2 = V.get(); t3 = V.get()
    vXl = V.get(); vWl = V.get(); vXa = V.get(); vWa = V.get()
    a(f"""
    v_and_b32 v{t0}, 15, v2              ; tok
    v_lshrrev_b32 v{t1}, 4, v2           ; g
    v_mul_u32_u24 v{vXl}, {BM*16}, v{t1}
    v_lshl_add_u32 v{vXl}, v{t0}, 4, v{vXl}
    s_mul_i32 s30, s18, {16*MT*16}
    v_add_u32 v{vXl}, s30, v{vXl}
    v_lshlrev_b32 v{vWl}, 4, v2
    v_add_u32 v{vWl}, {XB}, v{vWl}
    """)
    XF = [[V.get(4, 4) for mt in range(MT)] for b in range(2)]
    WF = [V.get(4, 4) for _ in range(WIN)]
    ACC = [[V.get(4, 4) for mt in range(MT)] for nt in range(NTT)]
    for nt in range(NTT):
        for mt in range(MT):
            for r in range(4):
                a(f"v_mov_b32 v{ACC[nt][mt]+r}, 0")
    vq = V.get(); vtok = V.get(); vcm = V.get()
    a(f"""
    v_lshrrev_b32 v{vq}, 4, v2           ; q
    v_and_b32 v{vtok}, 15, v2
    s_mul_i32 s30, s16, {BM}
    s_mul_i32 s31, s18, {16*MT}
    s_add_u32 s30, s30, s31
    v_add_u32 v{vtok}, s30, v{vtok}
    s_lshr_b32 s29, s30, 6
    v_and_b32 v{t0}, 63, v{vtok}
    v_lshlrev_b32 v{t0}, 4, v{t0}
    v_lshrrev_b32 v{t1}, 1, v{vq}
    v_lshl_add_u32 v{t0}, v{t1}, 10, v{t0}
    v_and_b32 v{t1}, 1, v{vq}
    v_lshl_add_u32 v{vcm}, v{t1}, 3, v{t0}
    s_waitcnt lgkmcnt(0)
    """)
    if kind in ('wo', 'down'):
        RES = [V.get(2, 2) for _ in range(NT)]
    else:
        CS = [V.get(4, 4) for _ in range(NTT)]
    if kind in ('gu', 'down'):
        STT = [V.get(4, 4) for _ in range(MT)]
    def epi_loads():
        if kind == 'wo':
            srd(a, 12, P['ws'], REG, H_OFF); srd(a, 36, P['x'], REG); srd(a, 40, P['ws'], ST_BYTES, ST_OFF)
            a(f"v_mul_u32_u24 v{t0}, 1280, v{vtok}\nv_lshl_add_u32 v{t0}, v{vq}, 3, v{t0}")
            for nt in range(NT):
                a(f"buffer_load_dwordx2 {vr(RES[nt],2)}, v{t0}, s[36:39], s28 offen offset:{nt*32}")
        elif kind == 'down':
            srd(a, 12, P['out'], REG); srd(a, 36, P['ws'], REG, H_OFF); srd(a, 40, P['ws'], ST_BYTES, ST_OFF)
            a(f"""
            s_mul_i32 s30, s17, {10*1024}
            s_mul_i32 s31, s29, {HTBS}
            s_add_u32 s30, s30, s31
            """)
            for nt in range(NT):
                a(f"buffer_load_dwordx2 {vr(RES[nt],2)}, v{vcm}, s[36:39], s30 offen offset:{nt*2048 if nt < 2 else 0}") if nt < 2 else (a(f"s_add_u32 s31, s30, {nt*2048}"), a(f"buffer_load_dwordx2 {vr(RES[nt],2)}, v{vcm}, s[36:39], s31 offen"))
        else:
            srd(a, 12, P['ws'], ACT_BYTES, ACT_OFF); srd(a, 36, P['ws'], CS_BYTES, CS_OFF); srd(a, 40, P['ws'], ST_BYTES, ST_OFF)
            a(f"v_lshlrev_b32 v{t0}, 4, v{vq}\ns_mul_i32 s30, s17, {112*4}")
            for rg in range(2):
                for nt in range(NT):
                    a(f"s_add_u32 s31, s30, {rg*FF*4 + nt*64}")
                    a(f"buffer_load_dwordx4 {vr(CS[rg*NT+nt],4)}, v{t0}, s[36:39], s31 offen")
        if kind in ('gu', 'down'):
            a(f"v_lshlrev_b32 v{t1}, 6, v{vtok}\nv_lshl_add_u32 v{t1}, v{vq}, 4, v{t1}")
            for mt in range(MT):
                a(f"buffer_load_dwordx4 {vr(STT[mt],4)}, v{t1}, s[40:43], 0 offen offset:{mt*16*64}")
    q = LdsQ(a)
    JOBS = 2 * NTT
    assert JOBS % WIN == 0
    def xread(ks):
        off = (ks*4*BM*16) if G == 2 else 0
        for mt in range(MT):
            q.issue(('x', ks & 1), f"ds_read_b128 {vr(XF[ks&1][mt],4)}, v{vXa} offset:{off + mt*256}")
    def wread(u):
        off = u*1024 if G == 2 else (u % NTT)*1024
        q.issue(('w', u), f"ds_read_b128 {vr(WF[u % WIN],4)}, v{vWa} offset:{off}")
    def set_read_addr():
        a(f"v_add_u32 v{vXa}, s45, v{vXl}\nv_add_u32 v{vWa}, s45, v{vWl}")
    def job_mfma(u):
        ks, nt = divmod(u, NTT)
        slot = u % WIN
        q.need({('w', u), ('x', ks & 1)})
        for mt in range(MT):
            if os.environ.get("NOMFMA"): continue
            a(f"v_mfma_f32_16x16x32_bf16 {vr(ACC[nt][mt],4)}, {vr(WF[slot],4)}, {vr(XF[ks&1][mt],4)}, {vr(ACC[nt][mt],4)}")
    def enter(check_exit):
        if check_exit:
            a(f"s_add_u32 s49, s49, 1")
            a(f"s_cmp_ge_u32 s49, {K//64}\ns_cbranch_scc1 {name}_tail")
        a(f"""
        s_add_u32 s45, s45, {STG}
        s_cmp_ge_u32 s45, {D*STG}
        s_cselect_b32 s30, {D*STG}, 0
        s_sub_u32 s45, s45, s30
        """)
        if check_exit or BP == 1: a("s_barrier")
        set_read_addr()
    a("s_mov_b32 s49, 0\ns_mov_b32 s45, 0")
    a("; STAMP 0")
    a("s_barrier")
    a("; STAMP 1")
    set_read_addr()
    xread(0)
    for u in range(WIN): wread(u)
    epi_loads()
    a.label(f"{name}_loop")
    qstate = list(q.q)
    for u in range(JOBS):
        if u == JOBS - WIN:
            enter(True)
            xread(0)
        if u == NTT - WIN:
            if G == 1: enter(False)
            xread(1)
        job_mfma(u)
        wread((u + WIN) % JOBS)
    assert q.q == qstate, (q.q, qstate)
    a(f"s_branch {name}_loop")
    a.label(f"{name}_tail")
    a("; STAMP 2")
    a("s_waitcnt lgkmcnt(0)")
    q.drain()
    for u in range(JOBS - WIN, JOBS):
        job_mfma(u)
    a("s_waitcnt vmcnt(0)")
    def red_q(reg):
        a(f"""
        v_mov_b32 v{t0}, v{reg}
        s_nop 1
        v_permlane32_swap_b32 v{t0}, v{reg}
        s_nop 1
        v_add_f32 v{reg}, v{reg}, v{t0}
        v_mov_b32 v{t0}, v{reg}
        s_nop 1
        v_permlane16_swap_b32 v{t0}, v{reg}
        s_nop 1
        v_add_f32 v{reg}, v{reg}, v{t0}
        """)
    if kind in ('gu', 'down'):
        mu = [V.get(2, 2) for _ in range(MT)]; rs_ = [V.get() for _ in range(MT)]
        for mt in range(MT):
            s_ = STT[mt]
            a(f"v_add_f32 v{s_}, v{s_}, v{s_+2}\nv_add_f32 v{s_+1}, v{s_+1}, v{s_+3}")
            red_q(s_); red_q(s_+1)
            a(f"""
            s_mov_b32 s30, {f32bits(1.0/DM)}
            v_mul_f32 v{mu[mt]}, s30, v{s_}
            v_mul_f32 v{s_+1}, s30, v{s_+1}
            v_fma_f32 v{s_+1}, -v{mu[mt]}, v{mu[mt]}, v{s_+1}
            v_max_f32 v{s_+1}, 0, v{s_+1}
            v_add_f32 v{s_+1}, {f32bits(1e-5)}, v{s_+1}
            v_rsq_f32 v{rs_[mt]}, v{s_+1}
            v_sub_f32 v{mu[mt]}, 0, v{mu[mt]}
            """)
    a("; STAMP 3")
    if kind in ('wo', 'down'):
        pk = V.get(2, 2)
        if kind == 'wo':
            ssum = V.get(); ssq = V.get()
            a(f"""
            v_mov_b32 v{t3}, v{vcm}
            s_mul_i32 s30, s17, {10*1024}
            s_mul_i32 s31, s29, {HTBS}
            s_add_u32 s30, s30, s31
            v_mov_b32 v{ssum}, 0
            v_mov_b32 v{ssq}, 0
            """)
        else:
            a(f"""
            v_mul_u32_u24 v{t3}, 1280, v{vtok}
            v_lshl_add_u32 v{t3}, v{vq}, 3, v{t3}
            v_mul_f32 v{rs_[0]}, {f32bits(-math.log(2.0))}, v{rs_[0]}
            """)
        for nt in range(NT):
            acc = ACC[nt][0]; r = RES[nt]
            a(f"v_lshlrev_b32 v{t1}, 16, v{r}\nv_and_b32 v{t2}, 0xffff0000, v{r}")
            if kind == 'wo':
                a(f"v_add_f32 v{acc}, v{acc}, v{t1}\nv_add_f32 v{acc+1}, v{acc+1}, v{t2}")
            else:
                a(f"v_fma_f32 v{acc}, v{acc}, v{rs_[0]}, v{t1}\nv_fma_f32 v{acc+1}, v{acc+1}, v{rs_[0]}, v{t2}")
            a(f"v_lshlrev_b32 v{t1}, 16, v{r+1}\nv_and_b32 v{t2}, 0xffff0000, v{r+1}")
            if kind == 'wo':
                a(f"v_add_f32 v{acc+2}, v{acc+2}, v{t1}\nv_add_f32 v{acc+3}, v{acc+3}, v{t2}")
            else:
                a(f"v_fma_f32 v{acc+2}, v{acc+2}, v{rs_[0]}, v{t1}\nv_fma_f32 v{acc+3}, v{acc+3}, v{rs_[0]}, v{t2}")
            a(f"v_cvt_pk_bf16_f32 v{pk}, v{acc}, v{acc+1}\nv_cvt_pk_bf16_f32 v{pk+1}, v{acc+2}, v{acc+3}")
            if kind == 'wo':
                a(f"s_add_u32 s31, s30, {nt*2048}")
                a(f"buffer_store_dwordx2 {vr(pk,2)}, v{t3}, s[12:15], s31 offen{SCX2}")
                for h_ in range(2):
                    a(f"""
                    v_lshlrev_b32 v{t1}, 16, v{pk+h_}
                    v_and_b32 v{t2}, 0xffff0000, v{pk+h_}
                    v_add_f32 v{ssum}, v{ssum}, v{t1}
                    v_fmac_f32 v{ssq}, v{t1}, v{t1}
                    v_add_f32 v{ssum}, v{ssum}, v{t2}
                    v_fmac_f32 v{ssq}, v{t2}, v{t2}
                    """)
            else:
                a(f"buffer_store_dwordx2 {vr(pk,2)}, v{t3}, s[12:15], s28 offen offset:{nt*32}{SCX2}")
        if kind == 'wo':
            red_q(ssum); red_q(ssq)
            st2 = V.get(2, 2)
            a(f"""
            v_mov_b32 v{st2}, v{ssum}
            v_mov_b32 v{st2+1}, v{ssq}
            v_lshlrev_b32 v{t0}, 6, v{vtok}
            s_lshl_b32 s30, s17, 3
            s_mov_b64 exec, 0xffff
            buffer_store_dwordx2 {vr(st2,2)}, v{t0}, s[40:43], s30 offen
            """)
    else:
        ag = [V.get(2, 2) for _ in range(MT)]
        for mt in range(MT):
            a(f"v_mul_f32 v{ag[mt]}, {f32bits(-math.log2(math.e))}, v{rs_[mt]}")
        pk = V.get(4, 4); vo = V.get(); w = V.get(4, 2); e = V.get(4, 2); one2 = V.get(2, 2)
        a(f"v_mov_b32 v{one2}, 1.0\nv_mov_b32 v{one2+1}, 1.0")
        a(f"""
        v_and_b32 v{t0}, 63, v{vtok}
        v_and_b32 v{t1}, 1, v{vq}
        v_lshl_add_u32 v{t0}, v{t1}, 4, v{t0}
        v_lshlrev_b32 v{t0}, 4, v{t0}
        v_lshrrev_b32 v{t1}, 1, v{vq}
        v_lshl_add_u32 v{vo}, v{t1}, 10, v{t0}
        s_mul_i32 s30, s17, {14*1024}
        s_mul_i32 s31, s29, {ATBS}
        s_add_u32 s30, s30, s31
        """)
        for nt in range(NT):
            if nt == 3:
                a(f"s_cmp_eq_u32 s17, 15\ns_cbranch_scc1 {name}_end")
            for mt in range(MT):
                g = ACC[nt][mt]; u_ = ACC[NT+nt][mt]; cg = CS[nt]; cu = CS[NT+nt]
                for r in (0, 2): a(f"v_pk_fma_f32 {vr(g+r,2)}, {vr(cg+r,2)}, {vr(mu[mt],2)}, {vr(g+r,2)} op_sel_hi:[1,0,1]")
                for r in (0, 2): a(f"v_pk_mul_f32 {vr(w+r,2)}, {vr(g+r,2)}, {vr(ag[mt],2)} op_sel_hi:[1,0]")
                for r in range(4): a(f"v_exp_f32 v{e+r}, v{w+r}")
                for r in (0, 2): a(f"v_pk_fma_f32 {vr(u_+r,2)}, {vr(cu+r,2)}, {vr(mu[mt],2)}, {vr(u_+r,2)} op_sel_hi:[1,0,1]")
                for r in (0, 2): a(f"v_pk_add_f32 {vr(e+r,2)}, {vr(e+r,2)}, {vr(one2,2)}")
                for r in range(4): a(f"v_rcp_f32 v{e+r}, v{e+r}")
                for r in (0, 2): a(f"v_pk_mul_f32 {vr(w+r,2)}, {vr(w+r,2)}, {vr(u_+r,2)}")
                for r in (0, 2): a(f"v_pk_mul_f32 {vr(w+r,2)}, {vr(w+r,2)}, {vr(e+r,2)}")
                a(f"v_cvt_pk_bf16_f32 v{pk+2*mt}, v{w}, v{w+1}")
                a(f"v_cvt_pk_bf16_f32 v{pk+2*mt+1}, v{w+2}, v{w+3}")
            a("s_nop 1")
            a(f"v_permlane16_swap_b32 v{pk}, v{pk+2}")
            a(f"v_permlane16_swap_b32 v{pk+1}, v{pk+3}")
            a(f"s_add_u32 s31, s30, {nt*2048}")
            a(f"buffer_store_dwordx4 {vr(pk,4)}, v{vo}, s[12:15], s31 offen{SCX}")
            a("s_nop 1")
    a(f"s_branch {name}_end")
    a = a_main
    a.label(f"{name}_loader")
    L = VAlloc(3)
    vd = L.get()
    ra, rb_ = (3, 7) if NST == 27 else ((1, 3) if NST == 10 else (2, 5))
    if os.environ.get('NOROT'): ra, rb_ = 0, 0
    a(f"""
    s_sub_u32 s18, s18, 4
    v_lshlrev_b32 v{vd}, 4, v2
    s_mul_i32 s50, s18, {NXI // (BM//64) * 1024}
    s_mul_i32 s30, s16, {(BM//64)*XTBS}
    s_add_u32 s50, s50, s30
    s_mul_i32 s25, s18, {NXI*1024}
    s_lshl_b32 s27, s18, 10
    s_add_u32 s27, s27, {XB}
    s_mul_i32 s51, s17, {(K//32)*NTT*1024}
    s_lshl_b32 s30, s18, 10
    s_add_u32 s51, s51, s30
    s_add_u32 s51, s51, {wsec}
    s_mul_i32 s30, s32, {ra}
    s_mul_i32 s31, s33, {rb_}
    s_add_u32 s44, s30, s31
    s_cmp_ge_u32 s44, {NST}
    s_cselect_b32 s30, {NST}, 0
    s_sub_u32 s44, s44, s30
    s_cmp_ge_u32 s44, {NST}
    s_cselect_b32 s30, {NST}, 0
    s_sub_u32 s44, s44, s30
    s_mov_b32 s46, 0
    s_waitcnt lgkmcnt(0)
    """)
    srd(a, 4, P['ws'], xbytes, xoff)
    srd(a, 8, P['ws'], WPX, WP_OFF)
    NWI = (NWT + 3)//4
    uneven = NWT % 4 != 0
    per_hi = NXI + NWI
    per_lo = NXI + NWI - (1 if uneven else 0)
    def issue_stage():
        a(f"s_mul_i32 s47, s44, {G*4*1024}\ns_add_u32 s47, s47, s50")
        a(f"s_mul_i32 s48, s44, {WB}\ns_add_u32 s48, s48, s51")
        a(f"s_add_u32 s52, s27, s46\ns_add_u32 s53, s25, s46")
        for i in range(NWI):
            lab = None
            if uneven and i == NWI - 1:
                lab = a.newlabel(name + "_sk")
                a(f"s_cmp_ge_u32 s18, {NWT % 4}\ns_cbranch_scc1 {lab}")
            a(f"s_add_u32 m0, s52, {i*4096}")
            a(f"s_add_u32 s31, s48, {i*4096}")
            if not os.environ.get("NODMAW"): a(f"buffer_load_dwordx4 v{vd}, s[8:11], s31 offen lds")
            if lab: a.label(lab)
        for i in range(NXI):
            c, tg = divmod(i, BM//64)
            a(f"s_add_u32 m0, s53, {i*1024}")
            a(f"s_add_u32 s31, s47, {c*1024 + tg*XTBS}")
            if not os.environ.get("NODMAX"): a(f"buffer_load_dwordx4 v{vd}, s[4:7], s31 offen lds")
        a(f"""
        s_add_u32 s44, s44, 1
        s_cmp_ge_u32 s44, {NST}
        s_cselect_b32 s30, {NST}, 0
        s_sub_u32 s44, s44, s30
        s_add_u32 s46, s46, {STG}
        s_cmp_ge_u32 s46, {D*STG}
        s_cselect_b32 s30, {D*STG}, 0
        s_sub_u32 s46, s46, s30
        """)
    def vmw(n_st, extra=0):
        if extra:
            if per_hi != per_lo:
                l1 = a.newlabel(name + "_w"); le = a.newlabel(name + "_w")
                a(f"s_cmp_ge_u32 s18, {NWT % 4}\ns_cbranch_scc1 {l1}")
                a(f"s_waitcnt vmcnt({per_hi*n_st + extra})\ns_branch {le}")
                a.label(l1)
                a(f"s_waitcnt vmcnt({per_lo*n_st + extra})")
                a.label(le)
            else:
                a(f"s_waitcnt vmcnt({per_hi*n_st + extra})")
            return
        if per_hi != per_lo:
            l1 = a.newlabel(name + "_w"); le = a.newlabel(name + "_w")
            a(f"s_cmp_ge_u32 s18, {NWT % 4}\ns_cbranch_scc1 {l1}")
            a(f"s_waitcnt vmcnt({per_hi*n_st})\ns_branch {le}")
            a.label(l1)
            a(f"s_waitcnt vmcnt({per_lo*n_st})")
            a.label(le)
        else:
            a(f"s_waitcnt vmcnt({per_hi*n_st})")
    if kind in ('wo', 'gu') and not os.environ.get("NOPF"):
        nlines = 8960 if kind == 'wo' else 8640
        base = WP_GU if kind == 'wo' else WP_WD
        msk = 3 if kind == 'wo' else 1
        pf = L.get(); pfd = L.get()
        PFTXT = f"""
        s_lshr_b32 s30, s2, 3
        s_lshl_b32 s30, s30, 2
        s_add_u32 s30, s30, s18
        s_mul_i32 s30, s30, {70*128}
        s_and_b32 s31, s35, {msk}
        s_mul_i32 s31, s31, {nlines*128}
        s_add_u32 s30, s30, s31
        s_add_u32 s30, s30, {base}
        v_lshlrev_b32 v{pf}, 7, v2
        buffer_load_dword v{pfd}, v{pf}, s[8:11], s30 offen
        s_add_u32 s30, s30, {64*128}
        s_mov_b64 exec, 0x3f
        buffer_load_dword v{pfd}, v{pf}, s[8:11], s30 offen
        s_mov_b64 exec, -1
        """
    do_pf = kind in ('wo', 'gu') and not os.environ.get("NOPF")
    a("; STAMP 4")
    first = min(2*BP, D)
    issued = first
    plan = []
    for j in range(0, NST, BP):
        ow = issued - (j + BP)
        lim = min(NST, max(D, j - 1 + D))
        n_new = max(0, min(2*BP, lim - issued))
        plan.append((ow, n_new)); issued += n_new
    assert issued == NST, (issued, NST)
    runs = []
    for p in plan:
        if runs and runs[-1][0] == p: runs[-1][1] += 1
        else: runs.append([p, 1])
    for _ in range(first): issue_stage()
    tot = first; extra = 0
    for (ow, nn), cnt in runs:
        if cnt > 1:
            lab = a.newlabel(name + "_ll")
            a(f"s_mov_b32 s49, 0")
            a.label(lab)
            vmw(ow, extra); a("s_barrier")
            for _ in range(nn): issue_stage()
            a(f"s_add_u32 s49, s49, 1\ns_cmp_lt_u32 s49, {cnt}\ns_cbranch_scc1 {lab}")
        else:
            vmw(ow, extra); a("s_barrier")
            for _ in range(nn): issue_stage()
        tot += nn*cnt
        if tot == NST and do_pf and not extra:
            a(PFTXT); extra = 2
    a.label(f"{name}_end")
    a("s_endpgm")
    return a.text(), max(gu2_hi if GU2 else V.hi, L.hi), D*STG
```

```python
import sys
from common import *
from k_qkv import k_qkv
from k_attn import k_attn
from k_gemm import k_gemm

HDR = open("sequential_preLN__mha_block__swiglu_ffn__prompt.s.ref").read().split("\n")
HDR = [l for l in HDR if l.startswith(";") and "@launch" not in l and "Override" not in l and "grid=ceil" not in l]

def hoist(text, name, role, cmpline):
    lines = text.split("\n")
    lab = f"{name}_{role}:"
    i0 = lines.index(lab)
    ends = [f"{name}_{x}:" for x in ("loader", "svc", "stats", "colsum", "end", "vpath") if x != role]
    i1 = next(i for i in range(i0+1, len(lines)) if lines[i] in ends)
    sec = lines[i0+1:i1]
    last = [l for l in sec if l.strip()][-1].strip()
    if not last.startswith("s_branch"):
        sec.append(f"    s_branch {name}_end")
    rest = lines[:i0] + lines[i1:]
    j = next(i for i, l in enumerate(rest) if l.strip() == f"s_cbranch_scc1 {name}_{role}")
    assert rest[j-1].strip() == cmpline, rest[j-1]
    rest[j] = f"    s_cbranch_scc0 {name}_main_{role}"
    rest[j+1:j+1] = sec + [f"{name}_main_{role}:"]
    return "\n".join(rest)

def build(which=None):
    ks = []
    t, n, l = k_qkv("qkv_kernel"); ks.append(("qkv_kernel", t, n, l, 256, 768))
    t, n, l = k_attn("attn_kernel"); ks.append(("attn_kernel", t, n, l, 256, 768))
    import os
    if not os.environ.get("FUSE"):
        t, n, l = k_gemm("wo_kernel", "wo"); ks.append(("wo_kernel", t, n, l, 256, 512))
    t, n, l = k_gemm("gu_kernel", "gu"); ks.append(("gu_kernel", t, n, l, 256, 512))
    t, n, l = k_gemm("down_kernel", "down"); ks.append(("down_kernel", t, n, l, 256, 512))
    import os
    if not os.environ.get("NOHOIST"):
        ks2 = []
        for name, t, n, l, g, b in ks:
            if name == "qkv_kernel": t = hoist(t, name, "loader", "s_cmp_ge_u32 s18, 4")
            elif name == "attn_kernel": t = hoist(t, name, "svc", "s_cmp_ge_u32 s18, 8")
            else: t = hoist(t, name, "loader", "s_cmp_ge_u32 s18, 4")
            ks2.append((name, t, n, l, g, b))
        ks = ks2
    out = "\n".join(HDR) + "\n"
    for name, t, n, l, g, b in ks:
        out += f"; @launch kernel={name} grid=({g},1,1) block=({b},1,1) lds={l}\n"
    out += '.amdgcn_target "amdgcn-amd-amdhsa--gfx950"\n.text\n'
    for name, t, n, l, g, b in ks:
        out += kernel_header(name) + t
    out += '.section .rodata,"a"\n'
    for name, t, n, l, g, b in ks:
        out += ".p2align 6\n" + kernel_desc(name, n)
    return out

if __name__ == "__main__":
    dst = sys.argv[1] if len(sys.argv) > 1 else "sequential_preLN__mha_block__swiglu_ffn__prompt.s"
    import os
    txt = build()
    if os.environ.get("FINAL"):
        txt = "\n".join(l for l in txt.split("\n") if "; STAMP" not in l and l.strip() != "") + "\n"
    open(dst, "w").write(txt)
    print("wrote", dst)
```

```python
import sys
from common import *
from k_qkv import k_qkv
from k_attn import k_attn
from k_gemm import k_gemm

HDR = open("sequential_preLN__mha_block__swiglu_ffn__prompt.s.ref").read().split("\n")
HDR = [l for l in HDR if l.startswith(";") and "@launch" not in l and "Override" not in l and "grid=ceil" not in l]

PF_BYTES = {}
NPF = {'qkv_kernel': 3, 'attn_kernel': 1, 'wo_kernel': 1, 'gu_kernel': 1}

def hoist(text, name, role, cmpline):
    lines = text.split("\n")
    lab = f"{name}_{role}:"
    i0 = lines.index(lab)
    ends = [f"{name}_{x}:" for x in ("loader", "svc", "stats", "colsum", "end", "vpath") if x != role]
    i1 = next(i for i in range(i0+1, len(lines)) if lines[i] in ends)
    sec = lines[i0+1:i1]
    last = [l for l in sec if l.strip()][-1].strip()
    if not last.startswith("s_branch"):
        sec.append(f"    s_branch {name}_end")
    rest = lines[:i0] + lines[i1:]
    j = next(i for i, l in enumerate(rest) if l.strip() == f"s_cbranch_scc1 {name}_{role}")
    assert rest[j-1].strip() == cmpline, rest[j-1]
    rest[j] = f"    s_cbranch_scc0 {name}_main_{role}"
    rest[j+1:j+1] = sec + [f"{name}_main_{role}:"]
    return "\n".join(rest)

def build(which=None):
    ks = []
    t, n, l = k_qkv("qkv_kernel"); ks.append(("qkv_kernel", t, n, l, 256, 768))
    t, n, l = k_attn("attn_kernel"); ks.append(("attn_kernel", t, n, l, 256, 768))
    import os
    if not os.environ.get("FUSE"):
        t, n, l = k_gemm("wo_kernel", "wo"); ks.append(("wo_kernel", t, n, l, 256, 512))
    t, n, l = k_gemm("gu_kernel", "gu"); ks.append(("gu_kernel", t, n, l, 256, 512))
    t, n, l = k_gemm("down_kernel", "down"); ks.append(("down_kernel", t, n, l, 256, 512))
    import os
    if not os.environ.get("NOHOIST"):
        ks2 = []
        for name, t, n, l, g, b in ks:
            if name == "qkv_kernel": t = hoist(t, name, "loader", "s_cmp_ge_u32 s18, 4")
            elif name == "attn_kernel": t = hoist(t, name, "svc", "s_cmp_ge_u32 s18, 8")
            else: t = hoist(t, name, "loader", "s_cmp_ge_u32 s18, 4")
            ks2.append((name, t, n, l, g, b))
        ks = ks2
    if not os.environ.get("NOCODEPF"):
        names = [k[0] for k in ks]
        ks2 = []
        for i, (name, t, n, l, g, b) in enumerate(ks):
            role = "svc" if name == "attn_kernel" else "loader"
            start = name if i == 0 else (names[i+1] if i+1 < len(names) else None)
            end = (names[i+2] if i+2 < len(names) else "code_end")
            if start is not None:
                vt = n; vl = n + 1; vd = n + 2
                code = [f"    s_cmp_lg_u32 s18, 0", f"    s_cbranch_scc1 {name}_npf", f"    s_cmp_ge_u32 s2, 16", f"    s_cbranch_scc1 {name}_npf",
                        f"    s_getpc_b64 s[44:45]", f"{name}_pc:",
                        f"    s_add_u32 s44, s44, {start}-{name}_pc" if i > 0 else f"    s_sub_u32 s44, s44, {name}_pc-{start}",
                        f"    s_addc_u32 s45, s45, 0" if i > 0 else f"    s_subb_u32 s45, s45, 0",
                        f"    s_mov_b32 s46, ({end}-{start})>>7",
                        f"    v_lshlrev_b32 v{vt}, 7, v2", f"    v_mov_b32 v{vl}, v2"]
                for j in range(NPF[name]):
                    code += [f"    v_cmp_gt_u32 vcc, s46, v{vl}", f"    s_and_saveexec_b64 s[48:49], vcc", f"    s_cbranch_execz {name}_npf2",
                             f"    global_load_dword v{vd}, v{vt}, s[44:45]", f"    s_mov_b64 exec, -1",
                             f"    v_add_u32 v{vt}, 0x2000, v{vt}", f"    v_add_u32 v{vl}, 64, v{vl}"]
                code += [f"{name}_npf2:", f"    s_mov_b64 exec, -1", f"{name}_npf:"]
                key = f"{name}_main_{role}:" if name != "attn_kernel" else f"{name}_main2:"
                assert key in t
                t = t.replace(key, key + "\n" + "\n".join(code))
                n = n + 3
            ks2.append((name, t, n, l, g, b))
        ks = ks2
    out = "\n".join(HDR) + "\n"
    for name, t, n, l, g, b in ks:
        out += f"; @launch kernel={name} grid=({g},1,1) block=({b},1,1) lds={l}\n"
    out += '.amdgcn_target "amdgcn-amd-amdhsa--gfx950"\n.text\n'
    for name, t, n, l, g, b in ks:
        out += kernel_header(name) + t
    out += 'code_end:\n    s_endpgm\n.fill 8192, 4, 0xbf810000\n' if os.environ.get('PADCODE') else 'code_end:\n'
    out += '.section .rodata,"a"\n'
    for name, t, n, l, g, b in ks:
        out += ".p2align 6\n" + kernel_desc(name, n)
    return out

if __name__ == "__main__":
    dst = sys.argv[1] if len(sys.argv) > 1 else "sequential_preLN__mha_block__swiglu_ffn__prompt.s"
    import os
    txt = build()
    if os.environ.get("FINAL"):
        txt = "\n".join(l for l in txt.split("\n") if "; STAMP" not in l and l.strip() != "") + "\n"
    open(dst, "w").write(txt)
    print("wrote", dst)
```

```python
from common import *
import os
SCX = '' if os.environ.get('NOSC1') else ' sc1'
SCX2 = ' sc1' if os.environ.get('SC1X2') else ''
import os

def k_attn(name="attn_kernel"):
    FUSE = bool(os.environ.get('FUSE'))
    a = Asm()
    KH = 8192; VOFF = 12288
    CH = VOFF + 33*336
    NCH = 8; NB = 3
    FLAG = NB*CH + 256
    RPK = (FLAG + 64 + 255)//256*256
    WOW = RPK
    WOL = 0
    CSTR = 327680
    entry(a, name)
    a(f"""
    s_and_b32 s30, s2, 7                 ; xcd
    s_lshr_b32 s31, s2, 3                ; idx 0..31
    s_lshr_b32 s32, s31, 3
    s_lshl_b32 s16, s30, 2
    s_add_u32 s16, s16, s32              ; head
    s_and_b32 s17, s31, 7                ; qblock
    s_cmp_ge_u32 s18, 8
    s_cbranch_scc1 {name}_svc
    """)
    V = VAlloc(3)
    t0 = V.get(); t1 = V.get(); t2 = V.get(); t3 = V.get(); t4 = V.get()
    Q1 = V.get(4, 4); Q2 = V.get(4, 4)
    SS = [V.get(16, 4), V.get(16, 4)]
    PP = [V.get(4, 4), V.get(4, 4)]
    OO = V.get(16, 4)
    K1 = [V.get(4, 4), V.get(4, 4)]; K2 = [V.get(4, 4), V.get(4, 4)]
    V1 = [V.get(4, 4), V.get(4, 4)]; V2 = [V.get(4, 4), V.get(4, 4)]
    lk = V.get(); lk2 = V.get(); lv = V.get()
    ck = V.get(); ck2 = V.get(); cv = V.get()
    nk = V.get(); nk2 = V.get(); nv = V.get()
    vm = V.get(); vq = V.get(); vhh = V.get()
    a(f"""
    s_lshl_b32 s30, s17, 3
    s_add_u32 s30, s30, s18              ; q tile
    s_mul_i32 s30, s30, 40960
    s_mul_i32 s31, s16, 5
    s_add_u32 s31, s31, 1
    s_lshr_b32 s31, s31, 1               ; cA
    s_and_b32 s32, s16, 1                ; parity
    s_lshl_b32 s25, s31, 9
    s_add_u32 s24, s30, s25
    s_mul_i32 s26, s32, {-(1024+512-8) & 0xffffffff}
    s_add_u32 s26, s26, 1024
    s_add_u32 s26, s26, s24
    s_lshl_b32 s27, s32, 3               ; parity*8
    v_and_b32 v{vq}, 31, v2
    v_lshrrev_b32 v{vhh}, 5, v2
    v_lshlrev_b32 v{lk2}, 4, v{vq}                 ; q*16
    v_lshl_add_u32 v{lk}, v{vhh}, 9, v{lk2}        ; hh*512 + q*16
    v_mul_u32_u24 v{t4}, 336, v{vhh}
    v_lshl_add_u32 v{lv}, v{vq}, 4, v{t4}
    v_add_u32 v{lv}, {VOFF}, v{lv}
    ; ones rows: thread t<96: buffer = t/32, piece = t%32
    v_lshrrev_b32 v{t0}, 5, v0
    v_mul_u32_u24 v{t0}, {CH}, v{t0}
    v_and_b32 v{t1}, 31, v0
    v_mul_u32_u24 v{t1}, 336, v{t1}
    v_add_u32 v{t0}, v{t0}, v{t1}
    v_add_u32 v{t0}, {VOFF+320}, v{t0}
    v_mov_b32 v{SS[0]}, 0x3f803f80
    v_mov_b32 v{SS[0]+1}, 0x3f803f80
    v_mov_b32 v{SS[0]+2}, 0x3f803f80
    v_mov_b32 v{SS[0]+3}, 0x3f803f80
    v_cmp_gt_u32 vcc, 96, v0
    s_and_saveexec_b64 s[30:31], vcc
    s_cbranch_execz {name}_no1
    ds_write_b128 v{t0}, {vr(SS[0],4)}
    """)
    a.label(f"{name}_no1")
    a(f"""
    s_mov_b64 exec, -1
    v_mov_b32 v{t0}, {FLAG}
    v_mov_b32 v{t1}, 0
    ds_write_b32 v{t0}, v{t1}
    v_cmp_gt_u32 s[28:29], 32, v2
    v_mov_b32 v{Q2+2}, 0
    v_mov_b32 v{Q2+3}, 0
    s_waitcnt lgkmcnt(0)
    """)
    srd(a, 8, P['ws'], REG, QF_OFF)
    srd(a, 12, P['ws'], REG, O_OFF)
    a(f"""
    buffer_load_dwordx4 {vr(Q1,4)}, v{lk}, s[8:11], s24 offen
    buffer_load_dwordx2 {vr(Q2,2)}, v{lk2}, s[8:11], s26 offen
    v_add_u32 v{lk2}, s27, v{lk2}
    v_add_u32 v{lk2}, {KH}, v{lk2}
    """)
    for b in range(2):
        a(f"v_mov_b32 v{K2[b]+2}, 0x3f803f80")
        a(f"v_mov_b32 v{K2[b]+3}, 0x00003f80")
    def readK(buf, t, nxt):
        ak, ak2 = (nk, nk2) if nxt else (ck, ck2)
        a(f"ds_read_b128 {vr(K1[buf],4)}, v{ak} offset:{t*1024}")
        a(f"ds_read_b64 {vr(K2[buf],2)}, v{ak2} offset:{t*512}")
    def readV(buf, t, nxt):
        av = nv if nxt else cv
        a(f"ds_read_b128 {vr(V1[buf],4)}, v{av} offset:{t*4*336}")
        a(f"ds_read_b128 {vr(V2[buf],4)}, v{av} offset:{(t*4+2)*336}")
    def mf(d, A, B, C):
        a(f"v_mfma_f32_32x32x16_bf16 {vr(d,16)}, {vr(A,4)}, {vr(B,4)}, {C}")
    def smfma(sb, kb):
        mf(SS[sb], K1[kb], Q1, "0"); mf(SS[sb], K2[kb], Q2, vr(SS[sb],16))
    def set_m():
        a(f"""
        v_sub_f32 v{t0}, 0, v{vm}
        v_and_b32 v{t1}, 0xffff0000, v{t0}
        v_sub_f32 v{t0}, v{t0}, v{t1}
        v_and_b32 v{t3}, 0xffff0000, v{t0}
        v_sub_f32 v{t0}, v{t0}, v{t3}
        v_lshrrev_b32 v{t1}, 16, v{t1}
        v_or_b32 v{t1}, v{t1}, v{t3}
        v_lshrrev_b32 v{t0}, 16, v{t0}
        v_cndmask_b32 v{Q2+2}, 0, v{t1}, s[28:29]
        v_cndmask_b32 v{Q2+3}, 0, v{t0}, s[28:29]
        s_nop 1
        """)
    def max16(sb, first):
        s = SS[sb]
        if first: a(f"v_max_f32 v{vm}, v{s}, v{s+1}")
        else: a(f"v_max3_f32 v{vm}, v{s}, v{s+1}, v{vm}")
        for r in range(2, 16, 2):
            a(f"v_max3_f32 v{vm}, v{s+r}, v{s+r+1}, v{vm}")
    def xhalf_max():
        a(f"""
        v_mov_b32 v{t0}, v{vm}
        s_nop 1
        v_permlane32_swap_b32 v{t0}, v{vm}
        s_nop 1
        v_max_f32 v{vm}, v{vm}, v{t0}
        """)
    def set_addrs(cur, nxt):
        a(f"""
        v_add_u32 v{ck}, s{cur}, v{lk}
        v_add_u32 v{ck2}, s{cur}, v{lk2}
        v_add_u32 v{cv}, s{cur}, v{lv}
        v_add_u32 v{nk}, s{nxt}, v{lk}
        v_add_u32 v{nk2}, s{nxt}, v{lk2}
        v_add_u32 v{nv}, s{nxt}, v{lv}
        """)
    a(f"s_mov_b32 s33, 0\ns_mov_b32 s34, {CH}")
    set_addrs(33, 34)
    a(f"""
    ; STAMP 4
    s_waitcnt vmcnt(0)
    ; STAMP 5
    v_cndmask_b32 v{Q2}, 0, v{Q2}, s[28:29]
    v_cndmask_b32 v{Q2+1}, 0, v{Q2+1}, s[28:29]
    s_barrier
    """)
    a("; STAMP 0")
    readK(0, 0, False)
    a("s_waitcnt lgkmcnt(0)")
    smfma(0, 0)
    readK(1, 1, False)
    readV(0, 0, False)
    a("s_nop 15\ns_nop 1")
    max16(0, True)
    xhalf_max()
    set_m()
    a("s_mov_b32 s23, 0")
    a(f"s_branch {name}_main2")
    a.label(f"{name}_main")
    a(f"s_mov_b32 s33, 0\ns_mov_b32 s34, {CH}")
    set_addrs(33, 34)
    readK(0, 0, False)
    a("s_waitcnt lgkmcnt(0)")
    readK(1, 1, False)
    readV(0, 0, False)
    a.label(f"{name}_main2")
    a("; STAMP 1")
    if os.environ.get("PRIO"): a("s_setprio 2")
    if not os.environ.get("NOPRIOH"):
        lpr = a.newlabel(name + "_pr")
        a(f"s_cmp_lt_u32 s18, 4\ns_cbranch_scc1 {lpr}\ns_setprio 1")
        a.label(lpr)
    smfma(0, 0)
    for r in range(16):
        a(f"v_mov_b32 v{OO+r}, 0")
    for r in range(4):
        a(f"v_mov_b32 v{PP[1]+r}, 0\nv_mov_b32 v{V2[1]+r}, 0")
    a(f"""
    s_mov_b32 s22, 0
    s_mov_b32 s20, {2*CH}
    """)
    a.label(f"{name}_loop")
    for t in range(8):
        sb = t & 1; s = SS[sb]; n = SS[sb ^ 1]
        def E(lo):
            for r in range(lo, lo+4): a(f"v_exp_f32 v{s+r}, v{s+r}")
        def C(lo):
            for r in range(lo, lo+4, 2): a(f"v_cvt_pk_bf16_f32 v{PP[r//8]+(r%8)//2}, v{s+r}, v{s+r+1}")
        if t == 6:
            a("s_barrier")
        a("s_waitcnt lgkmcnt(2)")
        mf(n, K1[sb^1], Q1, "0")
        E(0)
        mf(OO, V2[sb^1], PP[1], vr(OO,16))
        E(4); C(0); C(4)
        mf(n, K2[sb^1], Q2, vr(n,16))
        readK(sb, (t + 2) % 8, t + 2 >= 8)
        E(8)
        a("s_waitcnt lgkmcnt(2)")
        mf(OO, V1[sb], PP[0], vr(OO,16))
        readV(sb ^ 1, (t + 1) % 8, t + 1 >= 8)
        E(12); C(8); C(12)
    a(f"""
    s_add_u32 s22, s22, 1
    s_mov_b32 s30, s33
    s_mov_b32 s33, s34
    s_mov_b32 s34, s20
    s_mov_b32 s20, s30
    """)
    set_addrs(33, 34)
    a(f"s_cmp_lt_u32 s22, {NCH}\ns_cbranch_scc1 {name}_loop")
    mf(OO, V2[1], PP[1], vr(OO,16))
    a("s_waitcnt lgkmcnt(0)\ns_nop 15")
    a("; STAMP 2")
    vl = V.get(); vz = V.get()
    a(f"""
    v_mov_b32 v{t0}, v{OO+8}
    v_mov_b32 v{vl}, v{OO+8}
    s_nop 1
    v_permlane32_swap_b32 v{t0}, v{vl}
    v_mov_b32 v{vz}, 0
    """)
    for r in range(12):
        a(f"v_fma_f32 v{vz}, v{OO+r}, 0, v{vz}")
    a(f"""
    s_cmp_lg_u32 s23, 0
    s_cbranch_scc1 {name}_fin
    s_mov_b32 s30, {f32bits(2.0**60)}
    v_add_f32 v{t1}, v{vz}, v{vl}
    v_cmp_nlt_f32 vcc, v{t1}, s30
    s_cmp_eq_u64 vcc, 0
    s_cbranch_scc1 {name}_noflag
    v_mov_b32 v{t0}, {FLAG}
    v_mov_b32 v{t1}, 1
    ds_write_b32 v{t0}, v{t1}
    s_waitcnt lgkmcnt(0)
    """)
    a.label(f"{name}_noflag")
    a(f"""
    s_barrier
    v_mov_b32 v{t0}, {FLAG}
    ds_read_b32 v{t1}, v{t0}
    s_waitcnt lgkmcnt(0)
    v_readfirstlane_b32 s30, v{t1}
    s_nop 3
    s_cmp_eq_u32 s30, 0
    s_cbranch_scc1 {name}_fin
    v_mov_b32 v{Q2+2}, 0
    v_mov_b32 v{Q2+3}, 0
    v_mov_b32 v{vm}, 0xff7fffff
    s_mov_b32 s22, 0
    s_mov_b32 s33, 0
    """)
    set_addrs(33, 33)
    a.label(f"{name}_maxloop")
    a("s_barrier\ns_barrier")
    for t in range(8):
        readK(0, t, False)
        a("s_waitcnt lgkmcnt(0)")
        smfma(0, 0)
        a("s_nop 15\ns_nop 3")
        max16(0, False)
    a(f"""
    s_add_u32 s22, s22, 1
    s_cmp_lt_u32 s22, {NCH}
    s_cbranch_scc1 {name}_maxloop
    """)
    xhalf_max()
    set_m()
    a("s_mov_b32 s23, 1")
    a("s_barrier\ns_barrier")
    a(f"s_branch {name}_main")
    a.label(f"{name}_fin")
    a("; STAMP 3")
    pk = V.get(2, 2); vo = V.get()
    a(f"""
    v_rcp_f32 v{vl}, v{vl}
    s_lshl_b32 s30, s17, 2
    s_lshr_b32 s31, s18, 1
    s_add_u32 s30, s30, s31
    s_mul_i32 s30, s30, 81920
    s_and_b32 s31, s18, 1
    s_lshl_b32 s31, s31, 9
    s_add_u32 s30, s30, s31
    v_lshlrev_b32 v{vo}, 4, v{vq}
    v_add_u32 v{vo}, s30, v{vo}
    s_mul_i32 s31, s16, 5
    """)
    for grp in range(3):
        a(f"""
        v_add_u32 v{t0}, s31, v{vhh}
        v_add_u32 v{t0}, {2*grp}, v{t0}
        v_lshrrev_b32 v{t1}, 1, v{t0}
        v_lshlrev_b32 v{t1}, 10, v{t1}
        v_and_b32 v{t0}, 1, v{t0}
        v_lshl_add_u32 v{t1}, v{t0}, 3, v{t1}
        v_add_u32 v{t1}, v{t1}, v{vo}
        v_mul_f32 v{t0}, v{OO+4*grp}, v{vl}
        v_mul_f32 v{t2}, v{OO+4*grp+1}, v{vl}
        v_mul_f32 v{t3}, v{OO+4*grp+2}, v{vl}
        v_mul_f32 v{t4}, v{OO+4*grp+3}, v{vl}
        v_cvt_pk_bf16_f32 v{pk}, v{t0}, v{t2}
        v_cvt_pk_bf16_f32 v{pk+1}, v{t3}, v{t4}
        """)
        if grp == 2:
            a("s_mov_b64 exec, s[28:29]")
        a(f"buffer_store_dwordx2 {vr(pk,2)}, v{t1}, s[12:15], 0 offen{' sc1' if FUSE else ''}")
        a("s_nop 1")
    if not FUSE: a(f"s_branch {name}_end")
    a_main = a
    if not FUSE: a = Asm()
    a("s_mov_b64 exec, -1")
    a("s_waitcnt vmcnt(0)")
    a("s_barrier")
    a("; STAMP 7")
    srd(a, 4, P['ws'], SY_BYTES, SY_OFF)
    lw = a.newlabel(name + "_sw"); lp = a.newlabel(name + "_sp"); lq = a.newlabel(name + "_sq")
    a(f"""
    s_cmp_lg_u32 s18, 0
    s_cbranch_scc1 {lw}
    s_lshl_b32 s30, s17, 8
    v_mov_b32 v{t0}, s30
    v_mov_b32 v{t1}, 1
    s_mov_b64 exec, 1
    buffer_atomic_add v{t1}, v{t0}, s[4:7], 0 offen sc1
    s_mov_b32 s31, 0
    """)
    a.label(lp)
    a(f"""
    buffer_load_dword v{t2}, v{t0}, s[4:7], 0 offen sc1
    s_waitcnt vmcnt(0)
    v_readfirstlane_b32 s30, v{t2}
    s_add_u32 s31, s31, 1
    s_cmp_ge_u32 s31, 0x40000
    s_cbranch_scc1 {lq}
    s_cmp_lt_u32 s30, 32
    s_cbranch_scc1 {lp}
    """)
    a.label(lq)
    a("s_mov_b64 exec, -1")
    if os.environ.get("DIAGP"): a("s_mov_b32 s88, s31\ns_add_u32 s88, s88, s92")
    a.label(lw)
    a("s_barrier")
    a("; STAMP 6")
    lwoc = a.newlabel(name + "_wc")
    a(f"s_cmp_lt_u32 s18, 4\ns_cbranch_scc1 {lwoc}")
    srd(a, 8, P['ws'], WPX, WP_OFF)
    a(f"""
    v_mov_b32 v{t0}, 2048
    buffer_load_dword v{t1}, v{t0}, s[4:7], 0 offen sc1
    s_waitcnt vmcnt(0)
    v_readfirstlane_b32 s30, v{t1}
    s_nop 3
    s_cmp_lt_u32 s30, 256
    s_cbranch_scc1 {name}_end
    s_lshr_b32 s30, s2, 3
    s_lshl_b32 s30, s30, 2
    s_add_u32 s30, s30, s18
    s_sub_u32 s30, s30, 4
    s_mul_i32 s30, s30, {70*128}
    s_and_b32 s31, s2, 3
    s_mul_i32 s31, s31, {8960*128}
    s_add_u32 s30, s30, s31
    s_add_u32 s30, s30, {WP_GU}
    v_lshlrev_b32 v{t0}, 7, v2
    buffer_load_dword v{t1}, v{t0}, s[8:11], s30 offen
    s_add_u32 s30, s30, {64*128}
    s_mov_b64 exec, 0x3f
    buffer_load_dword v{t1}, v{t0}, s[8:11], s30 offen
    s_branch {name}_end
    """)
    a.label(lwoc)
    W_ = VAlloc(3, 168)
    w0 = W_.get(); w1 = W_.get(); w2 = W_.get(); w3 = W_.get()
    vq2 = W_.get(); vtok = W_.get(); vcm = W_.get(); vWa = W_.get(); vxo = W_.get()
    XF = [W_.get(4, 4) for _ in range(20)]
    WF = [[W_.get(4, 4) for _ in range(5)] for _ in range(2)]
    ACC = [W_.get(4, 4) for _ in range(5)]
    RES = [W_.get(2, 2) for _ in range(5)]
    a(f"""
    s_lshl_b32 s16, s16, 0
    s_lshr_b32 s30, s16, 3
    s_lshl_b32 s29, s17, 2
    s_add_u32 s29, s29, s30
    s_and_b32 s17, s16, 7                ; cb
    s_mul_i32 s28, s17, 160
    v_lshrrev_b32 v{vq2}, 4, v2          ; q / g
    v_and_b32 v{w0}, 15, v2
    s_lshl_b32 s30, s18, 4
    v_add_u32 v{w0}, s30, v{w0}
    v_lshlrev_b32 v{w1}, 4, v{w0}
    v_lshl_add_u32 v{vxo}, v{vq2}, 10, v{w1}   ; g*1024 + tok*16
    s_mul_i32 s30, s29, 81920
    """)
    for ks in range(20):
        a(f"s_add_u32 s31, s30, {ks*4096}")
        a(f"buffer_load_dwordx4 {vr(XF[ks],4)}, v{vxo}, s[12:15], s31 offen sc1")
    a(f"""
    s_lshl_b32 s30, s29, 6
    v_add_u32 v{vtok}, s30, v{w0}
    v_lshrrev_b32 v{w2}, 1, v{vq2}
    v_lshl_add_u32 v{w1}, v{w2}, 10, v{w1}
    v_and_b32 v{w2}, 1, v{vq2}
    v_lshl_add_u32 v{vcm}, v{w2}, 3, v{w1}
    v_lshrrev_b32 v{w0}, 5, v2
    v_lshlrev_b32 v{w0}, 4, v{w0}
    v_bfe_u32 v{w1}, v2, 4, 1
    v_lshl_add_u32 v{w0}, v{w1}, 2, v{w0}
    v_bfe_u32 v{w1}, v2, 2, 2
    v_add_u32 v{w0}, v{w0}, v{w1}
    v_mul_u32_u24 v{vWa}, 160, v{w0}
    v_and_b32 v{w1}, 3, v2
    v_lshl_add_u32 v{vWa}, v{w1}, 3, v{vWa}
    v_add_u32 v{w3}, {WOL}, v{vWa}
    v_add_u32 v{vWa}, {WOW}, v{vWa}
    """)
    srd(a, 36, P['x'], REG); srd(a, 40, P['ws'], ST_BYTES, ST_OFF); srd(a, 8, P['ws'], REG, H_OFF)
    a(f"v_mul_u32_u24 v{w0}, 1280, v{vtok}\nv_lshl_add_u32 v{w0}, v{vq2}, 3, v{w0}")
    for nt in range(5):
        a(f"buffer_load_dwordx2 {vr(RES[nt],2)}, v{w0}, s[36:39], s28 offen offset:{nt*32}")
    for nt in range(5):
        for r in range(4): a(f"v_mov_b32 v{ACC[nt]+r}, 0")
    def wrd(ks):
        ad = vWa if ks < 19 else w3
        for nt in range(5):
            for jh in range(2):
                a(f"ds_read_b64_tr_b16 {vr(WF[ks&1][nt]+2*jh,2)}, v{ad} offset:{jh*8*160 + nt*32}")
        if ks < 18: a(f"v_add_u32 v{vWa}, 5120, v{vWa}")
    wrd(0)
    for ks in range(20):
        a("s_waitcnt lgkmcnt(0)")
        if ks + 1 < 20: wrd(ks + 1)
        a(f"s_waitcnt vmcnt({19 - ks + 5})")
        for nt in range(5):
            a(f"v_mfma_f32_16x16x32_bf16 {vr(ACC[nt],4)}, {vr(WF[ks&1][nt],4)}, {vr(XF[ks],4)}, {vr(ACC[nt],4)}")
    a("s_waitcnt vmcnt(0)\ns_nop 7")
    pk2 = W_.get(2, 2); ssum = W_.get(); ssq = W_.get(); st2 = W_.get(2, 2)
    a(f"""
    s_mul_i32 s30, s17, {10*1024}
    s_mul_i32 s31, s29, 81920
    s_add_u32 s30, s30, s31
    v_mov_b32 v{ssum}, 0
    v_mov_b32 v{ssq}, 0
    """)
    for nt in range(5):
        acc = ACC[nt]; r = RES[nt]
        a(f"""
        v_lshlrev_b32 v{w1}, 16, v{r}
        v_and_b32 v{w2}, 0xffff0000, v{r}
        v_add_f32 v{acc}, v{acc}, v{w1}
        v_add_f32 v{acc+1}, v{acc+1}, v{w2}
        v_lshlrev_b32 v{w1}, 16, v{r+1}
        v_and_b32 v{w2}, 0xffff0000, v{r+1}
        v_add_f32 v{acc+2}, v{acc+2}, v{w1}
        v_add_f32 v{acc+3}, v{acc+3}, v{w2}
        v_cvt_pk_bf16_f32 v{pk2}, v{acc}, v{acc+1}
        v_cvt_pk_bf16_f32 v{pk2+1}, v{acc+2}, v{acc+3}
        s_add_u32 s31, s30, {nt*2048}
        buffer_store_dwordx2 {vr(pk2,2)}, v{vcm}, s[8:11], s31 offen
        """)
        for h_ in range(2):
            a(f"""
            v_lshlrev_b32 v{w1}, 16, v{pk2+h_}
            v_and_b32 v{w2}, 0xffff0000, v{pk2+h_}
            v_add_f32 v{ssum}, v{ssum}, v{w1}
            v_fmac_f32 v{ssq}, v{w1}, v{w1}
            v_add_f32 v{ssum}, v{ssum}, v{w2}
            v_fmac_f32 v{ssq}, v{w2}, v{w2}
            """)
    for reg in (ssum, ssq):
        a(f"""
        v_mov_b32 v{w0}, v{reg}
        s_nop 1
        v_permlane32_swap_b32 v{w0}, v{reg}
        s_nop 1
        v_add_f32 v{reg}, v{reg}, v{w0}
        v_mov_b32 v{w0}, v{reg}
        s_nop 1
        v_permlane16_swap_b32 v{w0}, v{reg}
        s_nop 1
        v_add_f32 v{reg}, v{reg}, v{w0}
        """)
    a(f"""
    v_mov_b32 v{st2}, v{ssum}
    v_mov_b32 v{st2+1}, v{ssq}
    v_lshlrev_b32 v{w0}, 6, v{vtok}
    s_lshl_b32 s30, s17, 3
    s_mov_b64 exec, 0xffff
    buffer_store_dwordx2 {vr(st2,2)}, v{w0}, s[40:43], s30 offen
    s_branch {name}_end
    """)
    a = a_main
    a.label(f"{name}_svc")
    S = VAlloc(3)
    vKlo = S.get(); vKhi = S.get(); vV = S.get(); u0 = S.get(); u1 = S.get(); u2 = S.get()
    a(f"""
    v_lshlrev_b32 v{vKlo}, 4, v2
    v_lshrrev_b32 v{u0}, 5, v2
    v_mul_u32_u24 v{u0}, 40960, v{u0}
    v_and_b32 v{u1}, 31, v2
    v_lshl_add_u32 v{vKhi}, v{u1}, 4, v{u0}
    v_mul_u32_u24 v{u0}, 49, v2
    v_lshrrev_b32 v{u0}, 10, v{u0}
    v_mul_u32_u24 v{u1}, 21, v{u0}
    v_sub_u32 v{u1}, v2, v{u1}           ; row
    v_cmp_gt_u32 vcc, 20, v{u1}
    v_cmp_gt_u32 s[30:31], 63, v2
    v_mul_u32_u24 v{u0}, 10240, v{u0}
    v_lshl_add_u32 v{vV}, v{u1}, 4, v{u0}
    s_and_b64 s[56:57], vcc, s[30:31]
    s_mul_i32 s50, s16, 5
    s_add_u32 s50, s50, 1
    s_lshr_b32 s50, s50, 1
    s_lshl_b32 s50, s50, 9               ; cA*512
    s_and_b32 s58, s16, 1
    s_mul_i32 s58, s58, {-(1024+512) & 0xffffffff}
    s_add_u32 s58, s58, 1024
    s_add_u32 s58, s58, s50              ; cR*512
    s_mul_i32 s51, s16, 320
    s_add_u32 s51, s51, {REG}
    s_waitcnt lgkmcnt(0)
    """)
    a("; STAMP 4")
    srd(a, 4, P['ws'], 2*REG, KF_OFF)
    a("s_sub_u32 s19, s18, 8")
    def issue_chunk(buf_sg, cidx):
        lv_ = a.newlabel(name + "_iv"); le_ = a.newlabel(name + "_ie"); l5 = a.newlabel(name + "_i5")
        a(f"s_mul_i32 s21, {cidx}, {CSTR}" if not cidx.isdigit() else f"s_mov_b32 s21, {int(cidx)*CSTR}")
        a(f"s_cmp_ge_u32 s19, 2\ns_cbranch_scc1 {lv_}")
        a(f"""
        s_mul_i32 s30, s19, {4*40960}
        s_add_u32 s30, s30, s21
        s_add_u32 s30, s30, s50
        s_lshl_b32 s32, s19, 12
        s_add_u32 s32, s32, s{buf_sg}
        """)
        for t in range(4):
            a(f"s_add_u32 m0, s32, {t*1024}")
            a(f"s_add_u32 s31, s30, {t*40960}")
            a(f"buffer_load_dwordx4 v{vKlo}, s[4:7], s31 offen lds")
        a(f"""
        s_mul_i32 s30, s19, {4*40960}
        s_add_u32 s30, s30, s21
        s_add_u32 s30, s30, s58
        s_lshl_b32 s32, s19, 11
        s_add_u32 s32, s32, s{buf_sg}
        """)
        for i in range(2):
            a(f"s_add_u32 m0, s32, {KH + i*1024}")
            a(f"s_add_u32 s31, s30, {i*2*40960}")
            a(f"buffer_load_dwordx4 v{vKhi}, s[4:7], s31 offen lds")
        a(f"s_branch {le_}")
        a.label(lv_)
        a(f"""
        s_sub_u32 s32, s19, 2
        s_mul_i32 s30, s32, {6*3*10240}
        s_add_u32 s30, s30, s21
        s_add_u32 s30, s30, s51
        s_mul_i32 s32, s32, {6*1008}
        s_add_u32 s32, s32, s{buf_sg}
        s_mov_b64 exec, s[56:57]
        """)
        for jv in range(6):
            if jv == 5:
                a(f"s_cmp_eq_u32 s19, 3\ns_cbranch_scc1 {l5}")
            a(f"s_add_u32 m0, s32, {VOFF + jv*1008}")
            a(f"s_add_u32 s31, s30, {jv*3*10240}")
            a(f"buffer_load_dwordx4 v{vV}, s[4:7], s31 offen lds")
        a.label(l5)
        a("s_mov_b64 exec, -1")
        a.label(le_)
    a("s_mov_b32 s20, 0")
    issue_chunk(20, "0")
    a("; STAMP 5")
    rp_v = [S.get(), S.get()]; rp_c = [S.get(), S.get()]
    rp_row = S.get(); rp_ra = S.get(); rp_f = S.get(); rp_t = S.get(); rp_o = S.get()
    RF = S.get(28, 4)
    a(f"""
    v_lshrrev_b32 v{rp_row}, 4, v2
    v_and_b32 v{rp_t}, 15, v2
    v_lshlrev_b32 v{rp_c[0]}, 1, v{rp_row}
    v_xor_b32 v{rp_c[0]}, v{rp_c[0]}, v{rp_t}
    v_xor_b32 v{rp_c[1]}, 8, v{rp_c[0]}
    v_lshrrev_b32 v{rp_t}, 4, v2
    v_bfe_u32 v{rp_f}, v2, 2, 2
    v_lshl_add_u32 v{rp_ra}, v{rp_t}, 3, v{rp_f}
    v_lshlrev_b32 v{rp_ra}, 8, v{rp_ra}
    v_and_b32 v{rp_o}, 3, v2
    v_lshl_add_u32 v{rp_ra}, v{rp_o}, 3, v{rp_ra}
    s_lshl_b32 s48, s19, 13
    s_add_u32 s48, s48, {RPK}
    v_add_u32 v{rp_ra}, s48, v{rp_ra}
    v_and_b32 v{rp_t}, 1, v{rp_t}
    v_lshl_or_b32 v{rp_f}, v{rp_t}, 2, v{rp_f}
    v_lshlrev_b32 v{rp_f}, 5, v{rp_f}
    v_lshlrev_b32 v{rp_o}, 4, v2
    """)
    srd(a, 40, P['ws'], WPX, WP_OFF)
    _a_keep = a
    if not FUSE: a = Asm()
    vwo = [S.get() for _ in range(5)]
    for i in range(5):
        a(f"""
        v_add_u32 v{u0}, {i*64}, v2
        v_mul_u32_u24 v{u1}, 104858, v{u0}
        v_lshrrev_b32 v{u1}, 20, v{u1}
        v_mul_u32_u24 v{u2}, 10, v{u1}
        v_sub_u32 v{u2}, v{u0}, v{u2}
        v_and_b32 v{rp_t}, 0x33, v{u1}
        v_bfe_u32 v{u0}, v{u1}, 2, 1
        v_lshl_or_b32 v{rp_t}, v{u0}, 3, v{rp_t}
        v_bfe_u32 v{u0}, v{u1}, 3, 1
        v_lshl_or_b32 v{rp_t}, v{u0}, 2, v{rp_t}
        v_mul_u32_u24 v{rp_t}, 1280, v{rp_t}
        v_lshl_add_u32 v{vwo[i]}, v{u2}, 4, v{rp_t}
        """)
    srd(a, 60, P['wo'], DM*DM*2)
    a("s_and_b32 s59, s16, 7\ns_mul_i32 s59, s59, 160")
    a = _a_keep
    def wo_group(gsg, ldsbase_sg):
        a(f"s_mul_i32 s30, s{gsg}, {32*1280}\ns_add_u32 s30, s30, s59")
        for i in range(5):
            a(f"s_add_u32 m0, s{ldsbase_sg}, {i*1024}\ns_nop 0")
            a(f"buffer_load_dwordx4 v{vwo[i]}, s[60:63], s30 offen lds")
    def rp_decode(usg):
        l_gu = a.newlabel(name + "_rg"); l_wd = a.newlabel(name + "_rd"); l_e = a.newlabel(name + "_re")
        a(f"""
        s_cmp_ge_u32 s{usg}, 800
        s_cbranch_scc1 {l_wd}
        s_cmp_ge_u32 s{usg}, 160
        s_cbranch_scc1 {l_gu}
        s_mul_i32 s30, s{usg}, 3277
        s_lshr_b32 s30, s30, 16
        s_mul_i32 s31, s30, 20
        s_sub_u32 s31, s{usg}, s31
        s_mul_i32 s32, s30, 160
        s_mul_i32 s44, s31, {32*1280}
        s_add_u32 s44, s44, s32
        s_mov_b32 s45, 1280
        s_mul_i32 s46, s{usg}, 5120
        s_add_u32 s46, s46, {WP_WO}
        s_mov_b32 s47, 5
        s_mov_b32 s36, s{P['wo']}
        s_mov_b32 s37, s{P['wo']+1}
        s_mov_b32 s38, {DM*DM*2}
        s_branch {l_e}
        """)
        a.label(l_gu)
        a(f"""
        s_sub_u32 s49, s{usg}, 160
        s_mul_i32 s30, s49, 1639
        s_lshr_b32 s30, s30, 16
        s_mul_i32 s31, s30, 40
        s_sub_u32 s31, s49, s31
        s_mul_i32 s32, s30, 224
        s_lshr_b32 s49, s31, 1
        s_mul_i32 s44, s49, {32*3456}
        s_add_u32 s44, s44, s32
        s_mov_b32 s45, 3456
        s_mul_i32 s46, s30, 20
        s_add_u32 s46, s46, s49
        s_mul_i32 s46, s46, 14
        s_and_b32 s31, s31, 1
        s_mul_i32 s30, s31, 7
        s_add_u32 s46, s46, s30
        s_lshl_b32 s46, s46, 10
        s_add_u32 s46, s46, {WP_GU}
        s_mov_b32 s47, 7
        s_cmp_eq_u32 s31, 0
        s_cselect_b32 s36, s{P['wg']}, s{P['wu']}
        s_cselect_b32 s37, s{P['wg']+1}, s{P['wu']+1}
        s_mov_b32 s38, {DM*FF*2}
        s_branch {l_e}
        """)
        a.label(l_wd)
        a(f"""
        s_sub_u32 s49, s{usg}, 800
        s_mul_i32 s30, s49, 1214
        s_lshr_b32 s30, s30, 16
        s_mul_i32 s31, s30, 54
        s_sub_u32 s31, s49, s31
        s_mul_i32 s32, s30, 160
        s_mul_i32 s44, s31, {32*1280}
        s_add_u32 s44, s44, s32
        s_mov_b32 s45, 1280
        s_mul_i32 s46, s49, 5120
        s_add_u32 s46, s46, {WP_WD}
        s_mov_b32 s47, 5
        s_mov_b32 s36, s{P['wd']}
        s_mov_b32 s37, s{P['wd']+1}
        s_mov_b32 s38, {FF*DM*2}
        """)
        a.label(l_e)
        a("s_mov_b32 s39, 0x00020000")
    def rp_A(usg):
        rp_decode(usg)
        a(f"""
        s_lshl_b32 s49, s47, 1
        v_mul_lo_u32 v{rp_t}, v{rp_row}, s45
        v_lshl_add_u32 v{rp_v[0]}, v{rp_c[0]}, 4, v{rp_t}
        v_lshl_add_u32 v{rp_v[1]}, v{rp_c[1]}, 4, v{rp_t}
        v_cmp_gt_u32 s[54:55], s49, v{rp_c[0]}
        v_cmp_gt_u32 s[26:27], s49, v{rp_c[1]}
        s_lshl_b32 s31, s45, 2
        s_nop 1
        """)
        for i in range(8):
            var = (i >> 1) & 1
            a(f"s_add_u32 m0, s48, {i*1024}")
            a(f"s_mov_b64 exec, {['s[54:55]', 's[26:27]'][var]}")
            a(f"buffer_load_dwordx4 v{rp_v[var]}, s[36:39], s44 offen lds")
            a(f"s_add_u32 s44, s44, s31")
        a("s_mov_b64 exec, -1")
    def rp_B():
        for nt in range(7):
            a(f"v_xor_b32 v{rp_t}, {nt*32}, v{rp_f}")
            a(f"v_add_u32 v{rp_t}, v{rp_t}, v{rp_ra}")
            a(f"ds_read_b64_tr_b16 {vr(RF+4*nt,2)}, v{rp_t}")
            a(f"ds_read_b64_tr_b16 {vr(RF+4*nt+2,2)}, v{rp_t} offset:1024")
        a("s_waitcnt lgkmcnt(0)")
        lab = a.newlabel(name + "_r5")
        for nt in range(7):
            if nt == 5:
                a(f"s_cmp_lt_u32 s47, 7\ns_cbranch_scc1 {lab}")
            a(f"s_add_u32 s30, s46, {nt*1024}")
            a(f"buffer_store_dwordx4 {vr(RF+4*nt,4)}, v{rp_o}, s[40:43], s30 offen sc1")
        a.label(lab)
    a(f"""
    s_mov_b32 s23, 0                     ; mode
    s_lshl_b32 s53, s2, 2
    s_add_u32 s53, s53, s19
    s_mov_b32 s52, 0
    s_waitcnt vmcnt(0)
    ; STAMP 6
    s_barrier
    s_mov_b32 s20, {CH}
    """)
    issue_chunk(20, "1")
    a.label(f"{name}_smain")
    a(f"s_mov_b32 s22, 0\ns_mov_b32 s20, {2*CH}")
    a.label(f"{name}_sloop")
    lplain = a.newlabel(name + "_pl"); lbar = a.newlabel(name + "_br"); l1 = a.newlabel(name + "_c1"); l2 = a.newlabel(name + "_c2"); l1b = a.newlabel(name + "_c1b")
    if os.environ.get("NOREPACK"): a(f"s_branch {lplain}")
    a(f"""
    s_cmp_lg_u32 s23, 0
    s_cbranch_scc1 {lplain}
    s_cmp_gt_u32 s22, 2
    s_cbranch_scc1 {lplain}
    s_cmp_eq_u32 s22, 1
    s_cbranch_scc1 {l1}
    s_cmp_eq_u32 s22, 2
    s_cbranch_scc1 {l2}
    """)
    rp_A(53)
    a(f"s_add_u32 s53, s53, 1024\ns_waitcnt vmcnt(8)\ns_branch {lbar}")
    a.label(l1)
    a("s_waitcnt vmcnt(5)")
    rp_B()
    a(f"s_cmp_ge_u32 s53, 1232\ns_cbranch_scc1 {l1b}")
    rp_A(53)
    a(f"s_waitcnt vmcnt(13)\ns_branch {lbar}")
    a.label(l1b)
    a(f"s_waitcnt vmcnt(5)\ns_branch {lbar}")
    a.label(l2)
    a(f"s_cmp_ge_u32 s53, 1232\ns_cbranch_scc1 {lplain}")
    a("s_waitcnt vmcnt(5)")
    rp_B()
    a(f"s_waitcnt vmcnt(5)\ns_branch {lbar}")
    a.label(lplain)
    a("s_waitcnt vmcnt(0)")
    a.label(lbar)
    a("s_barrier")
    lnd = a.newlabel(name + "_sk")
    a(f"s_cmp_ge_u32 s22, {NCH-2}\ns_cbranch_scc1 {lnd}")
    a("s_add_u32 s25, s22, 2")
    issue_chunk(20, "s25")
    a.label(lnd)
    _a_keep = a
    if not FUSE: a = Asm()
    lwo = a.newlabel(name + "_wo"); lsg = a.newlabel(name + "_sg")
    a(f"""
    s_cmp_lg_u32 s23, 0
    s_cbranch_scc1 {lwo}
    s_cmp_lg_u32 s22, 3
    s_cbranch_scc1 {lsg}
    s_cmp_lg_u32 s19, 0
    s_cbranch_scc1 {lsg}
    s_add_u32 s44, s{P['ws']}, {SY_OFF}
    s_addc_u32 s45, s{P['ws']+1}, 0
    s_mov_b32 s46, {SY_BYTES}
    s_mov_b32 s47, 0x00020000
    v_mov_b32 v{u0}, 2048
    v_mov_b32 v{u1}, 1
    s_mov_b64 exec, 1
    buffer_atomic_add v{u1}, v{u0}, s[44:47], 0 offen sc1
    s_mov_b64 exec, -1
    """)
    a.label(lsg)
    a(f"""
    s_cmp_lt_u32 s22, 3
    s_cbranch_scc1 {lwo}
    s_sub_u32 s25, s22, 3
    s_lshl_b32 s25, s25, 2
    s_add_u32 s25, s25, s19              ; group
    s_cmp_ge_u32 s25, 19
    s_cbranch_scc1 {lwo}
    s_mul_i32 s32, s25, 5120
    s_add_u32 s32, s32, {WOW}
    """)
    wo_group(25, 32)
    a.label(lwo)
    a = _a_keep
    a(f"""
    s_add_u32 s20, s20, {CH}
    s_cmp_ge_u32 s20, {3*CH}
    s_cselect_b32 s30, {3*CH}, 0
    s_sub_u32 s20, s20, s30
    s_add_u32 s22, s22, 1
    s_cmp_lt_u32 s22, {NCH}
    s_cbranch_scc1 {name}_sloop
    s_cmp_lg_u32 s23, 0
    s_cbranch_scc1 {name}_sfin
    s_barrier
    v_mov_b32 v{u0}, {FLAG}
    ds_read_b32 v{u1}, v{u0}
    s_waitcnt lgkmcnt(0)
    v_readfirstlane_b32 s30, v{u1}
    s_nop 3
    s_cmp_eq_u32 s30, 0
    s_cbranch_scc1 {name}_sfin
    s_mov_b32 s22, 0
    s_mov_b32 s20, 0
    """)
    a.label(f"{name}_smax")
    a("s_barrier")
    a("s_mov_b32 s25, s22")
    issue_chunk(20, "s25")
    a("s_waitcnt vmcnt(0)\ns_barrier")
    a(f"s_add_u32 s22, s22, 1\ns_cmp_lt_u32 s22, {NCH}\ns_cbranch_scc1 {name}_smax")
    a("s_barrier")
    a("s_mov_b32 s20, 0")
    issue_chunk(20, "0")
    a(f"s_mov_b32 s20, {CH}")
    issue_chunk(20, "1")
    a("s_waitcnt vmcnt(0)\ns_barrier\ns_mov_b32 s23, 1")
    a(f"s_branch {name}_smain")
    a.label(f"{name}_sfin")
    _a_keep = a
    if not FUSE: a = Asm()
    a("s_waitcnt vmcnt(0)\ns_barrier")
    lsf = a.newlabel(name + "_sf")
    a(f"s_cmp_lg_u32 s19, 3\ns_cbranch_scc1 {lsf}")
    a(f"s_mov_b32 s25, 19\ns_mov_b32 s32, {WOL}")
    wo_group(25, 32)
    a("s_waitcnt vmcnt(0)")
    a.label(lsf)
    a("s_barrier")
    a = _a_keep
    a.label(f"{name}_end")
    a("s_endpgm")
    return a.text(), max(V.hi, S.hi, W_.hi if FUSE else 0), (WOW + 19*5120) if FUSE else (RPK + 4*8192)
```
